```python
import torch

def _softmax(x, axis=-1):
    return torch.softmax(x, dim=axis)

def _gelu(x):
    return torch.nn.functional.gelu(x, approximate='tanh')

def _silu(x):
    return torch.nn.functional.silu(x)

def _sigmoid(x):
    return torch.sigmoid(x)

def _layernorm(x, axis=-1, eps=1e-05):
    m = x.mean(dim=axis, keepdim=True)
    v = x.var(dim=axis, keepdim=True, unbiased=False)
    return (x - m) / torch.sqrt(v + eps)

def _scatter_add(tgt, idx, src, axis=0):
    return tgt.clone().index_add_(axis, idx, src)

def _segment_sum(src, seg, n):
    out = torch.zeros((n,) + src.shape[1:], dtype=src.dtype)
    return out.index_add_(0, seg, src)

def _pad(x, pw):
    flat = tuple((v for pair in reversed(pw) for v in pair))
    return torch.nn.functional.pad(x, flat)
kernel_name = 'interleave_layers__memory_aug_recurrent_mem_tr__dense_activation_silu__prompt'

def setup_inputs():

    _w = lambda a: (lambda t: t.to(torch.bfloat16) if t.is_floating_point() else t)(torch.as_tensor(a))

    def _A_setup():
        B, S, Dm = (1, 2048, 640)
        H, Dh = (32, 128)
        M, seg = (8, 32)
        seg = min(seg, S)
        S = S // seg * seg
        return {'x': _w((lambda *s: torch.randn(*s, dtype=torch.bfloat16) * 0.05)(B, S, Dm)), 'mem0': _w((lambda *s: torch.randn(*s, dtype=torch.bfloat16) * 0.4)(B, M, Dm)), 'Wq': _w((lambda *s: torch.randn(*s, dtype=torch.bfloat16) * 1.6)(Dm, H, Dh) * Dm ** (-0.5)), 'Wk': _w((lambda *s: torch.randn(*s, dtype=torch.bfloat16) * 1.6)(Dm, H, Dh) * Dm ** (-0.5)), 'Wv': _w((lambda *s: torch.randn(*s, dtype=torch.bfloat16) * 0.4)(Dm, H, Dh) * Dm ** (-0.5)), 'Wo': _w((lambda *s: torch.randn(*s, dtype=torch.bfloat16) * 0.4)(H, Dh, Dm) * (H * Dh) ** (-0.5)), 'seg_len': seg}
    _A_in = _A_setup()

    def _B_setup():
        B, S, D, F = (1, 2048, 640, 1728)
        return {'x': _w((lambda *s: torch.randn(*s, dtype=torch.bfloat16) * 0.05)(B, S, D)), 'w1': _w((lambda *s: torch.randn(*s, dtype=torch.bfloat16) * 1.6)(D, F) * D ** (-0.5)), 'w2': _w((lambda *s: torch.randn(*s, dtype=torch.bfloat16) * 0.2)(F, D) * F ** (-0.5))}
    _B_in = _B_setup()
    return {'A_x': _A_in['x'], 'A_mem0': _A_in['mem0'], 'A_Wq': _A_in['Wq'], 'A_Wk': _A_in['Wk'], 'A_Wv': _A_in['Wv'], 'A_Wo': _A_in['Wo'], 'A_seg_len': _A_in['seg_len'], 'B_x': _B_in['x'], 'B_w1': _B_in['w1'], 'B_w2': _B_in['w2']}

def reference(A_x, A_mem0, A_Wq, A_Wk, A_Wv, A_Wo, A_seg_len, B_x, B_w1, B_w2):

    def _A_ref(x, mem0, Wq, Wk, Wv, Wo, seg_len):
        B, S, Dm = x.shape
        H, Dh = (Wq.shape[1], Wq.shape[2])
        M = mem0.shape[1]
        scale = Dh ** (-0.5)
        n_seg = S // seg_len
        L = M + seg_len
        idx = torch.arange(L)
        mask = (idx[:, None] < M) | (idx[:, None] >= idx[None, :])
        mem = mem0
        outs = []
        for s in range(n_seg):
            xs = x[:, s * seg_len:(s + 1) * seg_len, :].clone()
            h = torch.concatenate([mem, xs], axis=1)
            q = torch.einsum('btd,dhe->bhte', h, Wq)
            k = torch.einsum('btd,dhe->bhte', h, Wk)
            v = torch.einsum('btd,dhe->bhte', h, Wv)
            scores = torch.einsum('bhqe,bhke->bhqk', q, k) * scale
            scores = torch.where(mask[None, None], scores, -1000000000.0)
            p = _softmax(scores, axis=-1)
            o = torch.einsum('bhqk,bhke->bhqe', p, v)
            o = torch.einsum('bhte,hed->btd', o, Wo)
            mem = o[:, :M, :].clone()
            outs.append(o[:, M:, :])
        return torch.concatenate(outs, axis=1)

    def _B_ref(x, w1, w2):
        h = torch.einsum('bsd,df->bsf', x, w1)
        h = _silu(h)
        out = torch.einsum('bsf,fd->bsd', h, w2)
        return out
    x = A_x
    x = x + _A_ref(_layernorm(x, axis=-1), A_mem0, A_Wq, A_Wk, A_Wv, A_Wo, A_seg_len)
    x = x + _B_ref(_layernorm(x, axis=-1), B_w1, B_w2)
    x = x + _A_ref(_layernorm(x, axis=-1), A_mem0, A_Wq, A_Wk, A_Wv, A_Wo, A_seg_len)
    x = x + _B_ref(_layernorm(x, axis=-1), B_w1, B_w2)
    return x
```

```python
import re

TRANS = ('v_exp_f32','v_log_f32','v_rcp_f32','v_rsq_f32','v_sqrt_f32','v_sin_f32','v_cos_f32')
REG_RE = re.compile(r'^(-|\|)?(abs\()?([vas])(\d+|\[(\d+):(\d+)\])\)?\|?$')

def parse_reg(tok):
    t = tok.strip()
    if t in ('vcc','vcc_lo','vcc_hi'): return [('s','vcc')]
    if t in ('exec','exec_lo','exec_hi'): return [('s','exec')]
    if t == 'm0': return [('s','m0')]
    m = REG_RE.match(t)
    if not m: return []
    k = m.group(3)
    if m.group(5) is not None:
        return [(k,i) for i in range(int(m.group(5)), int(m.group(6))+1)]
    return [(k,int(m.group(4)))]

def split_ops(s):
    out=[]; cur=''; depth=0
    for ch in s:
        if ch in '[(': depth+=1
        if ch in '])': depth-=1
        if ch==',' and depth==0:
            out.append(cur.strip()); cur=''
        else: cur+=ch
    if cur.strip(): out.append(cur.strip())
    return out

class Ins:
    __slots__=('text','op','kind','w','r','ws','srcC','srcAB','passes','dpp','target','store_data','lds_dma','is_label')
    def __init__(self, text):
        self.text=text; self.is_label=text.endswith(':')
        self.op=''; self.kind='other'; self.w=set(); self.r=set(); self.ws=1
        self.srcC=set(); self.srcAB=set(); self.passes=0; self.dpp=False; self.target=None
        self.store_data=set(); self.lds_dma=False
        if self.is_label or text.startswith('.') or text.startswith(';'):
            self.ws=0; self.kind='meta'; return
        body=text.split(';')[0].strip()
        p=body.split(None,1); op=p[0]; self.op=op
        rest=p[1] if len(p)>1 else ''
        ops=split_ops(rest)
        mods=''
        if ops:
            q=ops[-1].split(None,1)
            if len(q)>1 and not ops[-1].startswith('hwreg'):
                ops[-1]=q[0]; mods=q[1]
        R=[parse_reg(o) for o in ops]
        if op=='s_nop':
            self.ws=int(ops[0],0)+1; self.kind='salu'; return
        if op.startswith('v_mfma') or op.startswith('v_smfmac'):
            self.kind='mfma'; self.passes=8 if '32x32' in op else 4
            self.w=set(R[0]); self.srcAB=set(R[1])|set(R[2]); self.srcC=set(R[3]); self.r=self.srcAB|self.srcC
            return
        if op.startswith('v_'):
            self.kind='valu'
            self.dpp=('row_' in mods or 'quad_perm' in mods or op.endswith('_dpp'))
            if 'permlane' in op and 'swap' in op:
                self.w=set(R[0])|set(R[1]); self.r=set(self.w); return
            nd=1
            if op.startswith(('v_add_co','v_sub_co','v_addc_co','v_subb_co','v_mad_u64')): nd=2
            for x in R[:nd]: self.w|=set(x)
            for x in R[nd:]: self.r|=set(x)
            if op.startswith(('v_fmac','v_dot2c','v_writelane')) or self.dpp: self.r|=set(R[0])
            return
        if op.startswith(('buffer_','global_')):
            self.kind='vmem'
            lds=(' lds' in ' '+mods)
            if lds:
                self.lds_dma=True
                for x in R: self.r|=set(x)
                self.r.add(('s','m0'))
            elif 'load' in op:
                self.w=set(R[0])
                for x in R[1:]: self.r|=set(x)
            else:
                for x in R: self.r|=set(x)
                if 'atomic' in op and 'sc0' in mods: self.w=set(R[0])
                if 'dwordx4' in op or 'dwordx3' in op: self.store_data=set(R[0])
            return
        if op.startswith('ds_'):
            self.kind='ds'
            if op.startswith(('ds_read','ds_bpermute','ds_swizzle','ds_permute')):
                self.w=set(R[0])
                for x in R[1:]: self.r|=set(x)
            else:
                for x in R: self.r|=set(x)
            return
        if op.startswith('s_'):
            self.kind='salu'
            if op.startswith(('s_branch','s_cbranch')):
                self.target=ops[0]; return
            if op.startswith(('s_cmp','s_bitcmp','s_waitcnt','s_barrier','s_endpgm','s_sleep','s_setprio')):
                for x in R: self.r|=set(x)
                return
            if R:
                self.w=set(R[0])
                for x in R[1:]: self.r|=set(x)
                if 'saveexec' in op: self.w.add(('s','exec'))
            return
        raise ValueError('unknown instruction: '+text)

def isv(S): return {x for x in S if x[0] in 'va'}
def iss(S): return {x for x in S if x[0]=='s'}

def need(p, c):
    n=0
    if p.kind=='valu':
        wv=isv(p.w); wsg=iss(p.w)
        if wv:
            if c.kind=='mfma' and wv & c.r: n=max(n,2)
            if c.kind=='valu':
                if 'permlane' in c.op and wv & c.r: n=max(n,2)
                if c.dpp and wv & c.r: n=max(n,2)
                if c.op.startswith(('v_readlane','v_readfirstlane')) and wv & c.r: n=max(n,1)
                if p.op.replace('_e32','') in TRANS and wv & c.r: n=max(n,1)
        if wsg:
            if c.kind=='vmem' and wsg & c.r: n=max(n,5)
            if c.kind=='valu' and wsg & c.r:
                n=max(n,4 if c.op.startswith(('v_readlane','v_writelane')) else 2)
            if c.kind=='salu' and wsg & c.r: n=max(n,1)
    if p.kind=='mfma':
        big=p.passes==8
        if c.kind=='mfma':
            if p.w & c.srcAB: n=max(n,12 if big else 8)
            if p.w & c.srcC and not (p.w==c.srcC and p.passes==c.passes): n=max(n,10 if big else 6)
            if p.w & c.w and not (p.w & c.srcC): n=max(n,10 if big else 6)
        elif c.kind in ('valu','vmem','ds'):
            if p.w & (c.r|c.w): n=max(n,12 if big else 8)
            if c.kind=='valu' and p.srcC & c.w: n=max(n,7 if big else 3)
    if p.kind=='vmem' and p.store_data:
        if p.store_data & c.w: n=max(n,2 if c.kind in('valu','mfma') else 1)
    if p.kind=='salu' and ('s','m0') in p.w and c.lds_dma: n=max(n,1)
    return n

WIN=14
def fix_hazards(lines):
    ins=[Ins(l) for l in lines]
    out=[]
    def deficit(prev, c):
        d=0; dist=0
        for p in reversed(prev):
            if dist>=WIN: break
            if p.kind!='meta':
                r=need(p,c)
                if r>dist: d=max(d,r-dist)
            dist+=p.ws
        return d
    for c in ins:
        if c.kind!='meta':
            d=deficit(out[-40:],c)
            if d>0:
                out.append(Ins(f's_nop {d-1}'))
        out.append(c)
    changed=True
    while changed:
        changed=False
        labels={x.text[:-1]:i for i,x in enumerate(out) if x.is_label}
        for i,b in enumerate(out):
            if b.target and b.target in labels:
                j=labels[b.target]
                prev=out[max(0,i-40):i+1]
                dist=0; k=j+1; worst=0
                seq=list(prev)
                while k<len(out) and dist<WIN:
                    c=out[k]
                    if c.kind!='meta':
                        d=deficit(seq,c)
                        if d>0: worst=d; break
                        if c.op in('s_branch','s_endpgm'): break
                    seq.append(c); dist+=c.ws; k+=1
                if worst:
                    out.insert(j+1, Ins(f's_nop {worst-1}')); changed=True; break
    return [x.text for x in out]

class E:
    def __init__(self):
        self.L=[]; self.nl=0
        self.vmn=0; self.vmdone=0
        self.lgn=0; self.lgdone=0
    def __call__(self, s):
        for l in s.split('\n'):
            l=l.split(';')[0].strip() if not l.strip().startswith('.') else l.strip()
            if l: self.L.append(l)
    def lab(self, p='L'):
        self.nl+=1; return f'{p}{self.nl}'
    def label(self, n): self.L.append(n+':')
    def vm(self, s):
        self(s); self.vmn+=1; return self.vmn
    def ds(self, s):
        self(s); self.lgn+=1; return self.lgn
    def wvm(self, tok=None):
        if tok is None: tok=self.vmn
        if tok<=self.vmdone: return
        n=self.vmn-tok
        assert n<=63, n
        self(f's_waitcnt vmcnt({n})'); self.vmdone=tok
    def wds(self, tok=None):
        if tok is None: tok=self.lgn
        if tok<=self.lgdone: return
        n=min(self.lgn-tok,15)
        self(f's_waitcnt lgkmcnt({n})'); self.lgdone=self.lgn-n
    def vm0(self):
        self('s_waitcnt vmcnt(0)'); self.vmdone=self.vmn
    def ds0(self):
        self('s_waitcnt lgkmcnt(0)'); self.lgdone=self.lgn
    def unknown(self):
        self.vmdone=self.vmn; self.lgdone=self.lgn
    def unknown_vm(self):
        self.vmdone=self.vmn
    def text(self):
        return '\n'.join(fix_hazards(self.L))+'\n'

def vr(i,n=4): return f'v[{i}:{i+n-1}]' if n>1 else f'v{i}'
def ar(i,n=4): return f'a[{i}:{i+n-1}]' if n>1 else f'a{i}'
```

```python
import sys, struct, math
sys.path.insert(0, 'gen')
from emit import *

NAME = 'interleave_layers__memory_aug_recurrent_mem_tr__dense_activation_silu__prompt_kernel'
MB = 1 << 20
class C: pass
def f2u(x): return struct.unpack('<I', struct.pack('<f', x))[0]

F_KV, F_R, F_XN, F_XN1, F_P = 0, 4096, 8192, 9216, 12288
OFF_AG, OFF_RSR = 0x10000, 0x20000
OFF_XN, OFF_XN1, OFF_X1, OFF_X2, OFF_WSR, OFF_RSP = 1*MB, 7*MB, 13*MB, 19*MB, 22*MB, 26*MB
OFF_KM, OFF_VM, OFF_KF, OFF_VF, OFF_PROF = 40*MB, 52*MB, 64*MB, 96*MB, 200*MB
ITEM = 40960
RSP_SLOT = 32*32*1280
WS='s[4:7]'; DBG='s[8:11]'
P_X,P_MEM,P_WQ,P_WK,P_WV,P_WO,P_W1,P_W2,P_OUT,P_DBG,P_WS = 0,1,2,3,4,5,8,9,10,11,12
SZ = {P_X:2048*1280, P_MEM:8*1280, P_WQ:640*8192, P_WK:640*8192, P_WV:640*8192, P_WO:4096*1280,
      P_W1:640*3456, P_W2:1728*1280, P_OUT:2048*1280, P_DBG:256, P_WS:256*MB}
sH, sW, sMODE, sGRP = 's24','s25','s26','s27'
MF = 'v_mfma_f32_16x16x32_bf16'
MF16 = 'v_mfma_f32_16x16x16_bf16'
CSC = (128 ** -0.5) * math.log2(math.e)

def srd(e, base, p):
    e(f's_mov_b32 s{base}, s{36+2*p}\ns_mov_b32 s{base+1}, s{37+2*p}\ns_mov_b32 s{base+2}, {SZ[p]}\ns_mov_b32 s{base+3}, 0x20000')

def mask64(e, s, val):
    e(f's_mov_b32 s{s}, {val & 0xffffffff:#x}\ns_mov_b32 s{s+1}, {val >> 32:#x}')

def lanemask(fn):
    return sum(1 << l for l in range(64) if fn(l))

def hstore(e, cfg, text):
    a = e.lab('hs'); b = e.lab('hs')
    e(f's_cmp_eq_u32 {sMODE}, 1\ns_cbranch_scc1 {a}')
    e(text + ' sc1'); e(f's_branch {b}'); e.label(a)
    t = e.vm(text); e.label(b)
    return t

def spin_tail(e, cfg, loop, code, cnt='s28'):
    e(f's_add_u32 {cnt}, {cnt}, 1\ns_cmp_lt_u32 {cnt}, {cfg.SPIN}\ns_cbranch_scc1 {loop}\ns_mov_b32 s29, {code}\ns_branch L_abort')

def wload(e, jobs, land, tmp, sT='s30', NP=6):
    e('s_mov_b32 s31, 0x05040100\ns_mov_b32 s32, 0x07060302')
    toks = {}
    def issue(p):
        s, vo, so, _, _ = jobs[p]
        e(f's_mov_b32 {sT}, {so}')
        b = land + 8*(p % NP)
        for j in range(8):
            toks[p] = e.vm(f'buffer_load_dword v{b+j}, v{vo+j}, {s}, {sT} offen')
    for p in range(min(NP, len(jobs))): issue(p)
    for p in range(len(jobs)):
        e.wvm(toks[p])
        b = land + 8*(p % NP)
        for t in range(2):
            d = jobs[p][3+t]
            o = d[1] if d[0] == 'v' else tmp + 4*t
            for jj in range(4):
                e(f'v_perm_b32 v{o+jj}, v{b+2*jj+1}, v{b+2*jj}, s{31+t}')
        if p + NP < len(jobs): issue(p + NP)
        for t in range(2):
            d = jobs[p][3+t]; o = tmp + 4*t
            if d[0] == 'a':
                for jj in range(4): e(f'v_accvgpr_write_b32 a{d[1]+jj}, v{o+jj}')
            elif d[0] == 'lds':
                e.ds(f'ds_write_b128 v{d[1]}, {vr(o)} offset:{d[2]}')
                e.wds()
            elif d[0] == 'ws':
                e(f's_add_u32 s33, {d[2]}, {d[3]}')
                e.vm(f'buffer_store_dwordx4 {vr(o)}, v{d[1]}, {WS}, s33 offen')
    e.vm0(); e.ds0()

def wload_voffs(e, vo, lane, stride, sbase):
    e(f"""v_lshrrev_b32 v{vo}, 4, v{lane}
    s_mov_b32 s30, {8*stride}
    v_mul_lo_u32 v{vo}, v{vo}, s30
    v_and_b32 v{vo+1}, 15, v{lane}
    v_lshl_add_u32 v{vo}, v{vo+1}, 2, v{vo}
    v_add_u32 v{vo}, {sbase}, v{vo}""")
    for j in range(1, 8): e(f'v_add_u32 v{vo+j}, {j*stride}, v{vo}')

def sync_start(e, cfg):
    lp = e.lab('sy'); ok = e.lab('sy'); done = e.lab('sy')
    e('s_mov_b32 s28, 0\nv_and_b32 v10, 15, v0\nv_lshlrev_b32 v10, 2, v10')
    e.label(lp)
    e(f'buffer_load_dword v11, v10, {DBG}, 0 offen sc1\ns_waitcnt vmcnt(0)')
    e('s_mov_b32 s30, 0\ns_mov_b32 s31, 0')
    for x in range(8):
        e(f'v_readlane_b32 s32, v11, {8+x}\nv_readlane_b32 s33, v11, {x}\ns_add_u32 s30, s30, s32\ns_xor_b32 s33, s33, 32\ns_or_b32 s31, s31, s33')
    e(f's_cmp_eq_u32 s30, 256\ns_cbranch_scc1 {ok}\ns_sleep 4')
    spin_tail(e, cfg, lp, 1)
    e.label(ok)
    e(f's_cmp_lg_u32 {sMODE}, 0\ns_cbranch_scc1 {done}')
    if cfg.FORCE_SLOW: e('s_mov_b32 s31, 1')
    e(f's_cmp_lg_u32 s31, 0\ns_cbranch_scc1 L_fallback\ns_mov_b32 {sMODE}, 1')
    e.label(done)
    e.unknown()

class Stream:
    def __init__(s, e, bufs, loads, kind):
        s.e=e; s.bufs=bufs; s.loads=loads; s.kind=kind; s.next=0; s.tok={}
    def issue(s):
        if s.next < len(s.loads):
            k=s.next; r=s.bufs[k % len(s.bufs)]
            s.tok[k]=s.loads[k](r); s.next+=1
    def prime(s, n=None):
        for _ in range(len(s.bufs) if n is None else n): s.issue()
    def get(s, k):
        if s.tok[k] is not None:
            (s.e.wds if s.kind=='ds' else s.e.wvm)(s.tok[k])
        return vr(s.bufs[k % len(s.bufs)])

def xlane(e, op, v, t):
    for sw in ('v_permlane32_swap_b32', 'v_permlane16_swap_b32'):
        e(f'v_mov_b32 v{t}, v{v}\n{sw} v{v}, v{t}\n{op} v{v}, v{v}, v{t}')

def mk_sel(e, d, lane16, t, smask, hi=False):
    e(f'v_and_b32 v{t}, 16, v{lane16}\nv_mov_b32 v{d}, 0x3f80\nv_lshlrev_b32 v{t}, v{t}, v{d}')
    for jj in range(4):
        e(f'v_cndmask_b32 v{d+jj}, 0, v{t}, s[{smask+2*jj}:{smask+2*jj+1}]')
def sel_masks(e, smask, hi=False):
    for jj in range(4):
        mask64(e, smask+2*jj, lanemask(lambda l: ((l & 15) >> 1) == jj + (4 if hi else 0)))

def prof(e, cfg, idx, sbase):
    if not cfg.PROF: return
    e(f's_memtime s[{90}:{91}]\ns_waitcnt lgkmcnt(0)\nv_mov_b32 v7, s90')
    e.lgdone = e.lgn
    e.vm(f'buffer_store_dword v7, off, {WS}, {sbase} offset:{idx*4}')

def role_R(e, cfg):
    D = cfg.D; NSTEP = 64 + D
    vL16, vRS, vW, vM0, vAG, vT = 0, 1, 2, 4, 3, 6
    P = 8; KX = 64; VX = 80; WV = 96
    L_MEM, L_S, L_W = 0, 20480, 32768
    NS, NLQ, NLO = cfg.NS, cfg.NLQ, cfg.NLO
    cls = ['r']*160
    span = cfg.SSPAN
    for k in range(NS): cls[int((k+0.5)*span/NS)] = 's'
    free = [n for n in range(80) if cls[n]=='r']
    for k in range(NLQ): cls[free[int((k+0.5)*len(free)/NLQ)]] = 'l'
    for k in range(NLO): cls[120+int((k+0.5)*40/NLO)] = 'l'
    loc = {}; nr=nl=ns=0
    for n in range(160):
        if cls[n]=='r':
            loc[n] = ('a',4*nr) if nr < 64 else ('v', WV+4*(nr-64)); nr+=1
        elif cls[n]=='l': loc[n]=('l',nl); nl+=1
        else: loc[n]=('s',ns); ns+=1
    assert nr <= 104 and nl <= 32, (nr, nl, ns)
    sT, sPAR, sAGR, sAGW, sWSR, sRSS, sRSL, sU, sKM, sK0, sK1, sN0, sN1, sOV = 's62','s63','s64','s65','s66','s67','s68','s69','s70','s71','s72','s73','s74','s75'
    sFL, sFR, sC, sPF = 's76','s77','s78','s79'
    mLO, mMV, mSEL, mOV = 80, 82, 84, 92
    if cfg.PROF: mSEL = 94
    e.label('L_roleR')
    e(f"""v_and_b32 v1, 63, v0
    s_lshl_b32 s33, {sH}, 8
    s_lshl_b32 s34, {sW}, 6
    s_add_u32 s33, s33, s34""")
    wload_voffs(e, 8, 1, 8192, 's33')
    e(f's_mul_i32 s33, {sH}, {128*1280}\ns_mul_i32 s34, {sW}, 320\ns_add_u32 s33, s33, s34')
    wload_voffs(e, 16, 1, 1280, 's33')
    srd(e,12,P_WQ); srd(e,16,P_WK); srd(e,20,P_WV); srd(e,96,P_WO)
    e(f"""v_lshlrev_b32 v6, 4, v1
    s_lshl_b32 s33, {sW}, 15
    s_add_u32 s33, s33, {L_W}
    v_add_u32 v{vW}, s33, v6
    s_lshl_b32 {sWSR}, {sH}, 2
    s_add_u32 {sWSR}, {sWSR}, {sW}
    s_mul_i32 {sWSR}, {sWSR}, {NS*1024}
    s_add_u32 {sWSR}, {sWSR}, {OFF_WSR}""")
    def dst(n):
        k, i = loc[n]
        if k in 'av': return (k, i)
        if k == 'l': return ('lds', vW, i*1024)
        return ('ws', 6, sWSR, i*1024)
    jobs = []
    for b in range(20):
        jobs.append(('s[12:15]', 8, b*32*8192, dst(4*b), dst(4*b+1)))
        jobs.append(('s[16:19]', 8, b*32*8192, dst(4*b+2), dst(4*b+3)))
    for b in range(20): jobs.append(('s[20:23]', 8, b*32*8192, dst(80+2*b), dst(81+2*b)))
    for c in range(5):
        for kk in range(4): jobs.append(('s[96:99]', 16, kk*32*1280 + c*64, dst(120+8*c+2*kk), dst(121+8*c+2*kk)))
    wload(e, jobs, 40, 24, NP=7)
    sync_start(e, cfg)
    srd(e,12,P_MEM)
    e(f"""v_and_b32 v6, 63, v0
    v_lshlrev_b32 v{vL16}, 4, v6
    v_lshrrev_b32 v7, 4, v6
    v_and_b32 v6, 15, v6
    v_lshlrev_b32 v{vRS}, 13, v7
    v_lshl_add_u32 v{vRS}, v6, 4, v{vRS}
    v_lshlrev_b32 v{vAG}, 3, v7
    v_lshl_add_u32 v{vAG}, v6, 4, v{vAG}
    s_lshl_b32 {sU}, {sW}, 5
    s_add_u32 {sU}, {sU}, {sH}
    v_and_b32 v6, 7, v6
    v_mul_u32_u24 v6, 1280, v6
    v_lshl_add_u32 v6, v7, 3, v6
    s_lshl_b32 s33, {sU}, 4
    buffer_load_dwordx2 v[4:5], v6, s[12:15], s33 offen
    s_mul_i32 {sRSS}, {sW}, {5*32768}
    s_lshl_b32 s33, {sH}, 8
    s_add_u32 {sRSS}, {sRSS}, s33
    s_add_u32 {sRSS}, {sRSS}, {OFF_RSR}
    s_lshl_b32 {sRSL}, {sU}, 13
    s_add_u32 {sRSL}, {sRSL}, {OFF_RSR}
    s_lshl_b32 {sKM}, {sH}, 12
    s_lshl_b32 s33, {sW}, 10
    s_add_u32 {sKM}, {sKM}, s33
    s_add_u32 {sKM}, {sKM}, {OFF_KM}
    s_lshl_b32 {sFL}, {sH}, 6
    s_lshl_b32 s33, {sW}, 4
    s_add_u32 {sFL}, {sFL}, s33
    s_lshl_b32 {sFR}, {sH}, 6
    s_add_u32 {sFR}, {sFR}, {F_R}
    s_mov_b32 {sC}, {f2u(CSC):#x}
    s_mov_b32 {sT}, 0
    s_mov_b32 {sPAR}, 1
    s_mov_b32 {sAGR}, {OFF_AG}
    s_mov_b32 {sAGW}, {OFF_AG+20480}
    s_mov_b32 {sN0}, 0
    s_mov_b32 {sN1}, 0
    s_lshl_b32 {sPF}, {sH}, 2
    s_add_u32 {sPF}, {sPF}, {sW}
    s_lshl_b32 {sPF}, {sPF}, 13
    s_add_u32 {sPF}, {sPF}, {OFF_PROF}
    s_waitcnt vmcnt(0)
    v_min_u32 v4, -2, v4
    v_min_u32 v5, -2, v5""")
    mask64(e, mLO, lanemask(lambda l: (l & 15) < 8))
    mask64(e, mMV, lanemask(lambda l: (l >> 5) == ((l & 15) >> 3)))
    sel_masks(e, mSEL)
    sk = e.lab('r')
    e(f's_cmp_ge_u32 {sU}, 80\ns_cbranch_scc1 {sk}\ns_lshl_b32 s33, {sU}, 8\ns_add_u32 s33, s33, {sAGR}\ns_mov_b32 exec_hi, 0')
    hstore(e, cfg, f'buffer_store_dwordx2 v[4:5], v{vAG}, {WS}, s33 offen')
    e('s_mov_b64 exec, -1'); e.label(sk)

    def kv_addr(tn):
        lab = e.lab('r')
        e(f"""s_min_u32 s33, {tn}, 63
        s_add_u32 s34, s33, 1
        s_lshl_b32 {sK0}, s33, 18
        s_lshl_b32 s33, {sFL}, 7
        s_add_u32 {sK0}, {sK0}, s33
        s_mov_b32 {sK1}, {sK0}
        s_mov_b32 s35, 0
        s_cmp_lt_u32 {tn}, {D}
        s_cbranch_scc1 {lab}
        s_sub_u32 s35, {tn}, {D}
        s_min_u32 s35, s35, 63
        s_lshl_b32 {sK1}, s35, 18
        s_add_u32 {sK1}, {sK1}, s33
        s_add_u32 {sK1}, {sK1}, {64<<18}
        s_add_u32 s35, s35, 1""")
        e.label(lab)
    def flags_issue():
        e(f'v_bfe_u32 v6, v{vL16}, 4, 2\nv_lshlrev_b32 v6, 2, v6')
        return e.vm(f'buffer_load_dword v6, v6, {WS}, {sFL} offen sc1')
    def flags_read():
        e(f"""v_readlane_b32 {sN0}, v6, 0
        v_readlane_b32 {sN1}, v6, 1
        v_readlane_b32 s30, v6, 2
        v_readlane_b32 s31, v6, 3
        s_min_u32 {sN0}, {sN0}, s30
        s_min_u32 {sN1}, {sN1}, s31""")
    def kv_wait(code):
        lp = e.lab('r'); ok = e.lab('r'); no = e.lab('r')
        e('s_mov_b32 s28, 0'); e.label(lp)
        e(f's_cmp_lt_u32 {sN0}, s34\ns_cbranch_scc1 {no}\ns_cmp_ge_u32 {sN1}, s35\ns_cbranch_scc1 {ok}')
        e.label(no)
        e(f'v_bfe_u32 v6, v{vL16}, 4, 2\nv_lshlrev_b32 v6, 2, v6\nbuffer_load_dword v6, v6, {WS}, {sFL} offen sc1\ns_waitcnt vmcnt(0)')
        flags_read()
        spin_tail(e, cfg, lp, code)
        e.label(ok)
    def kv_load(base, off):
        for l, s in ((0, sK0), (1, sK1)):
            e(f's_add_u32 s33, {s}, {off}')
            for t in range(2):
                e.vm(f'buffer_load_dwordx4 {vr(base+8*l+4*t)}, v{vL16}, {WS}, s33 offen offset:{t*1024} {cfg.KVF}')
    def mk_stream():
        def ld(k):
            def f(r):
                e(f's_add_u32 s33, {sWSR}, {(k//4)*4096}')
                return e.vm(f'buffer_load_dwordx4 {vr(r)}, v{vL16}, {WS}, s33 offen offset:{(k%4)*1024} sc1')
            return f
        return Stream(e, [P+4*i for i in range(5)], [ld(k) for k in range(NS)], 'vm')
    kv_addr(sT); kv_wait(2); kv_load(KX, OFF_KF); kv_load(VX, OFF_VF)
    st = mk_stream(); st.prime()
    e.vm0()

    e.label('L_Rstep')
    prof(e, cfg, 0, sPF)
    MBUF = [P+20, P+24, P+28]; LW = [P+32, P+36]; ACC = P+40
    lp = e.lab('r'); ok = e.lab('r')
    e(f's_mul_i32 s33, {sW}, 5120\ns_add_u32 s33, s33, {sAGR}\ns_add_u32 s34, s33, 4096\ns_mov_b32 s28, 0')
    e.label(lp)
    for j in range(5):
        e.vm(f'buffer_load_dwordx4 {vr(P+20+4*j)}, v{vL16}, {WS}, {"s33" if j<4 else "s34"} offen offset:{(j%4)*1024} sc1')
    e.vm0()
    e(f'v_max3_u32 v6, v{P+20}, v{P+21}, v{P+22}')
    for r in range(P+23, P+39, 2): e(f'v_max3_u32 v6, v6, v{r}, v{r+1}')
    e(f'v_max_u32 v6, v6, v{P+39}\nv_cmp_eq_u32 vcc, -1, v6\ns_cbranch_vccz {ok}')
    spin_tail(e, cfg, lp, 3)
    e.label(ok)
    e(f's_mul_i32 s33, {sW}, 5120\nv_add_u32 v6, s33, v{vL16}')
    for j in range(5): e.ds(f'ds_write_b128 v6, {vr(P+20+4*j)} offset:{L_MEM+j*1024}')
    e.ds0(); e('s_barrier')
    prof(e, cfg, 1, sPF)
    st = mk_stream(); st.next = 5
    for k in range(5): st.tok[k] = None
    def memstream():
        return Stream(e, MBUF, [(lambda b: lambda r: e.ds(f'ds_read_b128 {vr(r)}, v{vL16} offset:{L_MEM+b*1024}'))(b) for b in range(20)], 'ds')
    def lwld(i): return lambda r: e.ds(f'ds_read_b128 {vr(r)}, v{vW} offset:{i*1024}')
    lw = Stream(e, LW, [lwld(i) for i in range(NLQ)], 'ds')
    lwo = Stream(e, LW + [P+28, P+24], [lwld(NLQ+i) for i in range(NLO)], 'ds')
    def wop(n):
        k, i = loc[n]
        if k == 'a': return ar(i)
        if k == 'v': return vr(i)
        if k == 's': return st.get(i)
        return lw.get(i) if i < NLQ else lwo.get(i-NLQ)
    def wdone(n, _=None):
        k, i = loc[n]
        if k == 's': st.issue()
        if k == 'l': (lw if i < NLQ else lwo).issue()
    ms = memstream(); ms.prime(); lw.prime()
    for b in range(20):
        m = ms.get(b)
        for t in range(4):
            n = 4*b+t; a = vr(ACC+4*t)
            e(f'{MF} {a}, {wop(n)}, {m}, {a if b else 0}')
            wdone(n, lambda i: True)
        ms.issue()
    prof(e, cfg, 2, sPF)
    ms = memstream(); ms.prime()
    QF, KF_, Q1, Q2 = P, P+4, P+8, P+12
    VA = [P+52, P+16]; S = P+40
    nextT = 's32'
    e(f's_add_u32 {nextT}, {sT}, 1'); kv_addr(nextT)
    for r in range(4): e(f'v_cvt_pk_bf16_f32 v{QF+r}, v{ACC+r}, v{ACC+4+r}')
    for r in range(4): e(f'v_cvt_pk_bf16_f32 v{KF_+r}, v{ACC+8+r}, v{ACC+12+r}')
    for r in range(4): e(f'v_cndmask_b32 v{Q1+r}, 0, v{QF+r}, s[{mLO}:{mLO+1}]')
    for r in range(4): e(f'v_cndmask_b32 v{Q2+r}, v{QF+r}, 0, s[{mLO}:{mLO+1}]')
    e(f'{MF} {vr(S+8)}, {vr(KF_)}, {vr(QF)}, 0')
    for t in range(2): e(f'{MF} {vr(S+4*t)}, {vr(KX+4*t)}, {vr(Q1)}, 0')
    for t in range(2): e(f'{MF} {vr(S+4*t)}, {vr(KX+8+4*t)}, {vr(Q2)}, {vr(S+4*t)}')
    e.vm(f'buffer_store_dwordx4 {vr(KF_)}, v{vL16}, {WS}, {sKM} offen sc1')
    kv_wait(4); kv_load(KX, OFF_KF)
    fill = []
    F = fill.append
    def swrite():
        e(f's_mul_i32 s33, {sW}, 3072\nv_add_u32 v6, s33, v{vL16}')
        for t in range(3): tok = e.ds(f'ds_write_b128 v6, {vr(S+4*t)} offset:{L_S+t*1024}')
        swrite.tok = tok
    F(swrite); F(None); F(None)
    F(lambda: (e.wds(swrite.tok), e('s_barrier')))
    rb = [P, P+4, P+8, P+12]; stok = {}
    def sread(q, dst): stok[q] = e.ds(f'ds_read_b128 {vr(dst)}, v{vL16} offset:{L_S+q*1024}')
    F(lambda: [sread(t, S+4*t) for t in range(3)])
    F(lambda: [sread(3+q, rb[q]) for q in range(4)])
    F(None)
    for q in range(9):
        def add(q=q):
            e.wds(stok[3+q]); d = S+4*(q % 3)
            for r in range(4): e(f'v_add_f32 v{d+r}, v{d+r}, v{rb[q%4]+r}')
            if q+4 < 9: sread(3+q+4, rb[q % 4])
        F(add)
    F(lambda: e('s_barrier'))
    MX, TT, SM = P, P+1, P+2
    F(lambda: (e(f'v_mov_b32 v{TT}, 0xf149f2ca'), [e(f'v_cndmask_b32 v{S+8+r}, v{TT}, v{S+8+r}, s[{mMV}:{mMV+1}]') for r in range(4)]))
    def mx():
        e(f'v_max3_f32 v{MX}, v{S}, v{S+1}, v{S+2}')
        for r in range(3, 11, 2): e(f'v_max3_f32 v{MX}, v{MX}, v{S+r}, v{S+r+1}')
        e(f'v_max_f32 v{MX}, v{MX}, v{S+11}')
    F(mx)
    F(lambda: xlane(e, 'v_max_f32', MX, TT))
    F(lambda: e(f'v_mul_f32 v{MX}, {sC}, v{MX}'))
    for r in range(0, 12, 2):
        F(lambda r=r: e(f'v_fma_f32 v{S+r}, v{S+r}, {sC}, -v{MX}\nv_fma_f32 v{S+r+1}, v{S+r+1}, {sC}, -v{MX}\nv_exp_f32 v{S+r}, v{S+r}\nv_exp_f32 v{S+r+1}, v{S+r+1}'))
    def sm():
        e(f'v_add_f32 v{SM}, v{S}, v{S+1}\nv_add_f32 v{TT}, v{S+2}, v{S+3}')
        for r in range(4, 12, 2): e(f'v_add_f32 v{SM}, v{SM}, v{S+r}\nv_add_f32 v{TT}, v{TT}, v{S+r+1}')
        e(f'v_add_f32 v{SM}, v{SM}, v{TT}')
    F(sm)
    F(lambda: xlane(e, 'v_add_f32', SM, TT))
    F(lambda: e(f'v_rcp_f32 v{SM}, v{SM}'))
    for r in range(0, 12, 4):
        F(lambda r=r: [e(f'v_mul_f32 v{S+r+x}, v{S+r+x}, v{SM}') for x in range(4)])
    PX, P1, P2, PM = P+4, P+8, P+12, P+2
    F(lambda: [e(f'v_cvt_pk_bf16_f32 v{PX+r}, v{S+r}, v{S+4+r}') for r in range(4)])
    F(lambda: [e(f'v_cvt_pk_bf16_f32 v{PM+r}, v{S+8+2*r}, v{S+9+2*r}') for r in range(2)])
    F(lambda: [e(f'v_cndmask_b32 v{P1+r}, 0, v{PX+r}, s[{mLO}:{mLO+1}]') for r in range(4)])
    F(lambda: [e(f'v_cndmask_b32 v{P2+r}, v{PX+r}, 0, s[{mLO}:{mLO+1}]') for r in range(4)])
    fi = 0
    for b in range(20):
        m = ms.get(b)
        for t in range(2):
            n = 80+2*b+t; a = vr(VA[t])
            e(f'{MF} {a}, {m}, {wop(n)}, {a if b else 0}')
            wdone(n, lambda i: True)
            if fi < len(fill):
                if fill[fi]: fill[fi]()
                fi += 1
        ms.issue()
    while fi < len(fill):
        if fill[fi]: fill[fi]()
        fi += 1
    prof(e, cfg, 3, sPF)
    lwo.prime(2)
    O = P+40; VMF = P+20; OF = P+24
    for t in range(2): e(f'{MF} {vr(O+4*t)}, {vr(VX+4*t)}, {vr(P1)}, 0')
    for t in range(2): e(f'{MF} {vr(O+4*t)}, {vr(VX+8+4*t)}, {vr(P2)}, {vr(O+4*t)}')
    for t in range(2):
        for r in range(2): e(f'v_cvt_pk_bf16_f32 v{VMF+2*t+r}, v{VA[t]+2*r}, v{VA[t]+2*r+1}')
    for t in range(2): e(f'{MF16} {vr(O+4*t)}, {vr(VMF+2*t,2)}, {vr(PM,2)}, {vr(O+4*t)}')
    e(f's_add_u32 s33, {sKM}, {OFF_VM-OFF_KM}')
    e.vm(f'buffer_store_dwordx4 {vr(VMF)}, v{vL16}, {WS}, s33 offen sc1')
    e(f's_cmp_eq_u32 {sT}, {NSTEP-1}\ns_cbranch_scc1 L_Rlast')
    kv_load(VX, OFF_VF)
    e(f's_lshl_b32 s33, {sW}, 10\nv_add_u32 v7, s33, v{vL16}')
    for r in range(4): e(f'v_cvt_pk_bf16_f32 v{OF+r}, v{O+r}, v{O+4+r}')
    e.ds(f'ds_write_b128 v7, {vr(OF)} offset:{L_S}')
    flags_issue()
    e.ds0(); e('s_barrier')
    OB = P
    otok = [e.ds(f'ds_read_b128 {vr(OB+4*kk)}, v{vL16} offset:{L_S+kk*1024}') for kk in range(4)]
    lwo.prime(2)
    prof(e, cfg, 4, sPF)
    WA = [P+40, P+48]; PK = [P+16, P+20]
    def flush(c):
        a = WA[c % 2]; k = PK[c % 2]
        for r in range(4): e(f'v_cvt_pk_bf16_f32 v{k+r}, v{a+r}, v{a+4+r}')
        e(f'v_and_or_b32 v{k}, v{k}, -2, {sPAR}\nv_and_or_b32 v{k+2}, v{k+2}, -2, {sPAR}')
        e(f's_add_u32 s33, {sRSS}, {c*32768}')
        hstore(e, cfg, f'buffer_store_dwordx4 {vr(k)}, v{vRS}, {WS}, s33 offen')
    for c in range(5):
        for kk in range(4):
            e.wds(otok[kk])
            for t in range(2):
                n = 120+8*c+2*kk+t; a = vr(WA[c % 2]+4*t)
                e(f'{MF} {a}, {wop(n)}, {vr(OB+4*kk)}, {a if kk else 0}')
                wdone(n, lambda i: True)
            if kk == 1 and c: flush(c-1)
    flush(4)
    prof(e, cfg, 5, sPF)
    SEL = P+52
    mk_sel(e, SEL, vL16, 7, mSEL)
    e.vm0()
    flags_read()
    nofl = e.lab('r')
    e(f's_add_u32 {sT}, {sT}, 1\ns_barrier\ns_cmp_lg_u32 {sW}, 3\ns_cbranch_scc1 {nofl}\nv_mov_b32 v6, {sT}\nbuffer_store_dword v6, off, {WS}, {sFR} sc1')
    e.label(nofl)
    prof(e, cfg, 6, sPF)
    nored = e.lab('r'); lp = e.lab('r'); ok = e.lab('r')
    RL = P+20; RD = P+16
    e(f's_cmp_ge_u32 {sU}, 80\ns_cbranch_scc1 {nored}\ns_add_u32 s34, {sRSL}, 4096\ns_mov_b32 s28, 0\nv_mov_b32 v7, {sPAR}')
    e.label(lp)
    toks = [e.vm(f'buffer_load_dwordx4 {vr(RL+4*j)}, v{vL16}, {WS}, {sRSL if j<4 else "s34"} offen offset:{(j%4)*1024} sc1') for j in range(8)]
    for j in range(8):
        e.wvm(toks[j])
        e(f'{MF} {vr(RD)}, {vr(SEL)}, {vr(RL+4*j)}, {vr(RD) if j else 0}')
        tt = sum((((a ^ c) | (b ^ c)) & 1) << (a*4+b*2+c) for a in (0,1) for b in (0,1) for c in (0,1))
        if j == 0: e(f'v_bitop3_b32 v6, v{RL}, v{RL+2}, v7 bitop3:{tt:#x}')
        else: e(f'v_bitop3_b32 v{P+12}, v{RL+4*j}, v{RL+4*j+2}, v7 bitop3:{tt:#x}\nv_or_b32 v6, v6, v{P+12}')
    e(f'v_and_b32 v6, 1, v6\nv_cmp_ne_u32 vcc, 0, v6\ns_cbranch_vccz {ok}')
    spin_tail(e, cfg, lp, 5)
    e.label(ok)
    e(f"""s_cmp_le_u32 {sT}, {D}
    s_cselect_b32 s{mOV}, 0xff00ff00, 0
    s_mov_b32 s{mOV+1}, 0
    v_cvt_pk_bf16_f32 v{RD}, v{RD}, v{RD+1}
    v_cvt_pk_bf16_f32 v{RD+1}, v{RD+2}, v{RD+3}
    v_min_u32 v{RD}, -2, v{RD}
    v_min_u32 v{RD+1}, -2, v{RD+1}
    v_cndmask_b32 v{RD}, v{RD}, v4, s[{mOV}:{mOV+1}]
    v_cndmask_b32 v{RD+1}, v{RD+1}, v5, s[{mOV}:{mOV+1}]
    v_mov_b32 v{RD+2}, -1
    v_mov_b32 v{RD+3}, -1
    s_lshl_b32 s33, {sU}, 8
    s_add_u32 s34, s33, {sAGR}
    s_add_u32 s33, s33, {sAGW}
    s_mov_b32 exec_hi, 0""")
    hstore(e, cfg, f'buffer_store_dwordx2 {vr(RD,2)}, v{vAG}, {WS}, s33 offen')
    hstore(e, cfg, f'buffer_store_dwordx2 {vr(RD+2,2)}, v{vAG}, {WS}, s34 offen')
    e('s_mov_b64 exec, -1')
    e.label(nored)
    prof(e, cfg, 7, sPF)
    st = mk_stream(); st.prime()
    e(f"""s_mov_b32 {sAGR}, {sAGW}
    s_add_u32 {sAGW}, {sAGW}, 20480
    s_cmp_eq_u32 {sAGW}, {OFF_AG+3*20480}
    s_cselect_b32 {sAGW}, {OFF_AG}, {sAGW}
    s_xor_b32 {sPAR}, {sPAR}, 1
    s_add_u32 {sKM}, {sKM}, 131072
    s_add_u32 {sPF}, {sPF}, 64""")
    e.vm0()
    e('s_barrier\ns_branch L_Rstep')
    e.label('L_Rlast')
    e(f's_waitcnt vmcnt(0)\ns_barrier\nv_mov_b32 v6, {NSTEP}\nbuffer_store_dword v6, off, {WS}, {sFR} sc1\ns_endpgm')
    e.unknown()

tLANE, tL16, tXA0, tXB0, tXA, tXB, tL4, tPOLL = 1, 2, 3, 4, 5, 6, 8, 9
def tok_setup(e):
    e(f"""v_and_b32 v{tLANE}, 63, v0
    v_lshlrev_b32 v{tL16}, 4, v{tLANE}
    v_lshlrev_b32 v{tL4}, 2, v{tLANE}
    v_bfe_u32 v10, v{tLANE}, 1, 3
    v_lshrrev_b32 v11, 4, v{tLANE}
    v_xor_b32 v10, v10, v11
    v_lshlrev_b32 v{tXA0}, 4, v10
    v_and_b32 v10, 7, v{tLANE}
    v_lshl_add_u32 v{tXA0}, v10, 7, v{tXA0}
    v_bfe_u32 v10, v{tLANE}, 3, 1
    v_mul_u32_u24 v10, 10240, v10
    v_add_u32 v{tXA0}, v{tXA0}, v10
    v_xor_b32 v{tXB0}, 64, v{tXA0}""")
def dma_item(e, sItem, sLds):
    e(f's_mul_i32 s33, {sW}, 10240\ns_add_u32 s34, s33, {sItem}\ns_add_u32 s33, s33, {sLds}')
    for j in range(10):
        if j % 4 == 0:
            if j: e('s_add_u32 s33, s33, 4096\ns_add_u32 s34, s34, 4096')
            e('s_mov_b32 m0, s33')
        t = e.vm(f'buffer_load_dwordx4 v{tL16}, {WS}, s34 offen offset:{(j%4)*1024} sc1 lds')
    return t
def xfrag(e, u, b):
    return lambda r: e.ds(f'ds_read_b128 {vr(r)}, v{tXB if b & 1 else tXA} offset:{u*20480+(b>>1)*1024}')
def poll_flags(e, cfg, sBase, sNeed, code, half=None, voff=tL4, mask='vcc_lo'):
    lp = e.lab('p'); ok = e.lab('p')
    e('s_mov_b32 s28, 0'); e.label(lp)
    e(f'buffer_load_dword v{tPOLL}, v{voff}, {WS}, {sBase} offen sc1\ns_waitcnt vmcnt(0)\nv_cmp_gt_u32 vcc, {sNeed}, v{tPOLL}')
    if mask == 'vcc': e(f's_cbranch_vccz {ok}')
    else: e(f's_cmp_eq_u32 {mask}, 0\ns_cbranch_scc1 {ok}')
    if cfg.PSLEEP: e(f's_sleep {cfg.PSLEEP}')
    spin_tail(e, cfg, lp, code)
    e.label(ok); e.unknown_vm()
def wave_sum(e, v, t):
    for r in (8, 4, 2, 1): e(f'v_add_f32 v{v}, v{v}, v{v} row_ror:{r} row_mask:0xf bank_mask:0xf')
    xlane(e, 'v_add_f32', v, t)

class Red: pass
def red_setup(e, R, base, nprod):
    R.la, R.lb, R.ga, R.gb, R.lw, R.p0, R.p1, R.res, R.res2, R.xn = range(base, base+10)
    R.sel, R.sel2 = base+12, base+16
    L = tLANE
    e(f"""s_mul_i32 s33, {sW}, {32*336}
    s_add_u32 s33, s33, {R.L_T}
    v_lshrrev_b32 v10, 3, v{L}
    v_and_b32 v11, 7, v{L}
    v_mul_u32_u24 v{R.la}, 336, v10
    v_lshl_add_u32 v{R.la}, v11, 4, v{R.la}
    v_add_u32 v{R.la}, s33, v{R.la}
    v_mul_u32_u24 v{R.ga}, 40960, v10
    v_lshl_add_u32 v{R.ga}, v11, 4, v{R.ga}
    v_lshrrev_b32 v10, 2, v{L}
    v_and_b32 v11, 3, v{L}
    v_mul_u32_u24 v{R.lb}, 336, v10
    v_lshl_add_u32 v{R.lb}, v11, 4, v{R.lb}
    v_add_u32 v{R.lb}, s33, v{R.lb}
    v_mul_u32_u24 v{R.gb}, 40960, v10
    v_lshl_add_u32 v{R.gb}, v11, 4, v{R.gb}
    v_lshrrev_b32 v10, 4, v{L}
    v_and_b32 v11, 15, v{L}
    v_mul_u32_u24 v{R.lw}, 336, v11
    v_lshl_add_u32 v{R.lw}, v10, 4, v{R.lw}
    v_add_u32 v{R.lw}, s33, v{R.lw}
    v_mul_u32_u24 v{R.p0}, 1280, v10
    v_lshl_add_u32 v{R.p0}, v11, 4, v{R.p0}
    v_mov_b32 v{R.p1}, v{R.p0}
    v_mov_b32 v12, 0x40000000
    s_lshl_b32 s33, {sW}, 3
    v_add_u32 v13, s33, v10
    v_cmp_gt_u32 vcc, {nprod}, v13
    v_cndmask_b32 v{R.p0}, v12, v{R.p0}, vcc
    v_add_u32 v13, 4, v13
    v_cmp_gt_u32 vcc, {nprod}, v13
    v_cndmask_b32 v{R.p1}, v12, v{R.p1}, vcc
    v_lshrrev_b32 v13, 5, v{L}
    v_and_b32 v10, 1, v10
    v_lshlrev_b32 v{R.res}, 8, v13
    v_lshl_add_u32 v{R.res}, v11, 4, v{R.res}
    v_lshl_add_u32 v{R.res}, v10, 3, v{R.res}
    v_cmp_gt_u32 vcc, 32, v{L}
    v_cndmask_b32 v{R.res2}, v12, v{R.res}, vcc
    v_lshlrev_b32 v{R.xn}, 1, v13
    v_bfe_u32 v13, v{L}, 3, 1
    v_add_u32 v{R.xn}, v{R.xn}, v13
    v_lshlrev_b32 v{R.xn}, 10, v{R.xn}
    v_lshl_add_u32 v{R.xn}, v10, 3, v{R.xn}
    s_bfe_u32 s33, {sH}, 0x30001
    v_and_b32 v13, 7, v{L}
    v_xor_b32 v13, s33, v13
    v_lshl_add_u32 v{R.xn}, v13, 4, v{R.xn}
    s_lshr_b32 {R.sXR}, {sH}, 3
    s_mul_i32 {R.sXR}, {R.sXR}, 10240
    s_and_b32 s33, {sH}, 7
    s_lshl_b32 s33, s33, 7
    s_add_u32 {R.sXR}, {R.sXR}, s33""")
    sel_masks(e, 84); mk_sel(e, R.sel, tL16, 10, 84)
    sel_masks(e, 84, hi=True); mk_sel(e, R.sel2, tL16, 10, 84)

def res_load(e, R, srd_, sOff, d):
    for T in range(3):
        t = e.vm(f'buffer_load_dwordx2 {vr(d+2*T,2)}, v{R.res2 if T==2 else R.res}, {srd_}, {sOff} offen offset:{T*512} sc1')
    return t

def finish_row(e, R, Y, RES, TMP, has_y, xstore, sXNitem):
    X = Y
    for p in range(6):
        if has_y:
            e(f'v_lshlrev_b32 v{TMP}, 16, v{RES+p}\nv_and_b32 v{TMP+1}, 0xffff0000, v{RES+p}\nv_add_f32 v{X+2*p}, v{X+2*p}, v{TMP}\nv_add_f32 v{X+2*p+1}, v{X+2*p+1}, v{TMP+1}')
            e(f'v_cvt_pk_bf16_f32 v{RES+p}, v{X+2*p}, v{X+2*p+1}')
    if xstore:
        for T in range(3):
            e.vm(f'buffer_store_dwordx2 {vr(RES+2*T,2)}, v{R.res2 if T==2 else R.res}, {xstore[0]}, {xstore[1]} offen offset:{T*512} {xstore[2]}')
    if sXNitem is None: return
    for p in range(6): e(f'v_lshlrev_b32 v{X+2*p}, 16, v{RES+p}\nv_and_b32 v{X+2*p+1}, 0xffff0000, v{RES+p}')
    S, T1 = TMP, TMP+1
    e(f'v_add_f32 v{S}, v{X}, v{X+1}\nv_add_f32 v{T1}, v{X+2}, v{X+3}')
    for r in range(4, 12, 2): e(f'v_add_f32 v{S}, v{S}, v{X+r}\nv_add_f32 v{T1}, v{T1}, v{X+r+1}')
    e(f'v_add_f32 v{S}, v{S}, v{T1}')
    wave_sum(e, S, T1)
    e(f'v_mul_f32 v{S}, {f2u(1/640):#x}, v{S}')
    for r in range(12): e(f'v_sub_f32 v{X+r}, v{X+r}, v{S}')
    e('s_mov_b32 s34, -1\ns_mov_b32 s35, 0')
    for r in range(8, 12): e(f'v_cndmask_b32 v{X+r}, 0, v{X+r}, s[34:35]')
    e(f'v_mul_f32 v{S}, v{X}, v{X}\nv_mul_f32 v{T1}, v{X+1}, v{X+1}')
    for r in range(2, 12, 2): e(f'v_fmac_f32 v{S}, v{X+r}, v{X+r}\nv_fmac_f32 v{T1}, v{X+r+1}, v{X+r+1}')
    e(f'v_add_f32 v{S}, v{S}, v{T1}')
    wave_sum(e, S, T1)
    e(f'v_mov_b32 v{T1}, {f2u(1e-5):#x}\nv_fmac_f32 v{T1}, {f2u(1/640):#x}, v{S}\nv_rsq_f32 v{S}, v{T1}')
    for r in range(12): e(f'v_mul_f32 v{X+r}, v{X+r}, v{S}')
    for p in range(6): e(f'v_cvt_pk_bf16_f32 v{X+p}, v{X+2*p}, v{X+2*p+1}')
    e(f's_add_u32 s33, {sXNitem}, {R.sXR}')
    for T in range(3):
        if T: e('s_add_u32 s33, s33, 4096')
        if T == 2: e('s_mov_b32 exec_hi, 0')
        e.vm(f'buffer_store_dwordx2 {vr(X+2*T,2)}, v{R.xn}, {WS}, s33 offen sc1')
    e('s_mov_b64 exec, -1')

def out_proj(e, cfg, R, wfr, NK, OB, ACC, PK, sRS):
    def flush(c, u):
        a = ACC + 16*(c % 2) + 8*u; k = PK + 4*u
        for r in range(4): e(f'v_cvt_pk_bf16_f32 v{k+r}, v{a+r}, v{a+4+r}')
        e.ds(f'ds_write_b128 v{R.lw}, {vr(k)} offset:{u*16*336+c*64}')
    for c in range(5):
        for kk in range(NK):
            for t in range(2):
                for u in range(2):
                    a = vr(ACC + 16*(c % 2) + 8*u + 4*t)
                    e(f'{MF} {a}, {wfr(c,kk,t)}, {vr(OB(u,kk))}, {a if kk else 0}')
            if c and kk < 2: flush(c-1, kk)
    flush(4, 0); flush(4, 1)
    e.ds0()
    T = ACC
    toks = []
    for j in range(8): toks.append(e.ds(f'ds_read_b128 {vr(T+4*j)}, v{R.la} offset:{(j>>1)*8*336+(j&1)*128}'))
    for j in range(2): toks.append(e.ds(f'ds_read_b128 {vr(T+32+4*j)}, v{R.lb} offset:{j*16*336+256}'))
    e(f's_mul_i32 s33, {sH}, 1280\ns_mul_i32 s34, {sW}, 320\ns_add_u32 s33, s33, s34\ns_add_u32 s35, s33, {sRS}')
    fast = e.lab('o'); done = e.lab('o')
    e.ds0()
    e(f's_cmp_eq_u32 {sMODE}, 1\ns_cbranch_scc1 {fast}')
    for fl in (' sc1', ''):
        for j in range(10):
            if j < 8: txt = f's_add_u32 s33, s35, {(j>>1)*8*40960}\nbuffer_store_dwordx4 {vr(T+4*j)}, v{R.ga}, {WS}, s33 offen offset:{(j&1)*128}{fl}'
            else: txt = f's_add_u32 s33, s35, {(j-8)*16*40960}\nbuffer_store_dwordx4 {vr(T+4*j)}, v{R.gb}, {WS}, s33 offen offset:256{fl}'
            (e if fl else e.vm)(txt)
        if fl: e(f's_branch {done}'); e.label(fast)
    e.label(done)

def part_flag(e, cfg, R, sCnt):
    e.vm0()
    e(f'v_mov_b32 v10, {sCnt}')
    hstore(e, cfg, f'buffer_store_dword v10, off, {WS}, {R.sFPme}')

def reduce_row(e, cfg, R, sRS, sCnt, nprod, LD, Y, code):
    lp = e.lab('p'); ok = e.lab('p')
    e(f's_mov_b32 s28, 0\nv_min_u32 v10, {nprod*2-1}, v{tLANE}\nv_lshlrev_b32 v10, 3, v10'); e.label(lp)
    e(f'buffer_load_dwordx2 v[12:13], v10, {WS}, {R.sFP} offen sc1\ns_waitcnt vmcnt(0)\nv_min_u32 v12, v12, v13\nv_cmp_gt_u32 vcc, {sCnt}, v12\ns_cbranch_vccz {ok}')
    spin_tail(e, cfg, lp, code)
    e.label(ok); e.unknown_vm()
    e(f's_mul_i32 s33, {sH}, 40960\ns_mul_i32 s34, {sW}, {8*1280}\ns_add_u32 s33, s33, s34\ns_add_u32 s33, s33, {sRS}\ns_add_u32 s34, s33, {4*1280}')
    toks = {}
    for jj in range(2):
        for j in range(5):
            toks[jj,j] = e.vm(f'buffer_load_dwordx4 {vr(LD+20*jj+4*j)}, v{R.p1 if jj else R.p0}, {WS}, {"s34" if jj else "s33"} offen offset:{j*256} sc1')
    for jj in range(2):
        for j in range(5):
            e.wvm(toks[jj,j]); a = vr(Y+4*(j>>1))
            first = (jj == 0 and j % 2 == 0)
            e(f'{MF} {a}, {vr(R.sel2 if j & 1 else R.sel)}, {vr(LD+20*jj+4*j)}, {0 if first else a}')
    e(f's_mul_i32 s33, {sW}, 3072\nv_add_u32 v10, s33, v{tL16}')
    for T in range(3): e.ds(f'ds_write_b128 v10, {vr(Y+4*T)} offset:{R.L_Y+T*1024}')
    e.ds0(); e('s_barrier')

def reduce_gather(e, R, LD, Y):
    toks = [e.ds(f'ds_read_b128 {vr(LD+4*q)}, v{tL16} offset:{R.L_Y+3072+q*1024}') for q in range(9)]
    for q in range(9):
        e.wds(toks[q])
        for r in range(4): e(f'v_add_f32 v{Y+4*(q%3)+r}, v{Y+4*(q%3)+r}, v{LD+4*q+r}')

def role_KV(e, cfg, isV):
    A = cfg.A
    nm = 'V' if isV else 'K'
    WV = 96; XB = [16+4*i for i in range(8)]; ACC = 48; PK = 64
    sN, sL, sS, sL2, sS2, sBUF, sPRE, sFA, sFV, sOUT = 's62','s63','s64','s65','s66','s67','s68','s69','s70','s71'
    e.label(f'L_role{nm}')
    tok_setup(e)
    e(f's_lshl_b32 s33, {sH}, 8\ns_lshl_b32 s34, {sW}, 6\ns_add_u32 s33, s33, s34')
    wload_voffs(e, 16, tLANE, 8192, 's33')
    srd(e, 12, P_WV if isV else P_WK)
    wload(e, [('s[12:15]', 16, b*32*8192, ('v', WV+8*b), ('v', WV+8*b+4)) for b in range(20)], 40, 24, NP=7)
    sync_start(e, cfg)
    def item(sn, sl, ss):
        a = e.lab('k'); b = e.lab('k')
        e(f"""s_mov_b32 {sl}, 0
        s_mov_b32 {ss}, {sn}
        s_cmp_lt_u32 {sn}, {A}
        s_cbranch_scc1 {b}
        s_mov_b32 {sl}, 1
        s_sub_u32 {ss}, {sn}, 64
        s_cmp_ge_u32 {sn}, {128-A}
        s_cbranch_scc1 {b}
        s_sub_u32 s33, {sn}, {A}
        s_lshr_b32 {ss}, s33, 1
        s_bitcmp1_b32 s33, 0
        s_cbranch_scc0 {b}
        s_mov_b32 {sl}, 0
        s_add_u32 {ss}, {ss}, {A}""")
        e.label(b)
    def xn_addr(sl, ss, d):
        e(f's_lshl_b32 {d}, {sl}, 6\ns_add_u32 {d}, {d}, {ss}\ns_mul_i32 {d}, {d}, {ITEM}\ns_add_u32 {d}, {d}, {OFF_XN}')
    def wait_xn(sl, ss, code):
        e(f's_add_u32 s30, {ss}, 1\ns_lshl_b32 s31, {sl}, 7\ns_add_u32 s31, s31, {F_XN}')
        poll_flags(e, cfg, 's31', 's30', code)
    e(f"""s_lshl_b32 s72, {sH}, 6
    s_lshl_b32 s33, {sW}, 4
    s_add_u32 s72, s72, s33
    s_add_u32 {sFA}, s72, {F_KV + (8 if isV else 0)}
    s_mov_b32 s73, {sFA}
    s_mov_b32 {sFV}, 0
    s_mov_b32 {sN}, 0
    s_mov_b32 {sL}, 0
    s_mov_b32 {sS}, 0
    s_mov_b32 {sBUF}, 0
    s_mov_b32 s74, {F_XN}""")
    wait_xn(sL, sS, 10)
    xn_addr(sL, sS, 's35'); dma_item(e, 's35', sBUF)
    e(f'buffer_load_dword v{tPOLL}, v{tL4}, {WS}, s74 offen sc1')
    e.vm0()
    top = f'L_{nm}top'; e.label(top)
    e(f's_waitcnt vmcnt(2)\ns_barrier\nv_add_u32 v{tXA}, {sBUF}, v{tXA0}\nv_add_u32 v{tXB}, {sBUF}, v{tXB0}')
    xs = Stream(e, XB, [xfrag(e, u, b) for b in range(20) for u in range(2)], 'ds'); xs.prime()
    nopre = e.lab('k')
    e(f's_add_u32 s32, {sN}, 1'); item('s32', sL2, sS2)
    e(f"""s_mov_b32 {sPRE}, 0
    s_xor_b32 {sBUF}, {sBUF}, {ITEM}
    s_cmp_ge_u32 s32, 128
    s_cbranch_scc1 {nopre}
    v_cmp_ge_u32 vcc, {sS2}, v{tPOLL}
    s_cmp_eq_u32 {sL2}, 0
    s_cselect_b32 s33, vcc_lo, vcc_hi
    s_cmp_lg_u32 s33, 0
    s_cbranch_scc1 {nopre}
    s_mov_b32 {sPRE}, 1""")
    xn_addr(sL2, sS2, 's35'); dma_item(e, 's35', sBUF)
    e.label(nopre)
    for b in range(20):
        for u in range(2):
            x = xs.get(2*b+u)
            for t in range(2):
                a = vr(ACC+8*u+4*t if not isV else ACC+8*t+4*u); w = vr(WV+8*b+4*t)
                e(f'{MF} {a}, {x if isV else w}, {w if isV else x}, {a if b else 0}')
            xs.issue()
        if b == 9:
            l1 = e.lab('k'); l2 = e.lab('k')
            e(f's_cmp_eq_u32 {sPRE}, 1\ns_cbranch_scc1 {l1}\ns_waitcnt vmcnt(0)'); e.label(l1)
            e(f's_waitcnt vmcnt(10)\nv_mov_b32 v10, {sFV}\nbuffer_store_dword v10, off, {WS}, s73 sc1\nbuffer_load_dword v{tPOLL}, v{tL4}, {WS}, s74 offen sc1')
    e(f"""s_lshl_b32 {sOUT}, {sL}, 6
    s_add_u32 {sOUT}, {sOUT}, {sS}
    s_lshl_b32 {sOUT}, {sOUT}, 18
    s_lshl_b32 s33, s72, 7
    s_add_u32 {sOUT}, {sOUT}, s33
    s_add_u32 {sOUT}, {sOUT}, {OFF_VF if isV else OFF_KF}
    s_lshl_b32 s73, {sL}, 2
    s_add_u32 s73, s73, {sFA}
    s_add_u32 {sFV}, {sS}, 1""")
    for f in range(2):
        for r in range(4): e(f'v_cvt_pk_bf16_f32 v{PK+4*f+r}, v{ACC+8*f+r}, v{ACC+8*f+4+r}')
        e(f'buffer_store_dwordx4 {vr(PK+4*f)}, v{tL16}, {WS}, {sOUT} offen offset:{f*1024} sc1')
    e(f's_add_u32 {sN}, {sN}, 1\ns_mov_b32 {sL}, {sL2}\ns_mov_b32 {sS}, {sS2}\ns_cmp_eq_u32 {sPRE}, 1\ns_cbranch_scc1 {top}')
    e(f's_waitcnt vmcnt(0)\nv_mov_b32 v10, {sFV}\nbuffer_store_dword v10, off, {WS}, s73 sc1')
    e(f's_cmp_ge_u32 {sN}, 128\ns_cbranch_scc1 L_end')
    wait_xn(sL, sS, 11)
    xn_addr(sL, sS, 's35'); dma_item(e, 's35', sBUF)
    e(f'buffer_load_dword v{tPOLL}, v{tL4}, {WS}, s74 offen sc1')
    e.vm0()
    e(f's_branch {top}')
    e.unknown()

def red_sregs(e, R):
    e(f"""s_lshl_b32 {R.sFP}, {sGRP}, 9
    s_add_u32 {R.sFP}, {R.sFP}, {F_P}
    s_lshl_b32 {R.sFPme}, {sH}, 4
    s_lshl_b32 s33, {sW}, 2
    s_add_u32 {R.sFPme}, {R.sFPme}, s33
    s_add_u32 {R.sFPme}, {R.sFPme}, {R.sFP}
    s_sub_u32 {R.sRS}, {sGRP}, 3
    s_mul_i32 {R.sRS}, {R.sRS}, {2*RSP_SLOT}
    s_add_u32 {R.sRS}, {R.sRS}, {OFF_RSP}
    s_add_u32 {R.sRS2}, {R.sRS}, {RSP_SLOT}""")
def swap_rs(e, R):
    e(f's_mov_b32 s33, {R.sRS}\ns_mov_b32 {R.sRS}, {R.sRS2}\ns_mov_b32 {R.sRS2}, s33')

def role_Q(e, cfg):
    D = cfg.D
    R = Red(); R.L_T = 81920; R.L_Y = 0
    L_S = 81920 + 4*32*336
    L_O = L_S + 24576
    assert L_O + 8192 <= 163840
    R.sXR, R.sFP, R.sFPme, R.sRS, R.sRS2 = 's75','s76','s77','s78','s79'
    sN, sL, sS, sT, sL2, sS2, sT2, sBUF, sCNT, sC, sIT, sPF = 's62','s63','s64','s65','s66','s67','s68','s69','s70','s71','s72','s73'
    def wq(b, t): return ('a', 8*b+4*t)
    def wo(c, kk, t):
        i = 8*c+2*kk+t
        return ('a', 160+4*i) if i < 24 else ('v', 192+4*(i-24))
    def nm(d): return ar(d[1]) if d[0] == 'a' else vr(d[1])
    e.label('L_roleQ')
    tok_setup(e)
    e(f's_lshl_b32 s33, {sH}, 8\ns_lshl_b32 s34, {sW}, 6\ns_add_u32 s33, s33, s34')
    wload_voffs(e, 16, tLANE, 8192, 's33')
    e(f's_mul_i32 s33, {sH}, {128*1280}\ns_mul_i32 s34, {sW}, 320\ns_add_u32 s33, s33, s34')
    wload_voffs(e, 32, tLANE, 1280, 's33')
    srd(e, 12, P_WQ); srd(e, 16, P_WO); srd(e, 20, P_X)
    jobs = [('s[12:15]', 16, b*32*8192, wq(b,0), wq(b,1)) for b in range(20)]
    jobs += [('s[16:19]', 32, kk*32*1280+c*64, wo(c,kk,0), wo(c,kk,1)) for c in range(5) for kk in range(4)]
    wload(e, jobs, 40, 24, NP=7)
    sync_start(e, cfg)
    red_setup(e, R, 16, 32)
    red_sregs(e, R)
    vSB, vQI, vKI = 36, 37, 38
    e(f"""v_add_u32 v{vSB}, {L_S}, v{tL16}
    s_and_b32 s33, {sW}, 1
    s_lshl_b32 s33, s33, 4
    v_and_b32 v{vQI}, 15, v{tLANE}
    v_add_u32 v{vQI}, s33, v{vQI}
    v_lshrrev_b32 v{vKI}, 4, v{tLANE}
    v_lshlrev_b32 v{vKI}, 2, v{vKI}
    v_sub_u32 v{vQI}, v{vQI}, v{vKI}
    s_mov_b32 {sC}, {f2u(CSC):#x}
    s_sub_u32 {sN}, {sGRP}, 3
    s_mov_b32 {sBUF}, 0
    s_mov_b32 {sCNT}, 0
    s_lshl_b32 {sPF}, {sGRP}, 5
    s_add_u32 {sPF}, {sPF}, {sH}
    s_lshl_b32 {sPF}, {sPF}, 2
    s_add_u32 {sPF}, {sPF}, {sW}
    s_lshl_b32 {sPF}, {sPF}, 13
    s_add_u32 {sPF}, {sPF}, {OFF_PROF}""")
    mC = 84
    for kt in range(2):
        for r in range(4):
            if cfg.PROF and mC+2*(4*kt+r) in (90,): pass
    mreg = [80, 82, 84, 86, 88, 92, 94, 96]
    for kt in range(2):
        for r in range(4): e(f'v_cmp_le_i32 s[{mreg[4*kt+r]}:{mreg[4*kt+r]+1}], {16*kt+r}, v{vQI}')
    def item(sn, sl, ss, st):
        b = e.lab('q')
        e(f"""s_mov_b32 {sl}, 0
        s_mov_b32 {ss}, {sn}
        s_mov_b32 {st}, {sn}
        s_cmp_lt_u32 {sn}, {D}
        s_cbranch_scc1 {b}
        s_mov_b32 {sl}, 1
        s_sub_u32 {ss}, {sn}, 64
        s_add_u32 {st}, {ss}, {D}
        s_cmp_ge_u32 {sn}, {128-D}
        s_cbranch_scc1 {b}
        s_sub_u32 s33, {sn}, {D}
        s_lshr_b32 {ss}, s33, 1
        s_add_u32 {st}, {ss}, {D}
        s_bitcmp1_b32 s33, 0
        s_cbranch_scc1 {b}
        s_mov_b32 {sl}, 0
        s_mov_b32 {ss}, {st}""")
        e.label(b)
    def fetch(sl, ss, code):
        e(f's_add_u32 s30, {ss}, 1\ns_lshl_b32 s31, {sl}, 7\ns_add_u32 s31, s31, {F_XN}')
        poll_flags(e, cfg, 's31', 's30', code)
        e(f's_lshl_b32 s35, {sl}, 6\ns_add_u32 s35, s35, {ss}\ns_mul_i32 s35, s35, {ITEM}\ns_add_u32 s35, s35, {OFF_XN}')
        dma_item(e, 's35', sBUF)
    item(sN, sL, sS, sT); fetch(sL, sS, 20)
    e.label('L_Qtop')
    prof(e, cfg, 0, sPF)
    XB = [40+4*i for i in range(8)]; ACC = 72; QF = 88
    e.vm0()
    e(f's_barrier\nv_add_u32 v{tXA}, {sBUF}, v{tXA0}\nv_add_u32 v{tXB}, {sBUF}, v{tXB0}')
    xs = Stream(e, XB, [xfrag(e, u, b) for b in range(20) for u in range(2)], 'ds'); xs.prime()
    for b in range(20):
        for u in range(2):
            x = xs.get(2*b+u)
            for t in range(2):
                a = vr(ACC+8*u+4*t)
                e(f'{MF} {a}, {nm(wq(b,t))}, {x}, {a if b else 0}')
            xs.issue()
    for u in range(2):
        for r in range(4): e(f'v_cvt_pk_bf16_f32 v{QF+4*u+r}, v{ACC+8*u+r}, v{ACC+8*u+4+r}')
    prof(e, cfg, 1, sPF)
    nonext = e.lab('q')
    e(f's_xor_b32 {sBUF}, {sBUF}, {ITEM}\ns_add_u32 s32, {sN}, 3'); item('s32', sL2, sS2, sT2)
    e(f's_cmp_ge_u32 s32, 128\ns_cbranch_scc1 {nonext}')
    fetch(sL2, sS2, 21)
    e.label(nonext)
    prof(e, cfg, 2, sPF)
    e(f's_add_u32 s30, {sT}, 1\ns_lshl_b32 s31, {sH}, 6\ns_add_u32 s31, s31, {F_R}\nv_mov_b32 v10, 0')
    poll_flags(e, cfg, 's31', 's30', 22, voff=10, mask='vcc')
    prof(e, cfg, 3, sPF)
    KX, KM, VX, VM, RES = 96, 104, 108, 124, 132
    e(f"""s_lshl_b32 {sIT}, {sL}, 6
    s_add_u32 {sIT}, {sIT}, {sS}
    s_lshl_b32 s33, {sIT}, 18
    s_lshl_b32 s34, {sH}, 13
    s_add_u32 s33, s33, s34
    s_lshl_b32 s34, {sW}, 11
    s_add_u32 s34, s34, s33
    s_add_u32 s34, s34, {OFF_KF}
    s_lshl_b32 s30, {sT}, 17
    s_lshl_b32 s31, {sH}, 12
    s_add_u32 s30, s30, s31
    s_lshl_b32 s31, {sW}, 10
    s_add_u32 s31, s31, s30
    s_add_u32 s31, s31, {OFF_KM}""")
    tkm = e.vm(f'buffer_load_dwordx4 {vr(KM)}, v{tL16}, {WS}, s31 offen sc1')
    tk = [e.vm(f'buffer_load_dwordx4 {vr(KX+4*t)}, v{tL16}, {WS}, s34 offen offset:{t*1024} sc1') for t in range(2)]
    e(f"""s_lshr_b32 s35, {sW}, 1
    s_lshl_b32 s34, s35, 12
    s_add_u32 s34, s34, s33
    s_add_u32 s34, s34, {OFF_VF}
    s_lshl_b32 s35, s35, 11
    s_add_u32 s35, s35, s30
    s_add_u32 s35, s35, {OFF_VM}""")
    tv = [e.vm(f'buffer_load_dwordx4 {vr(VX+4*t)}, v{tL16}, {WS}, s34 offen offset:{t*1024} sc1') for t in range(4)]
    tvm = [e.vm(f'buffer_load_dwordx4 {vr(VM+4*t)}, v{tL16}, {WS}, s35 offen offset:{t*1024} sc1') for t in range(2)]
    l1 = e.lab('q'); l2 = e.lab('q')
    e(f's_lshl_b32 s33, {sS}, 5\ns_add_u32 s33, s33, {sH}\ns_mul_i32 s33, s33, 1280\ns_cmp_eq_u32 {sL}, 0\ns_cbranch_scc1 {l1}\ns_add_u32 s33, s33, {OFF_X2}')
    n0 = e.vmn; res_load(e, R, WS, 's33', RES); e.vmn = n0
    e(f's_branch {l2}'); e.label(l1)
    res_load(e, R, 's[20:23]', 's33', RES); e.label(l2)
    S = 40
    e.wvm(tkm)
    for u in range(2): e(f'{MF} {vr(S+12*u+8)}, {vr(KM)}, {vr(QF+4*u)}, 0')
    for t in range(2):
        e.wvm(tk[t])
        for u in range(2): e(f'{MF} {vr(S+12*u+4*t)}, {vr(KX+4*t)}, {vr(QF+4*u)}, 0')
    e(f's_mul_i32 s33, {sW}, 3072\nv_add_u32 v10, s33, v{vSB}')
    for u in range(2):
        for t in range(3): e.ds(f'ds_write_b128 v10, {vr(S+12*u+4*t)} offset:{u*12288+t*1024}')
    e(f's_and_b32 s33, {sW}, 1\ns_mul_i32 s33, s33, 12288\nv_add_u32 v10, s33, v{vSB}')
    e.ds0(); e('s_barrier')
    toks = [e.ds(f'ds_read_b128 {vr(S+4*q)}, v10 offset:{q*1024}') for q in range(12)]
    e(f's_cmp_eq_u32 {sL}, 0\ns_cselect_b32 s34, -1, 0\ns_cselect_b32 s35, 0, -1\nv_mov_b32 v11, 0xf149f2ca')
    for q in range(3, 12):
        e.wds(toks[q])
        for r in range(4): e(f'v_add_f32 v{S+4*(q%3)+r}, v{S+4*(q%3)+r}, v{S+4*q+r}')
    for j in range(8): e(f'v_cndmask_b32 v{S+j}, v11, v{S+j}, s[{mreg[j]}:{mreg[j]+1}]')
    for r in range(4): e(f'v_cndmask_b32 v{S+8+r}, v11, v{S+8+r}, s[34:35]')
    MX, TT, SM = 52, 53, 54
    e(f'v_max3_f32 v{MX}, v{S}, v{S+1}, v{S+2}')
    for r in range(3, 11, 2): e(f'v_max3_f32 v{MX}, v{MX}, v{S+r}, v{S+r+1}')
    e(f'v_max_f32 v{MX}, v{MX}, v{S+11}')
    xlane(e, 'v_max_f32', MX, TT)
    e(f'v_mul_f32 v{MX}, {sC}, v{MX}')
    for r in range(12): e(f'v_fma_f32 v{S+r}, v{S+r}, {sC}, -v{MX}')
    for r in range(12): e(f'v_exp_f32 v{S+r}, v{S+r}')
    e(f'v_add_f32 v{SM}, v{S}, v{S+1}\nv_add_f32 v{TT}, v{S+2}, v{S+3}')
    for r in range(4, 12, 2): e(f'v_add_f32 v{SM}, v{SM}, v{S+r}\nv_add_f32 v{TT}, v{TT}, v{S+r+1}')
    e(f'v_add_f32 v{SM}, v{SM}, v{TT}')
    xlane(e, 'v_add_f32', SM, TT)
    e(f'v_rcp_f32 v{SM}, v{SM}')
    for r in range(12): e(f'v_mul_f32 v{S+r}, v{S+r}, v{SM}')
    PX, PM, O, OF = 56, 60, 64, 80
    for r in range(4): e(f'v_cvt_pk_bf16_f32 v{PX+r}, v{S+r}, v{S+4+r}')
    for r in range(2): e(f'v_cvt_pk_bf16_f32 v{PM+r}, v{S+8+2*r}, v{S+9+2*r}')
    e.wvm(tvm[1])
    for t in range(4): e(f'{MF} {vr(O+4*t)}, {vr(VX+4*t)}, {vr(PX)}, 0')
    for t in range(4): e(f'{MF16} {vr(O+4*t)}, {vr(VM+2*t,2)}, {vr(PM,2)}, {vr(O+4*t)}')
    e(f's_and_b32 s33, {sW}, 1\ns_lshl_b32 s33, s33, 12\ns_lshr_b32 s34, {sW}, 1\ns_lshl_b32 s34, s34, 11\ns_add_u32 s33, s33, s34\nv_add_u32 v10, s33, v{vSB}')
    for f in range(2):
        for r in range(4): e(f'v_cvt_pk_bf16_f32 v{OF+4*f+r}, v{O+8*f+r}, v{O+8*f+4+r}')
        e.ds(f'ds_write_b128 v10, {vr(OF+4*f)} offset:{24576+f*1024}')
    e.ds0(); e('s_barrier')
    OB = 40
    for q in range(8): e.ds(f'ds_read_b128 {vr(OB+4*q)}, v{vSB} offset:{24576+q*1024}')
    e.ds0()
    prof(e, cfg, 4, sPF)
    out_proj(e, cfg, R, lambda c,kk,t: nm(wo(c,kk,t)), 4, lambda u,kk: OB+16*u+4*kk, 140, 72, R.sRS)
    e(f's_add_u32 {sCNT}, {sCNT}, 1')
    part_flag(e, cfg, R, sCNT)
    prof(e, cfg, 5, sPF)
    R.L_Y = 0
    Y = 40; LD = 140
    e(f's_xor_b32 s32, {sBUF}, {ITEM}\nv_add_u32 v39, s32, v{tL16}')
    global tL16_save
    reduce_row_l(e, cfg, R, R.sRS, sCNT, 32, LD, Y, 23, 39)
    prof(e, cfg, 6, sPF)
    skip = e.lab('q')
    e(f's_cmp_lg_u32 {sW}, 0\ns_cbranch_scc1 {skip}')
    reduce_gather_l(e, R, LD, Y, 39)
    e(f's_lshl_b32 s30, {sIT}, 5\ns_add_u32 s30, s30, {sH}\ns_mul_i32 s30, s30, 1280\ns_add_u32 s30, s30, {OFF_X1}\ns_mul_i32 s31, {sIT}, {ITEM}\ns_add_u32 s31, s31, {OFF_XN1}')
    finish_row(e, R, Y, RES, 52, True, (WS, 's30', 'sc1'), 's31')
    e.vm0()
    e(f's_lshl_b32 s33, {sGRP}, 8\ns_lshl_b32 s34, {sH}, 2\ns_add_u32 s33, s33, s34\ns_add_u32 s33, s33, {F_XN1-3*256}\nv_mov_b32 v10, {sCNT}\nbuffer_store_dword v10, off, {WS}, s33 sc1')
    e.label(skip)
    prof(e, cfg, 7, sPF)
    swap_rs(e, R)
    e(f's_add_u32 {sPF}, {sPF}, 64\ns_add_u32 {sN}, {sN}, 3\ns_mov_b32 {sL}, {sL2}\ns_mov_b32 {sS}, {sS2}\ns_mov_b32 {sT}, {sT2}\ns_cmp_lt_u32 {sN}, 128\ns_cbranch_scc1 L_Qtop\ns_endpgm')
    e.unknown()

def reduce_row_l(e, cfg, R, sRS, sCnt, nprod, LD, Y, code, vY):
    global tL16
    save = tL16; tL16 = vY
    reduce_row(e, cfg, R, sRS, sCnt, nprod, LD, Y, code); tL16 = save
def reduce_gather_l(e, R, LD, Y, vY):
    global tL16
    save = tL16; tL16 = vY
    reduce_gather(e, R, LD, Y); tL16 = save

def role_F(e, cfg):
    D = cfg.D
    R = Red(); R.L_T = 65536; R.L_Y = 45056
    L_H = 40960
    R.sXR, R.sFP, R.sFPme, R.sRS, R.sRS2 = 's75','s76','s77','s78','s79'
    sS, sL, sCNT, sIT, sPF, sNL = 's62','s63','s64','s65','s66','s67'
    def w1(b, t): return ('a', 8*b+4*t)
    def w2(c, kk, t): return ('a', 160+4*(4*c+2*kk+t))
    def nm(d): return ar(d[1])
    e.label('L_roleF')
    tok_setup(e)
    sync_start(e, cfg)
    red_setup(e, R, 104, 27)
    red_sregs(e, R)
    srd(e, 12, P_W1); srd(e, 16, P_W2); srd(e, 20, P_X); srd(e, 96, P_OUT)
    e(f"""s_sub_u32 {sL}, {sGRP}, 6
    s_mov_b32 {sNL}, {f2u(-math.log2(math.e)):#x}
    s_lshl_b32 {sPF}, {sGRP}, 5
    s_add_u32 {sPF}, {sPF}, {sH}
    s_lshl_b32 {sPF}, {sPF}, 2
    s_add_u32 {sPF}, {sPF}, {sW}
    s_lshl_b32 {sPF}, {sPF}, 13
    s_add_u32 {sPF}, {sPF}, {OFF_PROF}""")
    noln = e.lab('f')
    e(f's_cmp_eq_u32 {sL}, 0\ns_cbranch_scc1 {noln}')
    e(f's_lshl_b32 s30, {sW}, 5\ns_add_u32 s30, s30, {sH}\ns_mul_i32 s30, s30, 1280')
    toks = []
    for k in range(16):
        toks.append(res_load(e, R, 's[20:23]', 's30', 128+6*k)); e(f's_add_u32 s30, s30, {4*32*1280}')
    e(f's_mul_i32 s31, {sW}, {ITEM}\ns_add_u32 s31, s31, {OFF_XN}\ns_lshl_b32 s32, {sH}, 2\ns_add_u32 s32, s32, {F_XN}')
    for k in range(16):
        if k < 2: e.wvm(toks[k])
        finish_row(e, R, 40, 128+6*k, 52, False, None, 's31')
        e(f's_add_u32 s31, s31, {4*ITEM}')
        if k in (0, 1, 3, 7, 11, 15):
            e.vm0()
            e(f's_barrier\nv_mov_b32 v10, {4*(k+1)}'); e.vm(f'buffer_store_dword v10, off, {WS}, s32 sc1')
    e.label(noln)
    now = e.lab('f')
    e(f's_cmp_ge_u32 {sH}, 27\ns_cbranch_scc1 {now}')
    e(f's_lshl_b32 s33, {sH}, 7\ns_lshr_b32 s34, {sW}, 1\ns_lshl_b32 s34, s34, 6\ns_add_u32 s33, s33, s34')
    wload_voffs(e, 16, tLANE, 3456, 's33')
    e(f's_mul_i32 s33, {sH}, {64*1280}\ns_mul_i32 s34, {sW}, 320\ns_add_u32 s33, s33, s34')
    wload_voffs(e, 32, tLANE, 1280, 's33')
    jobs = [('s[12:15]', 16, b*32*3456, w1(b,0), w1(b,1)) for b in range(20)]
    jobs += [('s[16:19]', 32, kk*32*1280+c*64, w2(c,kk,0), w2(c,kk,1)) for c in range(5) for kk in range(2)]
    e.vm0()
    wload(e, jobs, 40, 24, NP=7)
    e.label(now)
    e(f's_and_b32 s33, {sW}, 1\ns_mul_i32 s33, s33, 20480\nv_add_u32 v{tXA}, s33, v{tXA0}\nv_add_u32 v{tXB}, s33, v{tXB0}\ns_mov_b32 {sS}, 0\ns_mov_b32 {sCNT}, 0')
    e.label('L_Ftop')
    prof(e, cfg, 0, sPF)
    b = e.lab('f'); c1 = e.lab('f')
    e(f"""s_cmp_eq_u32 {sL}, 0
    s_cbranch_scc0 {c1}
    s_lshl_b32 s32, {sS}, 1
    s_sub_u32 s32, s32, {D}
    s_cmp_lt_u32 {sS}, {D}
    s_cselect_b32 s32, {sS}, s32
    s_branch {b}""")
    e.label(c1)
    e(f"""s_lshl_b32 s32, {sS}, 1
    s_add_u32 s32, s32, {D+1}
    s_add_u32 s33, {sS}, 64
    s_cmp_lt_u32 {sS}, {64-D}
    s_cselect_b32 s32, s32, s33""")
    e.label(b)
    e(f"""s_mul_hi_u32 s30, s32, 0x55555556
    s_mul_i32 s33, s30, 3
    s_sub_u32 s31, s32, s33
    s_lshl_b32 s31, s31, 8
    s_add_u32 s31, s31, {F_XN1}
    s_add_u32 s30, s30, 1
    s_lshl_b32 {sIT}, {sL}, 6
    s_add_u32 {sIT}, {sIT}, {sS}""")
    poll_flags(e, cfg, 's31', 's30', 30)
    prof(e, cfg, 1, sPF)
    RES = 96
    e(f's_lshl_b32 s30, {sIT}, 5\ns_add_u32 s30, s30, {sH}\ns_mul_i32 s30, s30, 1280\ns_add_u32 s30, s30, {OFF_X1}\ns_add_u32 {sCNT}, {sCNT}, 1')
    res_load(e, R, WS, 's30', RES)
    nocomp = e.lab('f')
    e(f's_cmp_ge_u32 {sH}, 27\ns_cbranch_scc1 {nocomp}')
    e(f's_mul_i32 s35, {sIT}, {ITEM}\ns_add_u32 s35, s35, {OFF_XN1}\ns_mov_b32 s32, 0')
    dma_item(e, 's35', 's32')
    e.vm0(); e('s_barrier')
    prof(e, cfg, 2, sPF)
    XB = [40+4*i for i in range(8)]; ACC = 72; HF = 80
    xs = Stream(e, XB, [xfrag(e, 0, b) for b in range(20)], 'ds'); xs.prime()
    for b in range(20):
        x = xs.get(b)
        for t in range(2):
            a = vr(ACC+4*t)
            e(f'{MF} {a}, {nm(w1(b,t))}, {x}, {a if b else 0}')
        xs.issue()
    for r in range(8): e(f'v_mul_f32 v{40+r}, {sNL}, v{ACC+r}')
    for r in range(8): e(f'v_exp_f32 v{40+r}, v{40+r}')
    for r in range(8): e(f'v_add_f32 v{40+r}, 1.0, v{40+r}')
    for r in range(8): e(f'v_rcp_f32 v{40+r}, v{40+r}')
    for r in range(8): e(f'v_mul_f32 v{ACC+r}, v{ACC+r}, v{40+r}')
    for r in range(4): e(f'v_cvt_pk_bf16_f32 v{HF+r}, v{ACC+r}, v{ACC+4+r}')
    e(f's_lshl_b32 s33, {sW}, 10\nv_add_u32 v10, s33, v{tL16}')
    e.ds(f'ds_write_b128 v10, {vr(HF)} offset:{L_H}')
    e.ds0(); e('s_barrier')
    OB = 40
    for q in range(4): e.ds(f'ds_read_b128 {vr(OB+4*q)}, v{tL16} offset:{L_H+q*1024}')
    e.ds0()
    prof(e, cfg, 3, sPF)
    out_proj(e, cfg, R, lambda c,kk,t: nm(w2(c,kk,t)), 2, lambda u,kk: OB+8*kk+4*u, 140, 72, R.sRS)
    e.label(nocomp)
    part_flag(e, cfg, R, sCNT)
    prof(e, cfg, 4, sPF)
    Y = 40; LD = 140
    reduce_row(e, cfg, R, R.sRS, sCNT, 32, LD, Y, 31)
    prof(e, cfg, 5, sPF)
    skip = e.lab('f'); last = e.lab('f')
    e(f's_cmp_lg_u32 {sW}, 0\ns_cbranch_scc1 {skip}')
    reduce_gather(e, R, LD, Y)
    e(f's_lshl_b32 s30, {sS}, 5\ns_add_u32 s30, s30, {sH}\ns_mul_i32 s30, s30, 1280\ns_cmp_eq_u32 {sL}, 1\ns_cbranch_scc1 {last}')
    e(f's_add_u32 s30, s30, {OFF_X2}\ns_mul_i32 s31, {sS}, {ITEM}\ns_add_u32 s31, s31, {OFF_XN+64*ITEM}')
    finish_row(e, R, Y, RES, 52, True, (WS, 's30', 'sc1'), 's31')
    e.vm0()
    e(f's_lshl_b32 s33, {sH}, 2\ns_add_u32 s33, s33, {F_XN+128}\nv_mov_b32 v10, {sCNT}\nbuffer_store_dword v10, off, {WS}, s33 sc1\ns_branch {skip}')
    e.label(last)
    finish_row(e, R, Y, RES, 52, True, ('s[96:99]', 's30', ''), None)
    e.label(skip)
    prof(e, cfg, 6, sPF)
    swap_rs(e, R)
    e(f's_barrier\ns_add_u32 {sPF}, {sPF}, 64\ns_add_u32 {sS}, {sS}, 1\ns_cmp_lt_u32 {sS}, 64\ns_cbranch_scc1 L_Ftop\ns_endpgm')
    e.unknown()

def build(**kw):
    cfg = C()
    cfg.D = 8; cfg.A = 24; cfg.NS = 24; cfg.NLQ = 10; cfg.NLO = 22; cfg.SSPAN = 76; cfg.KVF = 'sc1 nt'
    cfg.SPIN = 1 << 20; cfg.PROF = 0; cfg.FORCE_SLOW = 0; cfg.PSLEEP = 1
    for k, v in kw.items(): setattr(cfg, k, v)
    e = E()
    e(f"""s_cmp_ge_u32 s2, 256
    s_cbranch_scc1 L_end
    s_load_dwordx16 s[36:51], s[0:1], 0
    s_load_dwordx8 s[52:59], s[0:1], 64
    s_load_dwordx2 s[60:61], s[0:1], 96
    s_getreg_b32 s3, hwreg(HW_REG_XCC_ID, 0, 4)
    v_lshrrev_b32 v1, 6, v0
    s_waitcnt lgkmcnt(0)
    v_readfirstlane_b32 {sW}, v1""")
    srd(e, 4, P_WS); srd(e, 8, P_DBG)
    e(f"""s_lshr_b32 s30, s2, 4
    s_cmp_eq_u32 s30, 1
    s_cselect_b32 s30, -1, 0
    v_mov_b32 v4, s30
    v_mov_b32 v5, s30
    v_mov_b32 v6, s30
    v_mov_b32 v7, s30
    v_lshlrev_b32 v2, 4, v0
    s_lshl_b32 s31, s2, 12
    s_and_b32 s3, s3, 7
    s_lshl_b32 s33, s3, 2
    v_mov_b32 v1, 1
    v_mov_b32 v3, 0
    s_cmp_lg_u32 {sW}, 0
    s_cbranch_scc1 L_notick
    s_mov_b64 exec, 1
    buffer_atomic_add v1, off, {DBG}, s33 sc0
    s_mov_b64 exec, -1
L_notick:
    buffer_store_dwordx4 v[4:7], v2, {WS}, s31 offen sc1
    s_cmp_lg_u32 {sW}, 0
    s_cbranch_scc1 L_notick2
    s_waitcnt vmcnt(1)
    s_mov_b64 exec, 1
    ds_write_b32 v3, v1
    s_mov_b64 exec, -1
L_notick2:
    s_waitcnt vmcnt(0) lgkmcnt(0)
    s_barrier
    ds_read_b32 v1, v3
    s_cmp_lg_u32 {sW}, 0
    s_cbranch_scc1 L_notick3
    v_mov_b32 v2, 1
    s_mov_b64 exec, 1
    buffer_atomic_add v2, off, {DBG}, s33 offset:32
    s_mov_b64 exec, -1
L_notick3:
    s_waitcnt lgkmcnt(0)
    v_readfirstlane_b32 {sH}, v1
    s_barrier
    s_mov_b32 {sGRP}, s3
    s_mov_b32 {sMODE}, 0
    s_cmp_lt_u32 {sH}, 32
    s_cbranch_scc1 L_dispatch
L_fallback:
    s_mov_b32 {sMODE}, 2
    s_lshr_b32 {sGRP}, s2, 5
    s_and_b32 {sH}, s2, 31
    s_barrier
L_dispatch:
    s_cmp_eq_u32 {sGRP}, 0
    s_cbranch_scc1 L_roleR
    s_cmp_eq_u32 {sGRP}, 1
    s_cbranch_scc1 L_roleK
    s_cmp_eq_u32 {sGRP}, 2
    s_cbranch_scc1 L_roleV
    s_cmp_lt_u32 {sGRP}, 6
    s_cbranch_scc1 L_roleQ
    s_branch L_roleF
L_abort:
    s_lshl_b32 s30, {sGRP}, 16
    s_lshl_b32 s31, {sH}, 8
    s_or_b32 s29, s29, s30
    s_or_b32 s29, s29, s31
    v_mov_b32 v1, s29
    s_lshl_b32 s30, {sGRP}, 2
    buffer_store_dword v1, off, {DBG}, s30 offset:128
L_end:
    s_endpgm""")
    role_K = lambda: role_KV(e, cfg, False)
    role_KV(e, cfg, False); role_KV(e, cfg, True); role_F(e, cfg); role_R(e, cfg); role_Q(e, cfg)
    head = open('cdna_kernels/'+NAME[:-7]+'.s.ref').read().split('; Override')[0] if cfg.__dict__.get('HEAD', 1) else ''
    txt = head + f"""; @launch grid=(256,1,1) block=(256,1,1) lds=163840
.amdgcn_target "amdgcn-amd-amdhsa--gfx950"
.text
.globl {NAME}
.p2align 8
.type {NAME},@function
{NAME}:
""" + e.text() + f""".section .rodata,"a"
.p2align 6
.amdhsa_kernel {NAME}
  .amdhsa_next_free_vgpr 512
  .amdhsa_next_free_sgpr 102
  .amdhsa_accum_offset 256
  .amdhsa_group_segment_fixed_size 0
  .amdhsa_kernarg_size 104
  .amdhsa_user_sgpr_count 2
  .amdhsa_user_sgpr_kernarg_segment_ptr 1
  .amdhsa_system_sgpr_workgroup_id_x 1
.end_amdhsa_kernel
"""
    return txt

if __name__ == '__main__':
    kw = {}
    out = 'cdna_kernels/'+NAME[:-7]+'.s'
    for a in sys.argv[1:]:
        k, v = a.split('=', 1)
        if k == 'out': out = v
        else:
            try: kw[k] = int(v, 0)
            except ValueError: kw[k] = v
    t = build(**kw)
    open(out, 'w').write(t)
    print(out, len(t), 'bytes', t.count('\n'), 'lines')
```

```python
import re

TRANS = ('v_exp_f32','v_log_f32','v_rcp_f32','v_rsq_f32','v_sqrt_f32','v_sin_f32','v_cos_f32')
REG_RE = re.compile(r'^(-|\|)?(abs\()?([vas])(\d+|\[(\d+):(\d+)\])\)?\|?$')

def parse_reg(tok):
    t = tok.strip()
    if t in ('vcc','vcc_lo','vcc_hi'): return [('s','vcc')]
    if t in ('exec','exec_lo','exec_hi'): return [('s','exec')]
    if t == 'm0': return [('s','m0')]
    m = REG_RE.match(t)
    if not m: return []
    k = m.group(3)
    if m.group(5) is not None:
        return [(k,i) for i in range(int(m.group(5)), int(m.group(6))+1)]
    return [(k,int(m.group(4)))]

def split_ops(s):
    out=[]; cur=''; depth=0
    for ch in s:
        if ch in '[(': depth+=1
        if ch in '])': depth-=1
        if ch==',' and depth==0:
            out.append(cur.strip()); cur=''
        else: cur+=ch
    if cur.strip(): out.append(cur.strip())
    return out

class Ins:
    __slots__=('text','op','kind','w','r','ws','srcC','srcAB','passes','dpp','target','store_data','lds_dma','is_label')
    def __init__(self, text):
        self.text=text; self.is_label=text.endswith(':')
        self.op=''; self.kind='other'; self.w=set(); self.r=set(); self.ws=1
        self.srcC=set(); self.srcAB=set(); self.passes=0; self.dpp=False; self.target=None
        self.store_data=set(); self.lds_dma=False
        if self.is_label or text.startswith('.') or text.startswith(';'):
            self.ws=0; self.kind='meta'; return
        body=text.split(';')[0].strip()
        p=body.split(None,1); op=p[0]; self.op=op
        rest=p[1] if len(p)>1 else ''
        ops=split_ops(rest)
        mods=''
        if ops:
            q=ops[-1].split(None,1)
            if len(q)>1 and not ops[-1].startswith('hwreg'):
                ops[-1]=q[0]; mods=q[1]
        R=[parse_reg(o) for o in ops]
        if op=='s_nop':
            self.ws=int(ops[0],0)+1; self.kind='salu'; return
        if op.startswith('v_mfma') or op.startswith('v_smfmac'):
            self.kind='mfma'; self.passes=8 if '32x32' in op else 4
            self.w=set(R[0]); self.srcAB=set(R[1])|set(R[2]); self.srcC=set(R[3])
            if op.startswith('v_smfmac'):
                self.srcAB|=set(R[3]); self.srcC=set(R[0])
            self.r=self.srcAB|self.srcC
            return
        if op.startswith('v_'):
            self.kind='valu'
            self.dpp=('row_' in mods or 'quad_perm' in mods or op.endswith('_dpp'))
            if 'permlane' in op and 'swap' in op:
                self.w=set(R[0])|set(R[1]); self.r=set(self.w); return
            nd=1
            if op.startswith(('v_add_co','v_sub_co','v_addc_co','v_subb_co','v_mad_u64')): nd=2
            for x in R[:nd]: self.w|=set(x)
            for x in R[nd:]: self.r|=set(x)
            if op.startswith(('v_fmac','v_dot2c','v_writelane')) or self.dpp: self.r|=set(R[0])
            return
        if op.startswith(('buffer_','global_')):
            self.kind='vmem'
            if op in ('buffer_wbl2','buffer_inv'): return
            lds=(' lds' in ' '+mods)
            if lds:
                self.lds_dma=True
                for x in R: self.r|=set(x)
                self.r.add(('s','m0'))
            elif 'load' in op:
                self.w=set(R[0])
                for x in R[1:]: self.r|=set(x)
                if 'd16' in op: self.r|=set(R[0])
            else:
                for x in R: self.r|=set(x)
                if 'atomic' in op and 'sc0' in mods: self.w=set(R[0])
                if 'dwordx4' in op or 'dwordx3' in op: self.store_data=set(R[0])
            return
        if op.startswith('ds_'):
            self.kind='ds'
            if op.startswith(('ds_read','ds_bpermute','ds_swizzle','ds_permute')):
                self.w=set(R[0])
                for x in R[1:]: self.r|=set(x)
            else:
                for x in R: self.r|=set(x)
            return
        if op.startswith('s_'):
            self.kind='salu'
            if op.startswith(('s_branch','s_cbranch')):
                self.target=ops[0]; return
            if op.startswith(('s_cmp','s_bitcmp','s_waitcnt','s_barrier','s_endpgm','s_sleep','s_setprio')):
                for x in R: self.r|=set(x)
                return
            if R:
                self.w=set(R[0])
                for x in R[1:]: self.r|=set(x)
                if 'saveexec' in op: self.w.add(('s','exec'))
            return
        raise ValueError('unknown instruction: '+text)

def isv(S): return {x for x in S if x[0] in 'va'}
def iss(S): return {x for x in S if x[0]=='s'}

def need(p, c):
    n=0
    if p.kind=='valu':
        wv=isv(p.w); wsg=iss(p.w)
        if wv:
            if c.kind=='mfma' and wv & c.r: n=max(n,2)
            if c.kind=='valu':
                if 'permlane' in c.op and wv & c.r: n=max(n,2)
                if c.dpp and wv & c.r: n=max(n,2)
                if c.op.startswith(('v_readlane','v_readfirstlane')) and wv & c.r: n=max(n,1)
                if p.op.replace('_e32','') in TRANS and wv & c.r: n=max(n,1)
        if wsg:
            if c.kind=='vmem' and wsg & c.r: n=max(n,5)
            if c.kind=='valu' and wsg & c.r:
                n=max(n,4 if c.op.startswith(('v_readlane','v_writelane')) else 2)
            if c.kind=='salu' and wsg & c.r: n=max(n,1)
    if p.kind=='mfma':
        big=p.passes==8
        if c.kind=='mfma':
            if p.w & c.srcAB: n=max(n,12 if big else 8)
            if p.w & c.srcC and not (p.w==c.srcC and p.passes==c.passes): n=max(n,10 if big else 6)
            if p.w & c.w and not (p.w & c.srcC): n=max(n,10 if big else 6)
        elif c.kind in ('valu','vmem','ds'):
            if p.w & (c.r|c.w): n=max(n,12 if big else 8)
            if c.kind=='valu' and p.srcC & c.w: n=max(n,7 if big else 3)
    if p.kind=='vmem' and p.store_data:
        if p.store_data & c.w: n=max(n,2 if c.kind in('valu','mfma') else 1)
    if p.kind=='salu' and ('s','m0') in p.w and c.lds_dma: n=max(n,1)
    return n

WIN=14
def fix_hazards(lines):
    ins=[Ins(l) for l in lines]
    out=[]
    def deficit(prev, c):
        d=0; dist=0
        for p in reversed(prev):
            if dist>=WIN: break
            if p.kind!='meta':
                r=need(p,c)
                if r>dist: d=max(d,r-dist)
            dist+=p.ws
        return d
    for c in ins:
        if c.kind!='meta':
            d=deficit(out[-40:],c)
            if d>0:
                out.append(Ins(f's_nop {d-1}'))
        out.append(c)
    changed=True
    while changed:
        changed=False
        labels={x.text[:-1]:i for i,x in enumerate(out) if x.is_label}
        for i,b in enumerate(out):
            if b.target and b.target in labels:
                j=labels[b.target]
                prev=out[max(0,i-40):i+1]
                dist=0; k=j+1; worst=0
                seq=list(prev)
                while k<len(out) and dist<WIN:
                    c=out[k]
                    if c.kind!='meta':
                        d=deficit(seq,c)
                        if d>0: worst=d; break
                        if c.op in('s_branch','s_endpgm'): break
                    seq.append(c); dist+=c.ws; k+=1
                if worst:
                    out.insert(j+1, Ins(f's_nop {worst-1}')); changed=True; break
    return [x.text for x in out]

class E:
    def __init__(self):
        self.L=[]; self.nl=0
        self.vmn=0; self.vmdone=0
        self.lgn=0; self.lgdone=0
    def __call__(self, s):
        for l in s.split('\n'):
            l=l.split(';')[0].strip() if not l.strip().startswith('.') else l.strip()
            if l: self.L.append(l)
    def lab(self, p='L'):
        self.nl+=1; return f'{p}{self.nl}'
    def label(self, n): self.L.append(n+':')
    def vm(self, s):
        self(s); self.vmn+=1; return self.vmn
    def ds(self, s):
        self(s); self.lgn+=1; return self.lgn
    def wvm(self, tok=None):
        if tok is None: tok=self.vmn
        if tok<=self.vmdone: return
        n=self.vmn-tok
        assert n<=63, n
        self(f's_waitcnt vmcnt({n})'); self.vmdone=tok
    def wds(self, tok=None):
        if tok is None: tok=self.lgn
        if tok<=self.lgdone: return
        n=min(self.lgn-tok,15)
        self(f's_waitcnt lgkmcnt({n})'); self.lgdone=self.lgn-n
    def vm0(self):
        self('s_waitcnt vmcnt(0)'); self.vmdone=self.vmn
    def ds0(self):
        self('s_waitcnt lgkmcnt(0)'); self.lgdone=self.lgn
    def unknown(self):
        self.vmdone=self.vmn; self.lgdone=self.lgn
    def unknown_vm(self):
        self.vmdone=self.vmn
    def text(self):
        return '\n'.join(fix_hazards(self.L))+'\n'

def vr(i,n=4): return f'v[{i}:{i+n-1}]' if n>1 else f'v{i}'
def ar(i,n=4): return f'a[{i}:{i+n-1}]' if n>1 else f'a{i}'
```

```python
import sys, struct, math
sys.path.insert(0, 'gen')
from emit import *

NAME = 'interleave_layers__memory_aug_recurrent_mem_tr__dense_activation_silu__prompt_kernel'
MB = 1 << 20
class C: pass
def f2u(x): return struct.unpack('<I', struct.pack('<f', x))[0]

F_P3, F_R, F_PS, F_XN, F_XN1, F_ABORT, F_DUMMY = 0, 4096, 8192, 16384, 32768, 0xF000, 0xC000
OFF_AG, OFF_RSR = 0x10000, 0x20000
OFF_XN, OFF_XN1, OFF_X1, OFF_X2, OFF_WSR, OFF_RSP = 1*MB, 7*MB, 13*MB, 19*MB, 22*MB, 32*MB
OFF_KF, OFF_VF, OFF_QF, OFF_MM, OFF_PROF = 64*MB, 96*MB, 128*MB, 160*MB, 200*MB
ITEM = 40960
RSP_ROW = 16*1280
RSP_SLOT = 32*RSP_ROW
WS='s[4:7]'; DBG='s[8:11]'
P_X,P_MEM,P_WQ,P_WK,P_WV,P_WO,P_W1,P_W2,P_OUT,P_DBG,P_WS = 0,1,2,3,4,5,8,9,10,11,12
SZ = {P_X:2048*1280, P_MEM:8*1280, P_WQ:640*8192, P_WK:640*8192, P_WV:640*8192, P_WO:4096*1280,
      P_W1:640*3456, P_W2:1728*1280, P_OUT:2048*1280, P_DBG:256, P_WS:256*MB}
sH, sW, sMODE, sGRP = 's24','s25','s26','s27'
MF = 'v_mfma_f32_16x16x32_bf16'
MF16 = 'v_mfma_f32_16x16x16_bf16'
SMF = 'v_smfmac_f32_16x16x64_bf16'
CSC = (128 ** -0.5) * math.log2(math.e)
OOB = 0x40000000
NEG = 0xf149f2ca

def srd(e, base, p):
    e(f's_mov_b32 s{base}, s{36+2*p}\ns_mov_b32 s{base+1}, s{37+2*p}\ns_mov_b32 s{base+2}, {SZ[p]}\ns_mov_b32 s{base+3}, 0x20000')
def mask64(e, s, val):
    e(f's_mov_b32 s{s}, {val & 0xffffffff:#x}\ns_mov_b32 s{s+1}, {val >> 32:#x}')
def lanemask(fn): return sum(1 << l for l in range(64) if fn(l))
def sp(s): return f's[{s}:{s+1}]'

def spin_tail(e, cfg, loop, code, cnt='s28'):
    e(f's_add_u32 {cnt}, {cnt}, 1\ns_cmp_lt_u32 {cnt}, {cfg.SPIN}\ns_cbranch_scc1 {loop}\ns_mov_b32 s29, {code}\ns_branch L_abort')

def arrive(e):
    l = e.lab('ar')
    e(f's_barrier\ns_cmp_lg_u32 {sW}, 0\ns_cbranch_scc1 {l}\ns_or_b32 s33, s3, 0x80\nv_mov_b32 v7, s33\ns_mov_b64 exec, 1\nbuffer_store_byte v7, off, {DBG}, s2 sc1\ns_mov_b64 exec, -1')
    e.label(l)

STD = ((8, 16), list(range(8)))
class WL:
    PROF = 0
    def __init__(s, e, lane, lbase, piece, land, tmp, nsl=3):
        s.e=e; s.lane=lane; s.lbase=lbase; s.piece=piece; s.land=land; s.tmp=tmp; s.nsl=nsl
    def f(s, row): return (row & 15)*256 + (row >> 4)*s.piece
    def src(s, v, stride, sbase, gather):
        e = s.e; L = s.lane
        e(f'v_lshrrev_b32 v{v}, 4, v{L}\ns_lshl_b32 s30, {sW}, 4\nv_add_u32 v{v}, s30, v{v}\nv_mul_u32_u24 v{v}, {stride}, v{v}')
        if gather: e(f'v_bfe_u32 v{s.tmp}, v{L}, 2, 2\nv_mul_u32_u24 v{s.tmp}, 320, v{s.tmp}\nv_add_u32 v{v}, v{v}, v{s.tmp}\nv_and_b32 v{s.tmp}, 3, v{L}')
        else: e(f'v_and_b32 v{s.tmp}, 15, v{L}')
        e(f'v_lshl_add_u32 v{v}, v{s.tmp}, 4, v{v}\nv_add_u32 v{v}, {sbase}, v{v}')
        return (v, stride)
    def rows(s, v, mapping):
        e = s.e; L = s.lane; g, offs = mapping
        e(f"""v_bfe_u32 v{v}, v{L}, 4, 1
        v_mul_u32_u24 v{v}, {s.f(g[0])}, v{v}
        v_bfe_u32 v{v+1}, v{L}, 5, 1
        v_mul_u32_u24 v{v+1}, {s.f(g[1])}, v{v+1}
        v_add_u32 v{v}, v{v}, v{v+1}
        v_and_b32 v{v+1}, 15, v{L}
        v_lshl_add_u32 v{v}, v{v+1}, 2, v{v}
        s_lshl_b32 s30, {sW}, 6
        s_add_u32 s30, s30, {s.lbase}
        v_add_u32 v{v}, s30, v{v}
        v_add_u32 v{v+1}, {2*s.piece}, v{v}""")
        return (v, offs)
    def run(s, slabs, first=None):
        e = s.e
        e(f's_mov_b32 s31, 0x05040100\ns_mov_b32 s32, 0x07060302\ns_mul_i32 s34, {sW}, {s.piece}\ns_add_u32 s34, s34, {s.lbase}')
        tok = {}
        def issue(p):
            sr, (v, stride), so, _, _ = slabs[p]
            for j in range(4):
                e(f's_add_u32 m0, s34, {(p % s.nsl)*4096 + j*1024}\ns_mov_b32 s30, {so + 4*j*stride}')
                tok[p] = e.vm(f'buffer_load_dwordx4 v{v}, {sr}, s30 offen lds')
        for p in range(min(s.nsl-1, len(slabs))): issue(p)
        for p in range(len(slabs)):
            e.wvm(tok[p])
            if WL.PROF and p % (len(slabs)//5) == 0: e(f's_memrealtime s[{80+2*(p//(len(slabs)//5))}:{81+2*(p//(len(slabs)//5))}]')
            if p == 0 and first: first()
            else: e('s_barrier')
            if p + s.nsl - 1 < len(slabs): issue(p + s.nsl - 1)
            v, offs = slabs[p][3]
            rt = []
            for c in range(2):
                for jj in range(4):
                    o = [(s.f(offs[2*jj+x]) + (p % s.nsl)*4096)//256 for x in range(2)]
                    assert max(o) < 256
                    t = e.ds(f'ds_read2st64_b32 {vr(s.land+8*c+2*jj,2)}, v{v+c} offset0:{o[0]} offset1:{o[1]}')
                rt.append(t)
            for c in range(2):
                e.wds(rt[c]); b = s.land + 8*c
                for t in range(2):
                    d = slabs[p][4][c][t]
                    o = d[1] if d[0] == 'v' else s.tmp + 4*t
                    for jj in range(4): e(f'v_perm_b32 v{o+jj}, v{b+2*jj+1}, v{b+2*jj}, s{31+t}')
                for t in range(2):
                    d = slabs[p][4][c][t]; o = s.tmp + 4*t
                    if d[0] == 'a':
                        for jj in range(4): e(f'v_accvgpr_write_b32 a{d[1]+jj}, v{o+jj}')
                    elif d[0] == 'lds': e.ds(f'ds_write_b128 v{d[1]}, {vr(o)} offset:{d[2]}')
                    elif d[0] == 'ws':
                        e(f's_add_u32 s33, {d[2]}, {d[3]}')
                        e.vm(f'buffer_store_dwordx4 {vr(o)}, v{d[1]}, {WS}, s33 offen')
        e.vm0(); e.ds0(); e('s_barrier')

def sync_start(e, cfg, a=12):
    lp = e.lab('sy'); ok = e.lab('sy'); done = e.lab('sy')
    e(f's_mov_b32 s28, 0\nv_and_b32 v{a}, 63, v0\nv_lshlrev_b32 v{a}, 2, v{a}\ns_mov_b32 s30, 0x80808080')
    e.label(lp)
    e(f'buffer_load_dword v{a+1}, v{a}, {DBG}, 0 offen sc1\ns_waitcnt vmcnt(0)\nv_and_b32 v{a+2}, s30, v{a+1}\nv_cmp_ne_u32 vcc, s30, v{a+2}\ns_cbranch_vccz {ok}\ns_sleep 2')
    spin_tail(e, cfg, lp, 1)
    e.label(ok)
    e(f's_cmp_lg_u32 {sMODE}, 0\ns_cbranch_scc1 {done}\nv_mov_b32 v{a+3}, 0')
    for b in range(4): e(f'v_bfe_u32 v{a+2}, v{a+1}, {8*b}, 3\nv_lshlrev_b32 v{a+2}, v{a+2}, 1\nv_or_b32 v{a+3}, v{a+3}, v{a+2}')
    e(f'v_mov_b32 v{a+2}, v{a+3} quad_perm:[1,0,3,2] row_mask:0xf bank_mask:0xf\nv_or_b32 v{a+3}, v{a+3}, v{a+2}\nv_cmp_ne_u32 vcc, 0xff, v{a+3}')
    if cfg.FORCE: e('s_branch L_rank')
    e(f's_cbranch_vccnz L_rank\ns_mov_b32 {sMODE}, 1')
    e.label(done)
    if cfg.PROF:
        pf_base(e, 's32')
        e(f's_memrealtime s[30:31]\ns_add_u32 s32, s32, {127*64}\ns_waitcnt lgkmcnt(0)\nv_mov_b32 v{a}, s100\nv_mov_b32 v{a+1}, s30\nbuffer_store_dwordx2 {vr(a,2)}, off, {WS}, s32\ns_waitcnt vmcnt(0)')
        for i in range(5): e(f'v_mov_b32 v{a}, s{80+2*i}\nbuffer_store_dword v{a}, off, {WS}, s32 offset:{8+4*i}')
        e('s_waitcnt vmcnt(0)')
    e.unknown()

def two_modes(e, name, body):
    e(f's_cmp_eq_u32 {sMODE}, 1\ns_cbranch_scc0 L_{name}_slow')
    body('', name + 'f'); e.unknown()
    e.label(f'L_{name}_slow')
    body('sc1', name + 's'); e.unknown()

class Stream:
    def __init__(s, e, bufs, loads, n=4):
        s.e=e; s.bufs=bufs; s.loads=loads; s.next=0; s.tok={}; s.n=n
    def issue(s):
        if s.next < len(s.loads):
            k=s.next; s.tok[k]=s.loads[k](s.bufs[k % len(s.bufs)]); s.next+=1
    def prime(s, n=None):
        for _ in range(len(s.bufs) if n is None else n): s.issue()
    def get(s, k):
        t = s.tok[k]
        if t is not None: (s.e.wds if t[0]=='ds' else s.e.wvm)(t[1])
        return vr(s.bufs[k % len(s.bufs)], s.n)

def xlane(e, op, v, t):
    for sw in ('v_permlane32_swap_b32', 'v_permlane16_swap_b32'):
        e(f'v_mov_b32 v{t}, v{v}\n{sw} v{v}, v{t}\n{op} v{v}, v{v}, v{t}')
def mk_sel(e, d, lane16, t, smask):
    e(f'v_and_b32 v{t}, 16, v{lane16}\nv_mov_b32 v{d}, 0x3f80\nv_lshlrev_b32 v{t}, v{t}, v{d}')
    for jj in range(4): e(f'v_cndmask_b32 v{d+jj}, 0, v{t}, {sp(smask+2*jj)}')
def sel_masks(e, smask, fn):
    for jj in range(4): mask64(e, smask+2*jj, lanemask(lambda l: fn(l) == jj))

def dummy_addr(e, d):
    e(f's_lshl_b32 {d}, {sGRP}, 5\ns_add_u32 {d}, {d}, {sH}\ns_lshl_b32 {d}, {d}, 2\ns_add_u32 {d}, {d}, {sW}\ns_lshl_b32 {d}, {d}, 2\ns_add_u32 {d}, {d}, {F_DUMMY}')
def pf_base(e, s):
    e(f's_lshl_b32 {s}, {sGRP}, 5\ns_add_u32 {s}, {s}, {sH}\ns_lshl_b32 {s}, {s}, 2\ns_add_u32 {s}, {s}, {sW}\ns_lshl_b32 {s}, {s}, 13\ns_add_u32 {s}, {s}, {OFF_PROF}')
def prof(e, cfg, idx):
    if cfg.PROF: e(f's_memtime s[{36+2*idx}:{37+2*idx}]')
def prof_flush(e, cfg, n, sbase, va=6, vd=7):
    if not cfg.PROF: return
    e('s_memrealtime s[58:59]\ns_waitcnt lgkmcnt(0)'); e.lgdone = e.lgn
    for i in range(n): e(f'v_writelane_b32 v{vd}, s{36+2*i}, {i}')
    e(f'v_writelane_b32 v{vd}, s58, 15\nv_mbcnt_lo_u32_b32 v{va}, -1, 0\nv_lshlrev_b32 v{va}, 2, v{va}\ns_mov_b64 exec, 0xffff')
    e.vm(f'buffer_store_dword v{vd}, v{va}, {WS}, {sbase} offen')
    e(f's_mov_b64 exec, -1\ns_add_u32 {sbase}, {sbase}, 64')

def unpk(line):
    import re
    m = re.match(r'v_pk_(add|mul|fma)_f32 (.*)', line)
    if not m: return [line]
    body = m.group(2); hi = None
    if ' op_sel_hi:' in body:
        body, h = body.split(' op_sel_hi:'); hi = eval(h.split()[0])
    ops = [int(re.match(r'v\[(\d+):', o.strip()).group(1)) for o in body.split(',')]
    hi = hi or [1]*(len(ops)-1)
    return [f'v_{m.group(1)}_f32 ' + ', '.join(f'v{r + (k if (i == 0 or hi[i-1]) else 0)}' for i, r in enumerate(ops)) for k in (0, 1)]
class Rec:
    def __init__(s, scalar=True): s.ops = []; s.n = 0; s.scalar = scalar
    def __call__(s, t):
        for l in t.split('\n'):
            if l.strip():
                for x in (unpk(l.strip()) if s.scalar else [l.strip()]): s.ops.append(('i', x))
    def vm(s, t): s.n += 1; s.ops.append(('vm', t, s.n)); return s.n
    def ds(s, t): s.n += 1; s.ops.append(('ds', t, s.n)); return s.n
    def wds(s, k): s.ops.append(('wds', k))
    def wvm(s, k): s.ops.append(('wvm', k))
    def chunks(s, e, size=2):
        m = {}; s.tok = m
        def play(ops):
            def f():
                for o in ops:
                    if o[0] == 'i': e(o[1])
                    elif o[0] == 'vm': m[o[2]] = e.vm(o[1]); m['last'] = m[o[2]]
                    elif o[0] == 'ds': m[o[2]] = e.ds(o[1])
                    elif o[0] == 'wds': e.wds(m[o[1]])
                    else: e.wvm(m[o[1]])
            return f
        out = []; cur = []; atomic = False
        for o in s.ops:
            if o[0] == 'i' and o[1].startswith('s_mov_b32 exec_hi, 0'): atomic = True
            cur.append(o)
            if o[0] == 'i' and o[1].startswith('s_mov_b32 exec_hi, -1'): atomic = False
            dep = o[0] == 'i' and ('row_ror' in o[1] or 'permlane' in o[1] or o[1].startswith('v_mov_b32') or o[1].startswith('v_rsq'))
            if not atomic and (len(cur) >= size or dep or o[0] == 'vm'): out.append(play(cur)); cur = []
        if cur: out.append(play(cur))
        return out

def run(fill, i):
    for f in fill.pop(i, []): f()
def drain(fill):
    for i in sorted(fill):
        for f in fill[i]: f()
    fill.clear()
def at(fill, i, f): fill.setdefault(i, []).append(f)

def role_R(e, cfg):
    vL16, vIDX, vW, vSW, vSR, vPW, vPX, vPM, vRS, vAG = 0, 1, 2, 3, 4, 5, 8, 9, 10, 11
    SELT, KX, VX, P, WV = 12, 16, 24, 32, 96
    NB = 4
    XB = [P+8*i for i in range(NB)]; MBUF = [P+32, P+36]; ACC = P+48; VA = [P+40, P+44]
    L_MEM, L_S, L_P, L_O, L_W = 0, 10240, 0, 1024, 16384
    SROW = 176; SWV = 8*SROW; NLMAX = 18
    cls = ['r']*80
    for n in cfg.RS_S: cls[n] = 's'
    for n in cfg.RS_L: assert cls[n] == 'r'; cls[n] = 'l'
    loc = {}; nr=nl=ns=0; ext = []
    for n in range(80):
        if cls[n]=='r': loc[n] = ('a',8*nr) if nr < 32 else ('v', WV+8*(nr-32)); nr+=1
        elif cls[n]=='l': loc[n]=('l',nl); nl+=1; ext.append(n)
        else: loc[n]=('s',ns); ns+=1; ext.append(n)
    assert nr <= 52 and nl <= NLMAX, (nr, nl, ns)
    chain = [[] for _ in range(NB)]
    for k, n in enumerate(cfg.RS_S): chain[k % 3].append(n)
    for n in cfg.RS_L: chain[cfg.RS_LB.get(n, 3)].append(n)
    for c_ in chain: c_.sort()
    bufof = {n: j for j in range(NB) for n in chain[j]}

    NS = ns
    sT, sPAR, sAGR, sAGW, sAG0, sWSR, sRSS, sRSL, sU, sMM, sKV, sN, sFL, sFR, sPF, sAGL = ['s%d' % i for i in range(62, 78)]
    sC = 78; mLO, mM, mHI, mSEL = 80, 82, 92, 84
    e.label('L_roleR')
    e('v_and_b32 v1, 63, v0')
    wl = WL(e, 1, L_W, NLMAX*2048, 16, 32, cfg.RNSL)
    e(f's_lshl_b32 s33, {sH}, 8'); sq = wl.src(8, 8192, 's33', False)
    e(f's_mul_i32 s33, {sH}, {128*1280}'); so = wl.src(9, 1280, 's33', True)
    rq = wl.rows(10, ((2, 1), [0,4,16,20,8,12,24,28])); ro = wl.rows(12, ((4, 16), [0,1,8,9,2,3,10,11]))
    srd(e,12,P_WQ); srd(e,16,P_WK); srd(e,20,P_WV); srd(e,96,P_WO)
    e(f"""v_lshlrev_b32 v6, 4, v1
    s_mul_i32 s33, {sW}, {NLMAX*2048}
    s_add_u32 s33, s33, {L_W}
    v_add_u32 v{vW}, s33, v6
    s_lshl_b32 {sWSR}, {sGRP}, 5
    s_add_u32 {sWSR}, {sWSR}, {sH}
    s_lshl_b32 {sWSR}, {sWSR}, 2
    s_add_u32 {sWSR}, {sWSR}, {sW}
    s_mul_i32 {sWSR}, {sWSR}, {NS*2048}
    s_add_u32 {sWSR}, {sWSR}, {OFF_WSR}""")
    HOLD = 40
    def dst(n, c):
        k, i = loc[n]
        if k in 'av': return (k, i+4*c)
        if k == 'l': return ('lds', vW, i*2048+c*1024) if i >= 6 else ('v', HOLD+8*i+4*c)
        return ('ws', 6, sWSR, i*2048+c*1024)
    slabs = []
    for B in range(10):
        for x, sr in enumerate(('s[12:15]', 's[16:19]', 's[20:23]')):
            slabs.append((sr, sq, B*64*8192, rq, [(dst(6*B+2*x, c), dst(6*B+2*x+1, c)) for c in range(2)]))
    for k in range(2):
        for c5 in range(5): slabs.append(('s[96:99]', so, k*64*1280 + c5*64, ro, [(dst(60+4*c5+2*k, c), dst(61+4*c5+2*k, c)) for c in range(2)]))
    wl.run(slabs, first=lambda: arrive(e))
    for i in range(12): e.ds(f'ds_write_b128 v{vW}, {vr(HOLD+4*i)} offset:{i*1024}')
    e.ds0()
    sync_start(e, cfg)
    srd(e,12,P_MEM)
    e(f's_lshl_b32 {sAGL}, {sW}, 11\ns_add_u32 {sAGL}, {sAGL}, 2048')
    mask64(e, mLO, lanemask(lambda l: (l & 15) < 8))
    mask64(e, mHI, lanemask(lambda l: (l & 15) >= 8))
    mask64(e, mM, lanemask(lambda l: (l & 15) < 8 and l >= 32))
    e(f"""v_and_b32 v6, 63, v0
    v_lshlrev_b32 v{vL16}, 4, v6
    v_lshrrev_b32 v7, 4, v6
    v_and_b32 v32, 7, v6
    v_mov_b32 v33, 0x4444
    v_mov_b32 v34, 0xeeee
    v_cndmask_b32 v{vIDX}, v34, v33, {sp(mLO)}
    v_lshlrev_b32 v{vPX}, 7, v7
    v_lshl_add_u32 v{vPX}, v32, 4, v{vPX}
    v_and_b32 v33, 1, v7
    v_lshlrev_b32 v{vPM}, 6, v33
    v_lshl_add_u32 v{vPM}, v32, 3, v{vPM}
    s_mul_i32 s33, {sW}, {SWV}
    s_add_u32 s33, s33, {L_S}
    v_mul_u32_u24 v{vSW}, {SROW}, v32
    v_add_u32 v48, s33, v{vSW}
    v_lshl_add_u32 v{vSW}, v7, 4, v48
    s_lshl_b32 s33, {sW}, 1
    v_add_u32 v34, s33, v33
    v_and_b32 v35, 15, v6
    v_mul_u32_u24 v{vSR}, {SROW}, v34
    v_min_u32 v36, 10, v35
    v_lshl_add_u32 v{vSR}, v36, 4, v{vSR}
    v_add_u32 v{vSR}, {L_S}, v{vSR}
    v_and_b32 v36, 3, v6
    v_bfe_u32 v37, v6, 2, 1
    v_lshlrev_b32 v{vPW}, 7, v36
    v_lshl_add_u32 v{vPW}, v34, 4, v{vPW}
    v_lshl_add_u32 v{vPW}, v37, 3, v{vPW}
    v_lshlrev_b32 v38, 6, v36
    v_lshl_add_u32 v38, v34, 3, v38
    v_add_u32 v38, 512, v38
    v_cmp_gt_u32 vcc, 8, v35
    v_cndmask_b32 v{vPW}, v38, v{vPW}, vcc
    v_mov_b32 v38, 768
    v_cmp_gt_u32 vcc, 10, v35
    v_cndmask_b32 v{vPW}, v38, v{vPW}, vcc
    v_lshrrev_b32 v38, 5, v6
    v_lshlrev_b32 v{vRS}, 13, v38
    v_and_b32 v39, 31, v6
    v_lshl_add_u32 v{vRS}, v39, 3, v{vRS}
    v_lshlrev_b32 v{vAG}, 7, v33
    v_lshl_add_u32 v{vAG}, v38, 6, v{vAG}
    v_lshl_add_u32 v{vAG}, v36, 4, v{vAG}
    v_lshl_add_u32 v{vAG}, v37, 3, v{vAG}
    s_lshl_b32 {sU}, {sW}, 5
    s_add_u32 {sU}, {sU}, {sH}
    v_lshl_add_u32 v39, v38, 2, v36
    v_mul_u32_u24 v39, 1280, v39
    v_lshl_add_u32 v39, v33, 5, v39
    v_lshl_add_u32 v39, v37, 2, v39
    s_lshr_b32 s33, {sU}, 1
    s_lshl_b32 s33, s33, 6
    s_and_b32 s34, {sU}, 1
    s_lshl_b32 s34, s34, 1
    s_add_u32 s33, s33, s34
    buffer_load_ushort v40, v39, s[12:15], s33 offen
    buffer_load_ushort v41, v39, s[12:15], s33 offen offset:16
    buffer_load_ushort v42, v39, s[12:15], s33 offen offset:8
    buffer_load_ushort v43, v39, s[12:15], s33 offen offset:24
    s_mul_i32 s33, {sGRP}, {40*8192}
    s_add_u32 s33, s33, {OFF_RSR}
    s_mul_i32 {sRSS}, {sW}, {10*8192}
    s_lshl_b32 s34, {sH}, 8
    s_add_u32 {sRSS}, {sRSS}, s34
    s_add_u32 {sRSS}, {sRSS}, s33
    s_lshl_b32 {sRSL}, {sU}, 13
    s_add_u32 {sRSL}, {sRSL}, s33
    s_lshl_b32 {sKV}, {sGRP}, 24
    s_lshl_b32 s33, {sH}, 13
    s_add_u32 {sKV}, {sKV}, s33
    s_add_u32 {sMM}, {sKV}, {OFF_MM}
    s_lshl_b32 s33, {sW}, 11
    s_add_u32 {sKV}, {sKV}, s33
    s_add_u32 {sKV}, {sKV}, {OFF_KF}
    s_lshl_b32 {sFL}, {sH}, 7
    s_lshl_b32 s33, {sW}, 5
    s_add_u32 {sFL}, {sFL}, s33
    s_lshl_b32 s33, {sGRP}, 4
    s_add_u32 {sFL}, {sFL}, s33
    s_lshl_b32 {sFR}, {sGRP}, 5
    s_add_u32 {sFR}, {sFR}, {sH}
    s_lshl_b32 {sFR}, {sFR}, 6
    s_add_u32 {sFR}, {sFR}, {F_R}
    s_mov_b32 s{sC}, {f2u(CSC):#x}
    s_mov_b32 s{sC+1}, {f2u(CSC):#x}
    s_mov_b32 {sT}, 0
    s_mov_b32 {sPAR}, 1
    s_lshl_b32 {sAG0}, {sGRP}, 15
    s_add_u32 {sAG0}, {sAG0}, {OFF_AG}
    s_mov_b32 {sAGR}, {sAG0}
    s_add_u32 {sAGW}, {sAG0}, 10240
    s_mov_b32 {sN}, 0
    v_mov_b32 v44, {NEG:#x}
    v_mov_b32 v45, {NEG:#x}
    v_mov_b32 v46, {NEG:#x}
    v_mov_b32 v47, {NEG:#x}
    ds_write_b128 v48, v[44:47] offset:160
    s_waitcnt vmcnt(0) lgkmcnt(0)
    v_lshl_or_b32 v40, v42, 16, v40
    v_lshl_or_b32 v41, v43, 16, v41
    v_min_u32 v40, -2, v40
    v_min_u32 v41, -2, v41""")
    pf_base(e, sPF)
    sel_masks(e, mSEL, lambda l: (2*((l & 15) >> 3) + ((l & 3) >> 1)) if ((l >> 2) & 1) == ((l >> 4) & 1) else -1)
    mk_sel(e, SELT, vL16, 7, mSEL)
    sel_masks(e, mSEL, lambda l: (l & 15) >> 1)
    sk = e.lab('r')
    e(f's_cmp_ge_u32 {sU}, 40\ns_cbranch_scc1 {sk}\ns_lshl_b32 s33, {sU}, 8\ns_add_u32 s33, s33, {sAGR}\ns_mov_b64 exec, {sp(mLO)}\nbuffer_store_dwordx2 v[40:41], v{vAG}, {WS}, s33 offen sc1\ns_mov_b64 exec, -1')
    e.label(sk)

    def flags_read():
        e(f'v_min_u32 v6, v6, v7\nv_readfirstlane_b32 {sN}, v6')
    def kv_wait(need, code):
        if cfg.RFREE: return
        lp = e.lab('r'); ok = e.lab('r')
        e(f's_cmp_ge_u32 {sN}, {need}\ns_cbranch_scc1 {ok}\ns_mov_b32 s28, 0'); e.label(lp)
        e(f'buffer_load_dwordx2 v[6:7], off, {WS}, {sFL} sc1\ns_waitcnt vmcnt(0)')
        flags_read()
        e(f's_cmp_ge_u32 {sN}, {need}\ns_cbranch_scc1 {ok}')
        spin_tail(e, cfg, lp, code)
        e.label(ok)
    def kv_load(base, s):
        if cfg.NOKV: return
        for t in range(2): e.vm(f'buffer_load_dwordx4 {vr(base+4*t)}, v{vL16}, {WS}, {s} offen offset:{t*1024} {cfg.KVF}')
    xtok = {}
    def xload(n):
        k, i = loc[n]; r = XB[bufof[n]]
        if k == 'l':
            for c in range(2): t = e.ds(f'ds_read_b128 {vr(r+4*c)}, v{vW} offset:{i*2048+c*1024}')
            xtok[n] = ('ds', t); return
        xtok[n] = None
        if cfg.NOSTREAM: return
        e(f's_add_u32 s33, {sWSR}, {(i//2)*4096}')
        for c in range(2): t = e.vm(f'buffer_load_dwordx4 {vr(r+4*c)}, v{vL16}, {WS}, s33 offen offset:{(i%2)*2048+c*1024} sc1')
        xtok[n] = ('vm', t)
    e('s_mov_b32 s35, 1'); kv_wait('s35', 2)
    kv_load(KX, sKV); e(f's_add_u32 s33, {sKV}, {OFF_VF-OFF_KF}'); kv_load(VX, 's33')
    for j in range(3): xload(chain[j][0])
    e.vm0(); e.ds0(); e('s_barrier')

    def body(fl, nm):
        top = f'L_{nm}top'; last = f'L_{nm}last'
        def pp(n):
            if n in cfg.PP: prof(e, cfg, cfg.PP.index(n))
        e.label(top)
        pp('top')
        for j in range(3): xtok[chain[j][0]] = None
        lp = e.lab('r'); ok = e.lab('r')
        G = [XB[NB-1], XB[NB-1]+4, MBUF[0], MBUF[1]]
        e.label(lp)
        tg = [e.vm(f'buffer_load_dwordx4 {vr(G[j])}, v{vL16}, {WS}, {"s34" if j < 2 else sAGR} offen offset:{(j%2)*1024} sc1') for j in range(4)]
        for r in range(0, 24, 2): e(f'v_mov_b64 {vr(VA[0]+r,2)}, 0')
        e(f'v_add_u32 v7, {sAGL}, v{vL16}')
        for j in range(4):
            e.wvm(tg[j])
            if j < 2: tw = e.ds(f'ds_write_b128 v7, {vr(G[j])} offset:{L_MEM+j*1024}')
            g = G[j]
            if j == 0: e(f'v_max3_u32 v6, v{g}, v{g+1}, v{g+2}\nv_max_u32 v6, v6, v{g+3}')
            else: e(f'v_max3_u32 v6, v6, v{g}, v{g+1}\nv_max3_u32 v6, v6, v{g+2}, v{g+3}')
        e(f'v_cmp_eq_u32 vcc, -1, v6\ns_cbranch_vccnz {lp}r')
        xload(chain[3][0])
        pp('ag')
        def smf(acc, a, n):
            k, i = loc[n]
            if k in 'ls':
                t = xtok.pop(n)
                if t: (e.wds if t[0] == 'ds' else e.wvm)(t[1])
            w = ar(i, 8) if k == 'a' else vr(i, 8) if k == 'v' else vr(XB[bufof[n]], 8)
            e(f'{SMF} {vr(acc)}, {a}, {w}, v{vIDX}')
            if k in 'ls':
                ch = chain[bufof[n]]; p = ch.index(n)
                if p+1 < len(ch): xload(ch[p+1])
                elif bufof[n] < 3: xload(ch[0])
        A6 = [ACC, ACC+4, ACC+8, ACC+12, VA[0], VA[1]]
        mtok = {}
        def mread(i): mtok[i] = e.ds(f'ds_read_b128 {vr(MBUF[i % 2])}, v{vL16} offset:{L_MEM+i*1024}')
        for B in range(10):
            if B >= 2: e.wds(mtok[B])
            for t in range(6):
                smf(A6[t], vr(MBUF[B % 2]), 6*B+t)
                if B == 0 and t == 4: pp('q1'); e.wds(tw); e('s_barrier'); pp('q2')
            if B in (2, 4, 6, 8): pp('q%d' % (B//2+2))
            if B+2 < 10: mread(B+2)
        pp('qkv')
        Q0, Q1, K0, K1 = ACC, ACC+4, ACC+8, ACC+12
        VMF = MBUF[0]
        e(f's_lshl_b32 s32, {sW}, 9\ns_add_u32 s33, {sMM}, 4096\ns_add_u32 s33, s33, s32\ns_lshl_b32 s34, {sW}, 10\ns_add_u32 s34, s34, {sMM}')
        for (a, b) in ((Q0, K0), (Q1, K1)):
            e(f'v_cvt_pk_bf16_f32 v{a}, v{a}, v{a+1}\nv_cvt_pk_bf16_f32 v{a+1}, v{a+2}, v{a+3}\nv_cvt_pk_bf16_f32 v{a+2}, v{b}, v{b+1}\nv_cvt_pk_bf16_f32 v{a+3}, v{b+2}, v{b+3}')
            e(f'{MF} {vr(b)}, {vr(a)}, {vr(SELT)}, 0')
        for t in range(2):
            for r in range(2): e(f'v_cvt_pk_bf16_f32 v{VMF+2*t+r}, v{VA[t]+2*r}, v{VA[t]+2*r+1}')
        pp('a1')
        e.vm(f'buffer_store_dwordx4 {vr(VMF)}, v{vL16}, {WS}, s34 offen sc1')
        pp('a2')
        e(f's_add_u32 s35, {sT}, 2\ns_min_u32 s35, s35, 64')
        for r in range(4): e(f'v_cvt_pk_bf16_f32 v{Q0+r}, v{K0+r}, v{K1+r}')
        e(f's_cmp_lt_u32 {sT}, 63\ns_cselect_b32 s34, {1<<18}, 0')
        e(f'{MF} {vr(Q1)}, {vr(KX)}, {vr(Q0)}, 0\n{MF} {vr(K0)}, {vr(KX+4)}, {vr(Q0)}, 0\n{MF} {vr(K1)}, {vr(Q0)}, {vr(Q0)}, 0')
        pp('a3')
        e(f's_mov_b64 exec, {sp(mHI)}')
        tmm = e.vm(f'buffer_store_dwordx4 {vr(Q0)}, v{vPX}, {WS}, s33 offen sc1')
        e(f's_add_u32 {sKV}, {sKV}, s34\ns_cmp_eq_u32 {sT}, 63\ns_cbranch_scc1 {last}\ns_mov_b64 exec, {sp(mLO)}')
        pp('a4')
        e.ds(f'ds_write_b128 v{vSW}, {vr(Q1)}'); e.ds(f'ds_write_b128 v{vSW}, {vr(K0)} offset:64')
        e(f's_mov_b64 exec, {sp(mM)}')
        tw = e.ds(f'ds_write_b128 v{vSW}, {vr(K1)} offset:96')
        e('s_mov_b64 exec, -1')
        pp('a5')
        kv_wait('s35', 4); kv_load(KX, sKV)
        pp('a6')
        e.wds(tw); pp('a7'); e('s_barrier')
        pp('a8')
        S = ACC
        tr = [e.ds(f'ds_read_b128 {vr(S+4*q)}, v{vSR} offset:{q*SWV}') for q in range(4)]
        WA = [VA[0], ACC+8, ACC]
        for r in range(0, 8, 2): e(f'v_mov_b64 {vr(WA[0]+r,2)}, 0')
        e(f'v_add_u32 v{MBUF[1]}, s32, v{vPX}\ns_add_u32 {sT}, {sT}, 1\ns_add_u32 {sMM}, {sMM}, {1<<18}')
        e.wds(tr[1]); e(f'v_pk_add_f32 {vr(S,2)}, {vr(S,2)}, {vr(S+4,2)}\nv_pk_add_f32 {vr(S+2,2)}, {vr(S+2,2)}, {vr(S+6,2)}')
        e.wds(tr[3]); e(f'v_pk_add_f32 {vr(S+8,2)}, {vr(S+8,2)}, {vr(S+12,2)}\nv_pk_add_f32 {vr(S+10,2)}, {vr(S+10,2)}, {vr(S+14,2)}')
        e(f'v_pk_add_f32 {vr(S,2)}, {vr(S,2)}, {vr(S+8,2)}\nv_pk_add_f32 {vr(S+2,2)}, {vr(S+2,2)}, {vr(S+10,2)}')
        pp('a9')
        MX = S+4; SM = S+6
        hk = [f's_mov_b32 s31, {sAGR}', f's_mov_b32 {sAGR}, {sAGW}', f's_add_u32 {sAGW}, {sAGW}, 10240', f's_add_u32 s33, {sAG0}, 30720',
              f's_cmp_eq_u32 {sAGW}, s33', f's_cselect_b32 {sAGW}, {sAG0}, {sAGW}', f's_lshl_b32 s30, {sU}, 8', 's_add_u32 s31, s31, s30',
              f's_add_u32 s30, s30, {sAGR}', f's_add_u32 s34, {sAGR}, {sAGL}', f's_add_u32 s35, {sRSL}, 4096', f's_add_u32 s33, {sKV}, {OFF_VF-OFF_KF}', 's_mov_b32 s28, 0']
        def H(k=2):
            for _ in range(k):
                if hk: e(hk.pop(0))
        e(f'v_max3_f32 v{MX}, v{S}, v{S+1}, v{S+2}\nv_max_f32 v{MX}, v{MX}, v{S+3}')
        for r in (8, 4, 2, 1):
            H(); e(f'v_max_f32 v{MX}, v{MX}, v{MX} row_ror:{r} row_mask:0xf bank_mask:0xf')
        e(f'v_mul_f32 v{MX}, s{sC}, v{MX}')
        for r in (0, 2): e(f'v_pk_fma_f32 {vr(S+r,2)}, {vr(S+r,2)}, {sp(sC)}, {vr(MX,2)} op_sel_hi:[1,1,0] neg_lo:[0,0,1] neg_hi:[0,0,1]')
        for r in range(4): e(f'v_exp_f32 v{S+r}, v{S+r}')
        H(1)
        e(f'v_pk_add_f32 {vr(SM,2)}, {vr(S,2)}, {vr(S+2,2)}\nv_add_f32 v{SM}, v{SM}, v{SM+1}')
        for r in (8, 4, 2, 1):
            H(); e(f'v_add_f32 v{SM}, v{SM}, v{SM} row_ror:{r} row_mask:0xf bank_mask:0xf')
        e(f'v_rcp_f32 v{SM}, v{SM}')
        for r in (0, 2): e(f'v_pk_mul_f32 {vr(S+r,2)}, {vr(S+r,2)}, {vr(SM,2)} op_sel_hi:[1,0]')
        e(f'v_cvt_pk_bf16_f32 v{S}, v{S}, v{S+1}\nv_cvt_pk_bf16_f32 v{S+1}, v{S+2}, v{S+3}')
        tw = e.ds(f'ds_write_b64 v{vPW}, {vr(S,2)} offset:{L_P}')
        pp('a10')
        H(20)
        e.wds(tw); e('s_barrier')
        pp('sm')
        PX, PM, O = S, S+4, S+8
        t1 = e.ds(f'ds_read_b128 {vr(PX)}, v{vPX} offset:{L_P}')
        t2 = e.ds(f'ds_read_b64 {vr(PM,2)}, v{vPM} offset:{L_P+512}')
        e.wds(t1)
        for t in range(2): e(f'{MF} {vr(O+4*t)}, {vr(VX+4*t)}, {vr(PX)}, 0')
        e.wds(t2)
        for t in range(2): e(f'{MF16} {vr(O+4*t)}, {vr(VMF+2*t,2)}, {vr(PM,2)}, {vr(O+4*t)}')
        pp('p1')
        e.wvm(tmm)
        e(f's_mov_b64 exec, {sp(mLO)}')
        for r in range(4): e(f'v_cvt_pk_bf16_f32 v{PX+r}, v{O+r}, v{O+4+r}')
        tw = e.ds(f'ds_write_b128 v{MBUF[1]}, {vr(PX)} offset:{L_O}')
        e('s_mov_b64 exec, -1')
        pp('p2')
        kv_load(VX, 's33')
        pp('p3')
        e.wds(tw); pp('p4'); e('s_barrier')
        pp('p5')
        OB = MBUF[0]
        to = [e.ds(f'ds_read_b128 {vr(OB+4*k)}, v{vL16} offset:{L_O+k*1024}') for k in range(2)]
        e.vm(f'buffer_load_dwordx2 v[6:7], off, {WS}, {sFL} sc1')
        for r in range(0, 8, 2): e(f'v_mov_b64 {vr(WA[1]+r,2)}, 0')
        nofl = e.lab('r')
        e(f'v_mov_b32 v{WA[2]}, {sT}\ns_cmp_lg_u32 {sW}, 3\ns_cbranch_scc1 {nofl}\nbuffer_store_dword v{WA[2]}, off, {WS}, {sFR} sc1')
        e.label(nofl)
        for r in range(0, 8, 2): e(f'v_mov_b64 {vr(WA[2]+r,2)}, 0')
        pp('wo0')
        def flush(c, part):
            a = WA[c % 3]
            if part == 0:
                for r in range(2): e(f'v_permlane32_swap_b32 v{a+r}, v{a+4+r}')
            if part == 1:
                for r in range(2, 4): e(f'v_permlane32_swap_b32 v{a+r}, v{a+4+r}')
            if part == 2:
                e(f'v_pk_add_f32 {vr(a,2)}, {vr(a,2)}, {vr(a+4,2)}\nv_pk_add_f32 {vr(a+2,2)}, {vr(a+2,2)}, {vr(a+6,2)}')
                e(f'v_cvt_pk_bf16_f32 v{a+4}, v{a}, v{a+1}\nv_cvt_pk_bf16_f32 v{a+5}, v{a+2}, v{a+3}')
            if part == 3:
                e(f'v_and_or_b32 v{a+4}, v{a+4}, -2, {sPAR}\ns_add_u32 s33, {sRSS}, {c*16384}')
                e.vm(f'buffer_store_dwordx2 {vr(a+4,2)}, v{vRS}, {WS}, s33 offen {fl}')
                if c < 2:
                    for r in range(0, 8, 2): e(f'v_mov_b64 {vr(a+r,2)}, 0')
        parts = [(c, p) for c in range(5) for p in range(4)]
        i = 0
        for c in range(5):
            for k in range(2):
                e.wds(to[k])
                for t in range(2):
                    smf(WA[c % 3]+4*t, vr(OB+4*k), 60+4*c+2*k+t)
                    if i >= cfg.FLAG: flush(*parts.pop(0))
                    i += 1
        pp('w1')
        while parts: flush(*parts.pop(0))
        pp('wo1')
        SEL, RD, RL = XB[NB-1], XB[NB-1]+4, P+32
        nored = e.lab('r'); lp2 = e.lab('r')
        e(f's_cmp_ge_u32 {sU}, 40\ns_cbranch_scc1 {nored}')
        mk_sel(e, SEL, vL16, RD, mSEL)
        if cfg.RACK: e.vm0()
        if cfg.RDLY: e(f's_sleep {cfg.RDLY}')
        pp('rs0')
        e.label(lp2)
        toks = [e.vm(f'buffer_load_dwordx4 {vr(RL+4*j)}, v{vL16}, {WS}, {sRSL if j<4 else "s35"} offen offset:{(j%4)*1024} sc1') for j in range(8)]
        tt = sum((((a ^ c) | (b ^ c)) & 1) << (a*4+b*2+c) for a in (0,1) for b in (0,1) for c in (0,1))
        for j in range(8):
            e.wvm(toks[j])
            e(f'{MF} {vr(RD)}, {vr(RL+4*j)}, {vr(SEL)}, {vr(RD) if j else 0}')
            e(f'v_bitop3_b32 v{RL+4*j}, v{RL+4*j}, v{RL+4*j+2}, {sPAR} bitop3:{tt:#x}')
            if j == 2: e(f'v_or3_b32 v{RL}, v{RL}, v{RL+4}, v{RL+8}')
            if j in (4, 6): e(f'v_or3_b32 v{RL}, v{RL}, v{RL+4*j-4}, v{RL+4*j}')
        e(f'v_or_b32 v{RL}, v{RL}, v{RL+28}\nv_and_b32 v{RL}, 1, v{RL}\nv_cmp_ne_u32 vcc, 0, v{RL}\nv_mov_b64 {vr(RL+2,2)}, -1\ns_cbranch_vccnz {lp2}r')
        e(f"""s_mov_b64 exec, {sp(mLO)}
        v_cvt_pk_bf16_f32 v{RL}, v{RD}, v{RD+1}
        v_cvt_pk_bf16_f32 v{RL+1}, v{RD+2}, v{RD+3}
        v_min_u32 v{RL}, -2, v{RL}
        v_min_u32 v{RL+1}, -2, v{RL+1}
        buffer_store_dwordx2 {vr(RL,2)}, v{vAG}, {WS}, s30 offen {fl}
        buffer_store_dwordx2 {vr(RL+2,2)}, v{vAG}, {WS}, s31 offen {fl}
        s_mov_b64 exec, -1""")
        if cfg.AACK: e.vm0()
        j2 = e.lab('r')
        e(f's_branch {j2}'); e.label(nored); pp('rs0'); e('s_waitcnt vmcnt(0)'); e.label(j2)
        flags_read()
        e(f's_xor_b32 {sPAR}, {sPAR}, 1\ns_mov_b32 s28, 0')
        pp('rs1')
        prof_flush(e, cfg, len(cfg.PP), sPF)
        e.ds0()
        e('s_barrier')
        if cfg.ADLY: e(f's_sleep {cfg.ADLY}')
        e(f's_branch {top}')
        e.label(lp + 'r'); spin_tail(e, cfg, lp, 3)
        e.label(lp2 + 'r'); spin_tail(e, cfg, lp2, 5)
        e.label(last)
        e(f's_mov_b64 exec, -1\ns_waitcnt vmcnt(0)\ns_barrier\nv_mov_b32 v6, 64\nbuffer_store_dword v6, off, {WS}, {sFR} sc1\ns_endpgm')
    e(f's_add_u32 s34, {sAGR}, {sAGL}\ns_mov_b32 s28, 0')
    two_modes(e, 'R', body)

tLANE, tL16, tXA, tXB, tDMA, tL4, tPOLL = 1, 2, 3, 4, 5, 8, 9
def tok_setup(e):
    e(f"""v_and_b32 v{tLANE}, 63, v0
    v_lshlrev_b32 v{tL16}, 4, v{tLANE}
    v_lshlrev_b32 v{tL4}, 2, v{tLANE}
    v_bfe_u32 v10, v{tLANE}, 1, 3
    v_lshrrev_b32 v11, 4, v{tLANE}
    v_xor_b32 v10, v10, v11
    v_lshlrev_b32 v{tXA}, 4, v10
    v_and_b32 v10, 7, v{tLANE}
    v_lshl_add_u32 v{tXA}, v10, 7, v{tXA}
    v_bfe_u32 v10, v{tLANE}, 3, 1
    v_mul_u32_u24 v10, 10240, v10
    v_add_u32 v{tXA}, v{tXA}, v10
    v_xor_b32 v{tXB}, 64, v{tXA}""")
def dma_steps(e, sG, sL, n, voff, fl='sc1'):
    def step(j):
        def f():
            if j % 4 == 0:
                if j: e(f's_add_u32 {sL}, {sL}, 4096\ns_add_u32 {sG}, {sG}, 4096')
                e(f's_mov_b32 m0, {sL}')
            e.vm(f'buffer_load_dwordx4 v{voff}, {WS}, {sG} offen offset:{(j%4)*1024} {fl} lds')
        return f
    return [step(j) for j in range(n)]
def xfrag(e, u, b, xa=tXA, xb=tXB):
    return lambda r: ('ds', e.ds(f'ds_read_b128 {vr(r)}, v{xb if b & 1 else xa} offset:{u*20480+(b>>1)*1024}'))
def poll(e, cfg, load, test, code):
    lp = e.lab('p'); ok = e.lab('p')
    e('s_mov_b32 s28, 0'); e.label(lp)
    e(load + '\ns_waitcnt vmcnt(0)\n' + test + f'\ns_cbranch_scc1 {ok}')
    if cfg.PSLEEP: e(f's_sleep {cfg.PSLEEP}')
    spin_tail(e, cfg, lp, code)
    e.label(ok); e.unknown_vm()
def row_flags_load(sBase): return f'buffer_load_dword v{tPOLL}, v{tL4}, {WS}, {sBase} offen sc1'
ROW_TEST = f'v_cmp_eq_u32 vcc, 0, v{tPOLL}\ns_cmp_eq_u32 vcc_lo, 0'
def wave_sum(e, v, t):
    for r in (8, 4, 2, 1): e(f'v_add_f32 v{v}, v{v}, v{v} row_ror:{r} row_mask:0xf bank_mask:0xf')
    xlane(e, 'v_add_f32', v, t)
def order_item(e, cfg, lead, l2first, sn, sIT):
    b = e.lab('o')
    e(f"""s_mov_b32 {sIT}, {sn}
    s_cmp_lt_u32 {sn}, {lead}
    s_cbranch_scc1 {b}
    s_cmp_ge_u32 {sn}, {128-lead}
    s_cbranch_scc1 {b}
    s_sub_u32 s33, {sn}, {lead}
    s_lshr_b32 {sIT}, s33, 1
    s_bitcmp1_b32 s33, 0
    s_cselect_b32 s33, {lead if l2first else 64}, {64 if l2first else lead}
    s_add_u32 {sIT}, {sIT}, s33""")
    e.label(b)

class Red: pass
def row_setup(e, R, sRow):
    L = tLANE
    e(f"""v_bfe_u32 v10, v{L}, 4, 1
    v_lshrrev_b32 v11, 5, v{L}
    v_lshl_add_u32 v10, v10, 1, v11
    v_and_b32 v11, 15, v{L}
    v_lshlrev_b32 v{R.row+1}, 4, v11
    v_lshl_add_u32 v{R.row}, v10, 8, v{R.row+1}
    v_add_u32 v{R.row+1}, 1024, v{R.row+1}
    s_bfe_u32 s33, {sRow}, 0x30001
    v_and_b32 v11, 7, v{L}
    v_xor_b32 v11, s33, v11
    v_lshlrev_b32 v{R.xn+1}, 4, v11
    v_bfe_u32 v11, v{L}, 3, 1
    v_lshl_add_u32 v{R.xn+1}, v11, 10, v{R.xn+1}
    v_lshl_add_u32 v{R.xn}, v10, 11, v{R.xn+1}
    v_add_u32 v{R.xn+1}, 8192, v{R.xn+1}
    v_mov_b32 v10, {OOB:#x}
    v_cmp_gt_u32 vcc, 16, v{L}
    v_cndmask_b32 v{R.row+1}, v10, v{R.row+1}, vcc
    v_cndmask_b32 v{R.xn+1}, v10, v{R.xn+1}, vcc
    s_lshr_b32 {R.sXR}, {sRow}, 3
    s_mul_i32 {R.sXR}, {R.sXR}, 10240
    s_and_b32 s33, {sRow}, 7
    s_lshl_b32 s33, s33, 7
    s_add_u32 {R.sXR}, {R.sXR}, s33""")
def red_setup(e, R, base, nprod):
    R.la, R.lb, R.ga, R.gb, R.lw, R.p0, R.p1, R.res, R.res2, R.ly, R.xn = range(base, base+11)
    R.sel, R.sel2 = base+12, base+16
    R.sM, R.sG, R.sROW, R.sXR, R.sFP, R.sFPme, R.sRS, R.sRS2, R.sSTO, R.sLDO = ['s%d' % i for i in range(70, 80)]
    L = tLANE
    e(f"""s_mul_i32 s33, {sW}, {32*336}
    s_add_u32 s33, s33, {R.L_T}
    v_lshrrev_b32 v10, 3, v{L}
    v_and_b32 v11, 7, v{L}
    v_mul_u32_u24 v{R.la}, 336, v10
    v_lshl_add_u32 v{R.la}, v11, 4, v{R.la}
    v_add_u32 v{R.la}, s33, v{R.la}
    v_mul_u32_u24 v{R.ga}, {RSP_ROW}, v10
    v_lshl_add_u32 v{R.ga}, v11, 4, v{R.ga}
    v_lshrrev_b32 v10, 2, v{L}
    v_and_b32 v11, 3, v{L}
    v_mul_u32_u24 v{R.lb}, 336, v10
    v_lshl_add_u32 v{R.lb}, v11, 4, v{R.lb}
    v_add_u32 v{R.lb}, s33, v{R.lb}
    v_mul_u32_u24 v{R.gb}, {RSP_ROW}, v10
    v_lshl_add_u32 v{R.gb}, v11, 4, v{R.gb}
    v_lshrrev_b32 v10, 4, v{L}
    v_and_b32 v11, 15, v{L}
    v_mul_u32_u24 v{R.lw}, 336, v11
    v_lshl_add_u32 v{R.lw}, v10, 4, v{R.lw}
    v_add_u32 v{R.lw}, s33, v{R.lw}
    v_mul_u32_u24 v{R.p0}, 1280, v10
    v_lshl_add_u32 v{R.p0}, v11, 4, v{R.p0}
    v_mov_b32 v{R.p1}, v{R.p0}
    v_mov_b32 v6, {OOB:#x}
    s_and_b32 s33, {sW}, 1
    s_lshl_b32 s33, s33, 3
    v_add_u32 v7, s33, v10
    v_cmp_gt_u32 vcc, {nprod}, v7
    v_cndmask_b32 v{R.p0}, v6, v{R.p0}, vcc
    v_add_u32 v7, 4, v7
    v_cmp_gt_u32 vcc, {nprod}, v7
    v_cndmask_b32 v{R.p1}, v6, v{R.p1}, vcc
    v_lshrrev_b32 v7, 5, v{L}
    v_and_b32 v10, 1, v10
    v_lshlrev_b32 v{R.res}, 8, v7
    v_lshl_add_u32 v{R.res}, v11, 4, v{R.res}
    v_lshl_add_u32 v{R.res}, v10, 3, v{R.res}
    v_cmp_gt_u32 vcc, 32, v{L}
    v_cndmask_b32 v{R.res2}, v6, v{R.res}, vcc
    s_lshr_b32 s33, {sW}, 1
    s_mul_i32 s34, s33, 3072
    s_add_u32 s34, s34, {R.L_Y}
    v_add_u32 v{R.ly}, s34, v{tL16}
    s_lshl_b32 {R.sROW}, {R.sM}, 1
    s_add_u32 {R.sROW}, {R.sROW}, s33
    s_lshl_b32 {R.sFP}, {R.sG}, 8
    s_add_u32 {R.sFP}, {R.sFP}, {F_PS}
    s_lshl_b32 {R.sFPme}, {R.sM}, 4
    s_lshl_b32 s33, {sW}, 2
    s_add_u32 {R.sFPme}, {R.sFPme}, s33
    s_add_u32 {R.sFPme}, {R.sFPme}, {R.sFP}
    s_mul_i32 {R.sRS}, {R.sG}, {2*RSP_SLOT}
    s_add_u32 {R.sRS}, {R.sRS}, {OFF_RSP}
    s_add_u32 {R.sRS2}, {R.sRS}, {RSP_SLOT}
    s_mul_i32 {R.sSTO}, {R.sM}, 1280
    s_mul_i32 s33, {sW}, 320
    s_add_u32 {R.sSTO}, {R.sSTO}, s33
    s_mul_i32 {R.sLDO}, {R.sROW}, {RSP_ROW}
    s_and_b32 s33, {sW}, 1
    s_mul_i32 s33, s33, {8*1280}
    s_add_u32 {R.sLDO}, {R.sLDO}, s33""")
    sel_masks(e, 84, lambda l: (l & 15) >> 1); mk_sel(e, R.sel, tL16, 10, 84)
    sel_masks(e, 84, lambda l: ((l & 15) >> 1) - 4); mk_sel(e, R.sel2, tL16, 10, 84)
def group_ids(e, R):
    if R: e(f's_sub_u32 s71, {sGRP}, 5\ns_lshr_b32 s33, {sH}, 4\ns_mul_i32 s33, s33, 3\ns_add_u32 s71, s71, s33\ns_and_b32 s70, {sH}, 15')
    else: e(f's_sub_u32 s71, {sGRP}, 5\ns_lshl_b32 s71, s71, 1\ns_lshr_b32 s33, {sH}, 4\ns_add_u32 s71, s71, s33\ns_and_b32 s70, {sH}, 15')

def res_load(e, R, srd_, sOff, d):
    for T in range(3):
        t = e.vm(f'buffer_load_dwordx2 {vr(d+2*T,2)}, v{R.res2 if T==2 else R.res}, {srd_}, {sOff} offen offset:{T*512} sc1')
    return t

def row_store(e, R, Q, srd_, soff, fl, image):
    e(f'v_mov_b32 v{Q+6}, v{Q+4}\nv_mov_b32 v{Q+7}, v{Q+5}')
    for r in range(2): e(f'v_permlane16_swap_b32 v{Q+r}, v{Q+2+r}')
    for r in range(2): e(f'v_permlane16_swap_b32 v{Q+4+r}, v{Q+6+r}')
    va = R.xn if image else R.row
    e.vm(f'buffer_store_dwordx4 {vr(Q)}, v{va}, {srd_}, {soff} offen {fl}')
    e.vm(f'buffer_store_dwordx4 {vr(Q+4)}, v{va+1}, {srd_}, {soff} offen {fl}')

def finish_row(e, R, X, RES, TMP, has_y, xstore, sXNitem, st='s33', Q=None):
    if has_y:
        for p in range(6):
            e(f'v_lshlrev_b32 v{TMP}, 16, v{RES+p}\nv_and_b32 v{TMP+1}, 0xffff0000, v{RES+p}\nv_pk_add_f32 {vr(X+2*p,2)}, {vr(X+2*p,2)}, {vr(TMP,2)}')
            e(f'v_cvt_pk_bf16_f32 v{Q+p}, v{X+2*p}, v{X+2*p+1}')
        RES = Q
    if sXNitem is not None:
        for p in range(6): e(f'v_lshlrev_b32 v{X+2*p}, 16, v{RES+p}\nv_and_b32 v{X+2*p+1}, 0xffff0000, v{RES+p}')
    if xstore: row_store(e, R, Q, xstore[0], xstore[1], xstore[2], False)
    if sXNitem is None: return
    S, T1 = TMP, TMP+1
    e(f'v_pk_add_f32 {vr(S,2)}, {vr(X,2)}, {vr(X+2,2)}')
    for r in range(4, 12, 2): e(f'v_pk_add_f32 {vr(S,2)}, {vr(S,2)}, {vr(X+r,2)}')
    e(f'v_add_f32 v{S}, v{S}, v{T1}')
    wave_sum(e, S, T1)
    e(f'v_mul_f32 v{S}, {f2u(-1/640):#x}, v{S}')
    for r in range(0, 8, 2): e(f'v_pk_add_f32 {vr(X+r,2)}, {vr(X+r,2)}, {vr(S,2)} op_sel_hi:[1,0]')
    e('s_mov_b32 exec_hi, 0')
    for r in range(8, 12, 2): e(f'v_pk_add_f32 {vr(X+r,2)}, {vr(X+r,2)}, {vr(S,2)} op_sel_hi:[1,0]')
    e('s_mov_b32 exec_hi, -1')
    e(f'v_pk_mul_f32 {vr(S,2)}, {vr(X,2)}, {vr(X,2)}')
    for r in range(2, 12, 2): e(f'v_pk_fma_f32 {vr(S,2)}, {vr(X+r,2)}, {vr(X+r,2)}, {vr(S,2)}')
    e(f'v_add_f32 v{S}, v{S}, v{T1}')
    wave_sum(e, S, T1)
    e(f'v_mov_b32 v{T1}, {f2u(1e-5):#x}\nv_fmac_f32 v{T1}, {f2u(1/640):#x}, v{S}\nv_rsq_f32 v{S}, v{T1}\ns_add_u32 {st}, {sXNitem}, {R.sXR}')
    for p in range(6):
        e(f'v_pk_mul_f32 {vr(X+2*p,2)}, {vr(X+2*p,2)}, {vr(S,2)} op_sel_hi:[1,0]\nv_cvt_pk_bf16_f32 v{X+p}, v{X+2*p}, v{X+2*p+1}')
    row_store(e, R, X, WS, st, 'sc1', True)

def out_proj(e, R, wfr, NK, OB, otok, ACC, PK, ST, fl, fill, s0=None):
    per = NK*4
    def cv(c, u, h):
        a = ACC + 16*(c % 2) + 8*u; k = PK + 4*u
        for r in (2*h, 2*h+1): e(f'v_cvt_pk_bf16_f32 v{k+r}, v{a+r}, v{a+4+r}')
    def wr(c, u): e.ds(f'ds_write_b128 v{R.lw}, {vr(PK+4*u)} offset:{u*16*336+c*64}')
    def sched_flush(c, u, p):
        at(fill, p, lambda: cv(c, u, 0)); at(fill, p+1, lambda: cv(c, u, 1)); at(fill, p+2, lambda: wr(c, u))
    tk = {}
    def rd(j, half): tk[j] = e.ds(f'ds_read_b128 {vr(ST+4*j)}, v{R.la} offset:{j*8*336+half*128}')
    def st(j, half):
        e.wds(tk[j]); e(f's_add_u32 s33, s35, {j*8*RSP_ROW}')
        e.vm(f'buffer_store_dwordx4 {vr(ST+4*j)}, v{R.ga}, {WS}, s33 offen offset:{half*128} {fl}')
    def rd2(j): tk[4+j] = e.ds(f'ds_read_b128 {vr(PK+4*j)}, v{R.lb} offset:{j*16*336+256}')
    def st2(j):
        e.wds(tk[4+j]); e(f's_add_u32 s33, s35, {j*16*RSP_ROW}')
        e.vm(f'buffer_store_dwordx4 {vr(PK+4*j)}, v{R.gb}, {WS}, s33 offen offset:256 {fl}')
    for c in range(4):
        sched_flush(c, 0, (c+1)*per+3); sched_flush(c, 1, (c+1)*per+6)
    for half in range(2):
        base = (2*half+2)*per + 9
        if half == 0 and s0: base = s0
        for j in range(4): at(fill, base+j, lambda j=j, half=half: rd(j, half))
        gap = max(1, (per-18)//4) if half else max(2, (4*per-base-4)//4)
        for j in range(4): at(fill, base+8+gap*j, lambda j=j, half=half: st(j, half))
    if NK == 8:
        p = 4*per + per//2 + 3
        sched_flush(4, 0, p); at(fill, p+3, lambda: rd2(0)); at(fill, p+11, lambda: st2(0))
    e(f's_add_u32 s35, {R.sSTO}, {R.sRS}')
    i = 0
    for c in range(5):
        seq = [(kk, t, u) for kk in range(NK) for t in range(2) for u in range(2)]
        if c == 4 and NK == 8: seq = [(kk, t, u) for u in range(2) for kk in range(NK) for t in range(2)]
        for kk, t, u in seq:
            if c == 0: e.wds(otok[kk, u])
            a = vr(ACC + 16*(c % 2) + 8*u + 4*t)
            e(f'{MF} {a}, {wfr(c,kk,t)}, {vr(OB(u,kk))}, {a if kk else 0}')
            run(fill, i); i += 1
    us = (1,) if NK == 8 else (0, 1)
    tail = dict(fill); fill.clear()
    keys = sorted(tail)
    for k in keys[:2]: run(tail, k)
    for u in us: cv(4, u, 0); cv(4, u, 1); wr(4, u); rd2(u)
    drain(tail)
    for u in us: st2(u)

def publish(e, R, sCnt):
    slow = e.lab('pb'); done = e.lab('pb')
    e(f'v_mov_b32 v10, {sCnt}\ns_cmp_eq_u32 {sMODE}, 1\ns_cbranch_scc0 {slow}')
    e.vm(f'buffer_store_dword v10, off, {WS}, {R.sFPme}')
    e.label(done)
    e.cold.append(f'{slow}:\nbuffer_wbl2 sc1\ns_waitcnt vmcnt(0)\nbuffer_store_dword v10, off, {WS}, {R.sFPme} sc1\ns_branch {done}')
def flush_cold(e):
    for t in e.cold: e(t)
    e.cold = []
def grp_load(R): return f'buffer_load_dword v10, v{tL4}, {WS}, {R.sFP} offen sc1'
def grp_wait(e, cfg, R, sCnt, code, tok=None):
    test = f'v_cmp_gt_u32 vcc, {sCnt}, v10\ns_cmp_eq_u64 vcc, 0'
    ok = e.lab('g')
    if tok is not None:
        e.wvm(tok); e(test + f'\ns_cbranch_scc1 {ok}')
        st = e.vmdone
    ps = cfg.PSLEEP; cfg.PSLEEP = 0
    poll(e, cfg, grp_load(R), test, code)
    cfg.PSLEEP = ps
    e.label(ok)
    if tok is not None: e.vmdone = st
    slow = e.lab('gq'); done = e.lab('gq')
    e(f's_cmp_eq_u32 {sMODE}, 1\ns_cbranch_scc0 {slow}'); e.label(done)
    e.cold.append(f'{slow}:\nbuffer_inv sc1\ns_waitcnt vmcnt(0)\ns_branch {done}')
def rs_steps(e, R, LD, toks, sa='s30', sb='s31'):
    e(f's_add_u32 {sa}, {R.sLDO}, {R.sRS}\ns_add_u32 {sb}, {sa}, {4*1280}')
    def one(jj, j): toks[jj, j] = e.vm(f'buffer_load_dwordx4 {vr(LD+20*jj+4*j)}, v{R.p1 if jj else R.p0}, {WS}, {sb if jj else sa} offen offset:{j*256} sc1')
    return [(lambda jj=jj, j=j: one(jj, j)) for jj in range(2) for j in range(5)]
def rs_loads(e, R, LD):
    e(f's_add_u32 s30, {R.sLDO}, {R.sRS}\ns_add_u32 s31, s30, {4*1280}')
    return {(jj, j): e.vm(f'buffer_load_dwordx4 {vr(LD+20*jj+4*j)}, v{R.p1 if jj else R.p0}, {WS}, {"s31" if jj else "s30"} offen offset:{j*256} sc1') for jj in range(2) for j in range(5)}
def rs_sum(e, R, toks, LD, Y):
    for jj in range(2):
        for j in range(5):
            e.wvm(toks[jj,j]); a = vr(Y+4*(j>>1))
            first = (jj == 0 and j % 2 == 0)
            e(f'{MF} {a}, {vr(R.sel2 if j & 1 else R.sel)}, {vr(LD+20*jj+4*j)}, {0 if first else a}')
    if R.single:
        slow = e.lab('cs'); done = e.lab('cs')
        e(f'v_mov_b32 v10, {R.sCNT}\ns_cmp_eq_u32 {sMODE}, 1\ns_cbranch_scc0 {slow}')
        e.vm(f'buffer_store_dword v10, off, {WS}, {R.sFPme} offset:2048')
        e.label(done)
        e.cold.append(f'{slow}:\nbuffer_store_dword v10, off, {WS}, {R.sFPme} offset:2048 sc1\ns_branch {done}')
    ev = e.lab('d')
    e(f's_bitcmp1_b32 {sW}, 0\ns_cbranch_scc0 {ev}')
    for T in range(3): e(f'ds_write_b128 v{R.ly}, {vr(Y+4*T)} offset:{T*1024}')
    e.label(ev)
    if not R.single: swap_rs(e, R)
def slot_free(e, cfg, R, fill, p0, p1, code):
    if not R.single: return
    k = {}
    ld = f'buffer_load_dword v10, v{tL4}, {WS}, {R.sFP} offen offset:2048 sc1'
    test = f'v_add_u32 v10, 1, v10\nv_cmp_gt_u32 vcc, {R.sCNT}, v10'
    def chk():
        lp = e.lab('sf'); ok = e.lab('sf')
        e.wvm(k['t']); e(test + f'\ns_mov_b32 s28, 0\ns_cbranch_vccnz {lp}'); e.label(ok)
        e.cold.append(f'{lp}:\n{ld}\ns_waitcnt vmcnt(0)\n{test}\ns_cbranch_vccz {ok}\ns_add_u32 s28, s28, 1\ns_cmp_lt_u32 s28, {cfg.SPIN}\ns_cbranch_scc1 {lp}\ns_mov_b32 s29, {code}\ns_branch L_abort')
    at(fill, p0, lambda: k.update(t=e.vm(ld))); at(fill, p1, chk)
def decide(e, vD, t):
    e('s_barrier')
    e.ds(f'ds_read_b128 {vr(t)}, v{vD}'); e.ds0()
    e(f'v_and_b32 v{t}, v{t}, v{t+1}\nv_and_b32 v{t+2}, v{t+2}, v{t+3}\nv_and_b32 v{t}, v{t}, v{t+2}\nv_readfirstlane_b32 s30, v{t}\ns_cmp_eq_u32 s30, 1')
def gate(flag, vd, sit):
    return f"""
    s_cselect_b32 {flag}, 1, 0
    s_cmp_ge_u32 {sit}, 128
    s_cselect_b32 {flag}, 0, {flag}
    s_cmp_eq_u32 {flag}, 1
    s_cselect_b32 s33, 0, {OOB:#x}
    v_or_b32 v{vd}, s33, v{tL16}"""
def reduce_gather(e, R, LD, Y):
    toks = [e.ds(f'ds_read_b128 {vr(LD+4*q)}, v{R.ly} offset:{q*1024}') for q in range(3)]
    for q in range(3):
        e.wds(toks[q])
        for r in (0, 2): e(f'v_pk_add_f32 {vr(Y+4*q+r,2)}, {vr(Y+4*q+r,2)}, {vr(LD+4*q+r,2)}')
def swap_rs(e, R):
    e(f's_mov_b32 s33, {R.sRS}\ns_mov_b32 {R.sRS}, {R.sRS2}\ns_mov_b32 {R.sRS2}, s33')

def role_P(e, cfg, nm):
    isV = nm == 'V'
    which = {'K':0, 'V':1, 'Q':2}[nm]
    WV = 96; XB = [16+4*i for i in range(8)]; ACC = 48; PK = 64; vXA, vXB = 72, 73
    sN, sIT, sIT2, sBUF, sPRE, sFA, sFB, sFV, sOB, sG, sL, sPF, sIT3 = ['s%d' % i for i in range(62, 75)]
    e.label(f'L_role{nm}')
    tok_setup(e)
    wl = WL(e, tLANE, 0, 4096*cfg.NSL, 24, 40, cfg.NSL)
    e(f's_lshl_b32 s33, {sH}, 8'); sq = wl.src(16, 8192, 's33', False); rq = wl.rows(18, STD)
    srd(e, 12, {'K':P_WK, 'V':P_WV, 'Q':P_WQ}[nm])
    wl.run([('s[12:15]', sq, B*64*8192, rq, [(('v', WV+16*B+8*c), ('v', WV+16*B+8*c+4)) for c in range(2)]) for B in range(10)], first=lambda: arrive(e))
    sync_start(e, cfg)
    pf_base(e, sPF)
    def flag_line(sit, d): e(f's_lshl_b32 {d}, {sit}, 7\ns_add_u32 {d}, {d}, {F_XN}')
    def dma_setup(sit):
        e(f's_mul_i32 {sL}, {sW}, 10240\ns_mul_i32 {sG}, {sit}, {ITEM}\ns_add_u32 {sG}, {sG}, {sL}\ns_add_u32 {sG}, {sG}, {OFF_XN}\ns_add_u32 {sL}, {sL}, {sBUF}')
    def fetch(sit, code):
        flag_line(sit, 's31'); poll(e, cfg, row_flags_load('s31'), ROW_TEST, code)
        dma_setup(sit)
        for f in dma_steps(e, sG, sL, 10, tL16): f()
    e(f"""s_lshl_b32 {sFB}, {sH}, 7
    s_lshl_b32 s33, {sW}, 5
    s_add_u32 {sFB}, {sFB}, s33
    s_lshl_b32 {sOB}, {sFB}, 6
    s_add_u32 {sOB}, {sOB}, {dict(K=OFF_KF, V=OFF_VF, Q=OFF_QF)[nm]}
    s_add_u32 {sFB}, {sFB}, {F_P3 + which*4}
    s_mov_b32 {sFA}, {sFB}
    s_mov_b32 {sFV}, 0
    s_mov_b32 {sN}, 0
    s_mov_b32 {sIT}, 0
    s_mov_b32 {sIT2}, 1
    s_mov_b32 {sBUF}, 0""")
    fetch(sIT, 10)
    flag_line(sIT2, 's31'); e(row_flags_load('s31'))
    e.vm0()
    top = f'L_{nm}top'; e.label(top)
    prof(e, cfg, 0)
    e(f's_waitcnt vmcnt(2)\ns_barrier\nv_add_u32 v{vXA}, {sBUF}, v{tXA}\nv_add_u32 v{vXB}, {sBUF}, v{tXB}')
    xs = Stream(e, XB, [xfrag(e, u, b, vXA, vXB) for b in range(20) for u in range(2)]); xs.prime()
    e(f"""{ROW_TEST}
    s_cselect_b32 {sPRE}, 1, 0
    s_cmp_ge_u32 {sN}, 127
    s_cselect_b32 {sPRE}, 0, {sPRE}
    s_cmp_eq_u32 {sPRE}, 1
    s_cselect_b32 s33, 0, {OOB:#x}
    v_or_b32 v{tDMA}, s33, v{tL16}
    s_xor_b32 {sBUF}, {sBUF}, {ITEM}""")
    dma_setup(sIT2)
    prof(e, cfg, 1)
    fill = {}
    for j, f in enumerate(dma_steps(e, sG, sL, 10, tDMA)): at(fill, 1+4*j, f)
    def mid():
        e(f's_add_u32 s32, {sN}, 2'); order_item(e, cfg, cfg.A, True, 's32', sIT3); flag_line(sIT3, 's31')
        prof(e, cfg, 2)
        e('s_waitcnt vmcnt(10)')
        prof(e, cfg, 3); prof_flush(e, cfg, 4, sPF)
        e(f'v_mov_b32 v10, {sFV}\nbuffer_store_dword v10, off, {WS}, {sFA} sc1\n' + row_flags_load('s31'))
    at(fill, 46, mid)
    at(fill, 60, lambda: e(f's_lshl_b32 s34, {sIT}, 18\ns_add_u32 s34, s34, {sOB}'))
    at(fill, 62, lambda: e(f's_lshr_b32 {sFA}, {sIT}, 6\ns_lshl_b32 {sFA}, {sFA}, 4'))
    at(fill, 64, lambda: e(f's_add_u32 {sFA}, {sFA}, {sFB}\ns_and_b32 {sFV}, {sIT}, 63'))
    at(fill, 66, lambda: e(f's_add_u32 {sFV}, {sFV}, 1\ns_add_u32 {sN}, {sN}, 1'))
    at(fill, 68, lambda: e(f's_mov_b32 {sIT}, {sIT2}\ns_mov_b32 {sIT2}, {sIT3}'))
    i = 0
    for b in range(20):
        for u in range(2):
            x = xs.get(2*b+u)
            for t in range(2):
                a = vr(ACC+8*u+4*t if not isV else ACC+8*t+4*u); w = vr(WV+8*b+4*t)
                e(f'{MF} {a}, {x if isV else w}, {w if isV else x}, {a if b else 0}')
                run(fill, i); i += 1
            xs.issue()
    for f in range(2):
        for r in range(4):
            if isV: e(f'v_cvt_pk_bf16_f32 v{PK+4*f+r}, v{ACC+8*f+2*r}, v{ACC+8*f+2*r+1}')
            else: e(f'v_cvt_pk_bf16_f32 v{PK+4*f+r}, v{ACC+8*f+r}, v{ACC+8*f+4+r}')
        e(f'buffer_store_dwordx4 {vr(PK+4*f)}, v{tL16}, {WS}, s34 offen offset:{f*1024} sc1')
    e(f's_cmp_eq_u32 {sPRE}, 1\ns_cbranch_scc1 {top}')
    e(f's_waitcnt vmcnt(0)\nv_mov_b32 v10, {sFV}\nbuffer_store_dword v10, off, {WS}, {sFA} sc1')
    e(f's_cmp_ge_u32 {sN}, 128\ns_cbranch_scc1 L_end')
    fetch(sIT, 11)
    flag_line(sIT2, 's31'); e(row_flags_load('s31'))
    e.vm0()
    e(f's_branch {top}')
    e.unknown()

def wname(d): return ar(d[1]) if d[0] == 'a' else vr(d[1])
def w80(i): return ('a', 4*i) if i < 64 else ('v', 192+4*(i-64))

def role_A(e, cfg):
    R = Red(); R.L_T = 65536; L_O = 49152; R.L_Y = L_O; L_M = 65536 + 4*32*336
    sN, sIT, sIT2, sCNT, sPRE, sG, sL, sPF = ['s%d' % i for i in range(62, 70)]
    sC = 98; sMP, sRF, sHD, sML = 's96', 's97', 's12', 's13'
    wo = lambda c, kk, t: w80(16*c+2*kk+t)
    e.label('L_roleA')
    tok_setup(e)
    wl = WL(e, tLANE, 0, 4096*cfg.NSL, 24, 40, cfg.NSL)
    e(f's_mul_i32 s33, s70, {256*1280}'); so = wl.src(16, 1280, 's33', True); ro = wl.rows(18, STD)
    srd(e, 16, P_WO); srd(e, 20, P_X)
    wl.run([('s[16:19]', so, k*64*1280+c5*64, ro, [(wo(c5,2*k+c,0), wo(c5,2*k+c,1)) for c in range(2)]) for k in range(4) for c5 in range(5)], first=lambda: arrive(e))
    sync_start(e, cfg)
    R.row = 3; R.single = cfg.SINGLE; R.sCNT = sCNT
    red_setup(e, R, 16, 16); row_setup(e, R, R.sROW)
    pf_base(e, sPF)
    vQ, vKV, vKM, vOW, vVM, vMD = 36, 37, 38, 39, 12, 13
    mreg = [80, 82, 84, 86, 88, 90, 92, 94]
    e(f"""s_lshr_b32 s32, {sW}, 1
    s_lshl_b32 {sHD}, {R.sM}, 1
    s_add_u32 {sHD}, {sHD}, s32
    s_lshl_b32 s33, s32, 13
    v_add_u32 v{vKV}, s33, v{tL16}
    s_and_b32 s34, {sW}, 1
    s_lshl_b32 s35, s34, 10
    v_add_u32 v{vQ}, s35, v{vKV}
    s_lshl_b32 s35, s34, 13
    s_lshr_b32 s33, s33, 1
    s_add_u32 s35, s35, s33
    v_add_u32 v{vOW}, s35, v{tL16}
    s_mul_i32 s33, s32, 6144
    s_add_u32 s33, s33, {L_M}
    v_add_u32 v{vVM}, s33, v{tL16}
    v_lshrrev_b32 v10, 4, v{tLANE}
    v_and_b32 v11, 7, v{tLANE}
    v_lshlrev_b32 v{vKM}, 7, v10
    v_lshl_add_u32 v{vKM}, v11, 4, v{vKM}
    v_add_u32 v{vKM}, s33, v{vKM}
    s_mov_b32 {sML}, s33
    s_lshl_b32 s34, s34, 4
    v_and_b32 v11, 15, v{tLANE}
    v_add_u32 v11, s34, v11
    v_lshlrev_b32 v10, 2, v10
    v_sub_u32 v11, v11, v10
    s_mov_b32 s{sC}, {f2u(CSC):#x}
    s_mov_b32 s{sC+1}, {f2u(CSC):#x}
    s_mov_b32 {sN}, s71
    s_mov_b32 {sCNT}, 0
    s_mov_b32 {sMP}, 0""")
    dummy_addr(e, sRF)
    for kt in range(2):
        for r in range(4): e(f'v_cmp_le_i32 {sp(mreg[4*kt+r])}, {16*kt+r}, v11')
    PLOAD = f's_lshl_b32 s31, {sHD}, 7\nbuffer_load_dword v{tPOLL}, v{tL4}, {WS}, s31 offen sc1'
    def ptest(sit):
        return (f's_and_b32 s30, {sit}, 63\nv_cmp_ge_u32 vcc, s30, v{tPOLL}\ns_lshr_b32 s30, {sit}, 6\ns_lshl_b32 s30, s30, 2\ns_lshl_b32 s30, 0x07070707, s30\n'
                f's_and_b32 s31, vcc_lo, s30\ns_cmp_eq_u32 s31, 0')
    def mload(sit): return f's_lshr_b32 s31, {sit}, 6\ns_lshl_b32 s31, s31, 5\ns_add_u32 s31, s31, {sHD}\ns_lshl_b32 s31, s31, 6\ns_add_u32 s31, s31, {F_R}\nbuffer_load_dword v14, off, {WS}, s31 sc1'
    def mtest(sit): return f's_and_b32 s30, {sit}, 63\nv_cmp_ge_u32 vcc, s30, v14\ns_cmp_eq_u64 vcc, 0'
    def base(sit, off): return f's_lshl_b32 {sG}, {sit}, 18\ns_lshl_b32 {sL}, {sHD}, 13\ns_add_u32 {sG}, {sG}, {sL}\ns_add_u32 {sG}, {sG}, {off}\n'
    def mdma(sit, voff):
        return [lambda: e(base(sit, OFF_MM) + f's_mov_b32 {sL}, {sML}')] + dma_steps(e, sG, sL, 6, voff, cfg.AMF)
    def dma(sit, voff):
        out = [lambda: e(base(sit, OFF_KF) + f's_and_b32 {sL}, {sL}, 8192')]
        for x in range(3):
            if x: out.append(lambda: e(f's_add_u32 {sG}, {sG}, {32*MB-4096}\ns_add_u32 {sL}, {sL}, {16384-4096}'))
            out += dma_steps(e, sG, sL, 8, voff, cfg.ADF if x < 2 else cfg.AMF)
        return out
    ROWFLAG = f'v_mov_b32 v11, 1\nbuffer_store_dword v11, off, {WS}, {sRF} sc1'
    QF, KM, KB, S, VM, VF = 40, 56, 72, 112, 124, 140
    LD, O = 72, 40
    OB, PK, ST, ACC = 40, 104, 112, 128
    Y2, Y, RES, TMP = 160, 172, 184, 190
    L_D = L_M + 12288
    e(f'v_add_u32 v{R.ly}, {L_D+64-L_O}, v{R.ly}\ns_lshl_b32 s33, {sW}, 2\ns_add_u32 s33, s33, {L_D}\nv_mov_b32 v{vMD}, s33\nv_mov_b32 v15, {L_D}')
    sITA, sIT3, sPEND = 's14', 's15', 's19'
    def att(h):
        def H(n):
            if n in h: h[n]()
        tq = [e.ds(f'ds_read_b128 {vr(QF+4*k)}, v{vQ} offset:{32768+k*2048}') for k in range(4)]
        tk = [e.ds(f'ds_read_b128 {vr(KB+4*j)}, v{vKV} offset:{j*1024}') for j in range(8)]
        H('start')
        for k in range(4):
            for t in range(2):
                e.wds(tk[2*k+t]); a = vr(S+4*t)
                e(f'{MF} {a}, {vr(KB+8*k+4*t)}, {vr(QF+4*k)}, {a if k else 0}')
                e.ds(f'ds_read_b128 {vr(VF+4*(2*k+t))}, v{vKV} offset:{16384+(2*k+t)*1024}')
        H('mid')
        MX, TT, SM = 6, 7, TMP
        e(f'v_mov_b32 v7, {NEG:#x}')
        for j in range(8): e(f'v_cndmask_b32 v{S+j}, v7, v{S+j}, {sp(mreg[j])}')
        e(f'v_max3_f32 v{MX}, v{S}, v{S+1}, v{S+2}\nv_max3_f32 v{MX}, v{MX}, v{S+3}, v{S+4}\nv_max3_f32 v{MX}, v{MX}, v{S+5}, v{S+6}\nv_max_f32 v{MX}, v{MX}, v{S+7}')
        H('mm')
        tkm = [e.ds(f'ds_read_b128 {vr(KM+4*k)}, v{vKM} offset:{4096+k*512}') for k in range(4)]
        tvm = [e.ds(f'ds_read_b128 {vr(VM+4*k)}, v{vVM} offset:{k*1024}') for k in range(4)]
        H('early')
        for k in range(4):
            e.wds(tkm[k]); e(f'{MF} {vr(S+8)}, {vr(KM+4*k)}, {vr(QF+4*k)}, {vr(S+8) if k else 0}')
        H('p1')
        e(f'v_max3_f32 v{MX}, v{MX}, v{S+8}, v{S+9}\nv_max3_f32 v{MX}, v{MX}, v{S+10}, v{S+11}')
        xlane(e, 'v_max_f32', MX, TT)
        e(f'v_mul_f32 v{MX}, s{sC}, v{MX}')
        for r in range(0, 12, 2): e(f'v_pk_fma_f32 {vr(S+r,2)}, {vr(S+r,2)}, {sp(sC)}, {vr(MX,2)} op_sel_hi:[1,1,0] neg_lo:[0,0,1] neg_hi:[0,0,1]')
        for r in range(12): e(f'v_exp_f32 v{S+r}, v{S+r}')
        e(f'v_pk_add_f32 {vr(SM,2)}, {vr(S+8,2)}, {vr(S+10,2)}\nv_pk_fma_f32 {vr(SM,2)}, {vr(SM,2)}, 0.5, {vr(S,2)} op_sel_hi:[1,0,1]')
        for r in range(2, 8, 2): e(f'v_pk_add_f32 {vr(SM,2)}, {vr(SM,2)}, {vr(S+r,2)}')
        e(f'v_add_f32 v{SM}, v{SM}, v{SM+1}')
        xlane(e, 'v_add_f32', SM, TT)
        e(f'v_rcp_f32 v{SM}, v{SM}')
        H('p2a')
        for r in range(0, 12, 2): e(f'v_pk_mul_f32 {vr(S+r,2)}, {vr(S+r,2)}, {vr(SM,2)} op_sel_hi:[1,0]')
        PX, PM = S, S+4
        for r in range(6): e(f'v_cvt_pk_bf16_f32 v{PX+r}, v{S+2*r}, v{S+2*r+1}')
        H('p2')
        e.wds(tvm[3])
        def oc(f, hh):
            for r in (2*hh, 2*hh+1): e(f'v_cvt_pk_bf16_f32 v{VF+8*f+r}, v{O+8*f+r}, v{O+8*f+4+r}')
        def ow(f): e.ds(f'ds_write_b128 v{vOW}, {vr(VF+8*f)} offset:{L_O+f*1024}')
        q = [x for f in range(4) for x in ((oc, f, 0), (oc, f, 1), (ow, f))]
        for f in range(4):
            for t in (2*f, 2*f+1): e(f'{MF} {vr(O+4*t)}, {vr(VF+4*t)}, {vr(PX)}, 0')
            H('drip')
            for t in (2*f, 2*f+1): e(f'{MF16} {vr(O+4*t)}, {vr(VM+2*t,2)}, {vr(PM,2)}, {vr(O+4*t)}')
            H('drip')
            if f >= 2:
                for _ in range(3): x = q.pop(0); x[0](*x[1:])
        for x in q:
            x[0](*x[1:])
            if x[0] is ow: H('drip')
    def odd(f, track=True):
        l = e.lab('A_'); n0 = (e.vmn, e.vmdone)
        e(f's_bitcmp1_b32 {sW}, 0\ns_cbranch_scc0 {l}'); f(); e.label(l)
        e.vmn, e.vmdone = n0
    def polls(): e(mload(sIT3)); e(PLOAD)
    def gates():
        e.vm0()
        e(ptest(sITA) + gate(sPRE, tDMA, sITA)); e(mtest(sITA) + gate(sMP, 14, sITA))
        e(f's_and_b32 s30, {sPRE}, {sMP}\nv_mov_b32 v11, s30'); e.ds(f'ds_write_b32 v{vMD}, v11')
    def blocking_att(code):
        def f():
            h1 = e.lab('A_'); h2 = e.lab('A_')
            e(f's_cmp_eq_u32 {sPRE}, 1\ns_cbranch_scc1 {h1}')
            poll(e, cfg, PLOAD, ptest(sITA), code)
            for x in dma(sITA, tL16): x()
            e.vm0(); e.label(h1)
        odd(f)
        e('s_barrier')
        def g():
            h2 = e.lab('A_')
            e(f's_cmp_eq_u32 {sMP}, 1\ns_cbranch_scc1 {h2}')
            poll(e, cfg, mload(sITA), mtest(sITA), code+1)
            for x in mdma(sITA, tL16): x()
            e.vm0(); e.label(h2)
        att({'mm': lambda: (odd(g), e('s_barrier')), 'p1': lambda: odd(polls)})
        e.ds0(); e(f's_barrier\ns_mov_b32 {sPEND}, 0')
    def resl():
        l1 = e.lab('A_'); l2 = e.lab('A_')
        e(f's_and_b32 s33, {sIT}, 63\ns_lshl_b32 s33, s33, 5\ns_add_u32 s33, s33, {R.sROW}\ns_mul_i32 s33, s33, 1280\ns_cmp_lt_u32 {sIT}, 64\ns_cbranch_scc1 {l1}\ns_add_u32 s33, s33, {OFF_X2}')
        n0 = e.vmn; res_load(e, R, WS, 's33', RES); e.vmn = n0
        e(f's_branch {l2}'); e.label(l1)
        res_load(e, R, 's[20:23]', 's33', RES); e.label(l2)
        e(f's_lshl_b32 s16, {sIT}, 5\ns_add_u32 s16, s16, {R.sROW}\ns_lshl_b32 {sRF}, s16, 2\ns_add_u32 {sRF}, {sRF}, {F_XN1}\ns_mul_i32 s16, s16, 1280\ns_add_u32 s16, s16, {OFF_X1}\ns_mul_i32 s17, {sIT}, {ITEM}\ns_add_u32 s17, s17, {OFF_XN1}')
    def fin(em):
        reduce_gather(em, R, Y2, Y)
        finish_row(em, R, Y, RES, TMP, True, (WS, 's16', 'sc1'), 's17', 's18', Y2)
    e(f'v_mov_b32 v11, 1\nds_write_b32 v{vMD}, v11\nds_write_b32 v{vMD}, v11 offset:16\ns_mov_b32 {sPRE}, 0')
    order_item(e, cfg, cfg.D, False, sN, sITA)
    e(f's_add_u32 s32, {sN}, {cfg.NGA}'); order_item(e, cfg, cfg.D, False, 's32', sIT3)
    e('s_branch L_Ablock')
    top, join = 'L_Atop', 'L_Ajoin'
    e.label(top); e.unknown()
    prof(e, cfg, 0)
    otok = {}
    for kk in range(8):
        for u in range(2): otok[kk, u] = e.ds(f'ds_read_b128 {vr(OB+32*u+4*kk)}, v{tL16} offset:{L_O+u*8192+kk*1024}')
    e(f's_mov_b32 {sIT}, {sITA}\ns_mov_b32 {sITA}, {sIT3}\ns_add_u32 {sN}, {sN}, {cfg.NGA}\ns_add_u32 s32, {sN}, {cfg.NGA}\ns_add_u32 {sCNT}, {sCNT}, 1')
    order_item(e, cfg, cfg.D, False, 's32', sIT3)
    e(f's_bitcmp1_b32 {sW}, 0\ns_cbranch_scc1 L_Ab2\ns_cmp_eq_u32 {sPEND}, 1\ns_cbranch_scc1 L_Ab1')
    st0 = (e.vmn, e.vmdone, e.lgn, e.lgdone)
    def back(kind):
        fill = {}; tm = {}
        at(fill, 64, lambda: prof(e, cfg, 1))
        if kind == 1:
            at(fill, 6, lambda: e('s_waitcnt vmcnt(0)'))
            r = Rec(); fin(r); ch = r.chunks(e, cfg.ACH)
            for j, f in enumerate(ch): at(fill, 1+j, f)
            assert len(ch) + 1 < cfg.ARF, len(ch)
            at(fill, cfg.ARF, lambda: (e.wvm(r.tok['last']), e.vm(ROWFLAG)))
        if kind < 2: at(fill, cfg.ARES, resl)
        if kind == 2:
            at(fill, cfg.AB1-1, gates)
            q = mdma(sITA, 14) + dma(sITA, tDMA)
            for j, f in enumerate(q): at(fill, int(cfg.AB1+cfg.ABS*j), f)
            at(fill, int(cfg.AB1+cfg.ABS*len(q)), lambda: tm.update(t=e.vmn))
        slot_free(e, cfg, R, fill, cfg.ASF, (cfg.AS0 or 73)+6, 27)
        out_proj(e, R, lambda c,kk,t: wname(wo(c,kk,t)), 8, lambda u,kk: OB+32*u+4*kk, otok, ACC, PK, ST, '', fill, cfg.AS0)
        if kind == 2: e.wvm(tm['t'])
    for k_ in range(3):
        if k_: e.label(f'L_Ab{k_}'); e.vmn, e.vmdone, e.lgn, e.lgdone = st0
        back(k_)
        if k_ < 2: e(f's_branch {join}')
    e.label(join)
    ts = e.vmn; e.vmdone = ts - 1
    prof(e, cfg, 2)
    decide(e, 15, 40)
    e(f'v_xor_b32 v15, 16, v15\nv_xor_b32 v{vMD}, 16, v{vMD}')
    seq = e.lab('A_')
    e(f's_cbranch_scc0 {seq}')
    st = (e.vmn, e.vmdone)
    prof(e, cfg, 3)
    k = {}
    att({cfg.AH[0]: lambda: (e.wvm(ts), publish(e, R, sCNT)),
         cfg.AH[1]: lambda: k.update(g=e.vm(grp_load(R))),
         'p2': lambda: (prof(e, cfg, 4), grp_wait(e, cfg, R, sCNT, 23, k['g']), prof(e, cfg, 5), k.update(t={}), k.update(q=rs_steps(e, R, LD, k['t']))),
         'drip': lambda: k['q'].pop(0)()})
    assert not k['q']
    e.vm(mload(sIT3)); e.vm(PLOAD)
    prof(e, cfg, 6)
    rs_sum(e, R, k['t'], LD, Y)
    e.ds0(); e(f's_barrier\ns_mov_b32 {sPEND}, 1')
    prof(e, cfg, 7); prof_flush(e, cfg, 8, sPF)
    e(f's_branch {top}')
    e.label(seq); e.vmn, e.vmdone = st
    for i in (3, 4): prof(e, cfg, i)
    e.wvm(ts); publish(e, R, sCNT)
    grp_wait(e, cfg, R, sCNT, 25)
    for i in (5, 6): prof(e, cfg, i)
    t_ = rs_loads(e, R, LD)
    rs_sum(e, R, t_, LD, Y)
    e.ds0()
    skip = e.lab('A_')
    e(f's_barrier\ns_bitcmp1_b32 {sW}, 0\ns_cbranch_scc1 {skip}')
    e.vm0(); fin(e); e.vm0(); e(ROWFLAG)
    e.label(skip)
    prof(e, cfg, 7); prof_flush(e, cfg, 8, sPF)
    e(f's_cmp_ge_u32 {sITA}, 128\ns_cbranch_scc1 L_end')
    e.label('L_Ablock'); e.unknown()
    blocking_att(26)
    e(f's_branch {top}')
    flush_cold(e); e.unknown()

def role_F(e, cfg):
    NGF = 6 - cfg.NGA
    R = Red(); R.L_T = 65536; L_H = 40960; R.L_Y = 49152
    sN, sIT, sIT2, sCNT, sPRE, sG, sL, sPF = ['s%d' % i for i in range(62, 70)]
    sNL = 's80'
    w1 = lambda b, t: w80(2*b+t)
    w2 = lambda c, kk, t: w80(40+8*c+2*kk+t)
    e.label('L_roleF')
    tok_setup(e)
    e.vm0(); arrive(e)
    R.row = 96; R.single = cfg.SINGLE; R.sCNT = sCNT
    red_setup(e, R, 100, 14)
    srd(e, 12, P_W1); srd(e, 16, P_W2); srd(e, 20, P_X); srd(e, 96, P_OUT)
    NIT = -(-64 // (2*NGF))
    e(f"""s_sub_u32 {sN}, {R.sG}, {cfg.NGA}
    s_lshl_b32 s32, {sN}, 4
    s_add_u32 s32, s32, {R.sM}
    s_lshl_b32 s32, s32, 2
    s_add_u32 s32, s32, {sW}
    s_and_b32 s34, s32, 31
    s_mul_i32 s30, s32, 1280""")
    row_setup(e, R, 's34')
    toks = []
    for k in range(NIT):
        toks.append(res_load(e, R, 's[20:23]', 's30', 128+6*k)); e(f's_add_u32 s30, s30, {2*NGF*32*1280}')
    e(f's_mov_b32 {sG}, s32')
    sync_start(e, cfg)
    e(f's_lshr_b32 {sL}, {sG}, 5\ns_mul_i32 s31, {sL}, {ITEM}\ns_add_u32 s31, s31, {OFF_XN}\ns_lshl_b32 s32, {sG}, 2\ns_add_u32 s32, s32, {F_XN}\nv_mov_b32 v11, 1')
    lnend = e.lab('f')
    prev = None
    for k in range(NIT):
        if (k+1)*2*NGF > 64: e(f's_cmp_ge_u32 {sL}, {64-k*2*NGF}\ns_cbranch_scc1 {lnend}')
        finish_row(e, R, 40+16*(k & 1), 128+6*k, 52+16*(k & 1), False, None, 's31')
        e(f's_add_u32 s31, s31, {2*NGF*ITEM}')
        if k:
            e.wvm(prev); e.vm(f'buffer_store_dword v11, off, {WS}, s32 sc1'); e(f's_add_u32 s32, s32, {2*NGF*128}')
            prev = e.vmn - 1
        else: prev = e.vmn
    e.label(lnend)
    e.vm0(); e(f'buffer_store_dword v11, off, {WS}, s32 sc1')
    row_setup(e, R, R.sROW)
    pf_base(e, sPF)
    now = e.lab('f')
    e(f's_cmp_ge_u32 {R.sM}, 14\ns_cbranch_scc1 {now}')
    wl = WL(e, tLANE, 0, 4096*cfg.NSL, 24, 40, cfg.NSL)
    e(f's_lshl_b32 s33, {R.sM}, 8'); s1 = wl.src(16, 3456, 's33', False)
    e(f's_mul_i32 s33, {R.sM}, {128*1280}'); s2 = wl.src(17, 1280, 's33', True); ro = wl.rows(18, STD)
    slabs = [('s[12:15]', s1, B*64*3456, ro, [(w1(2*B+c,0), w1(2*B+c,1)) for c in range(2)]) for B in range(10)]
    slabs += [('s[16:19]', s2, k*64*1280+c5*64, ro, [(w2(c5,2*k+c,0), w2(c5,2*k+c,1)) for c in range(2)]) for k in range(2) for c5 in range(5)]
    wl.run(slabs)
    e.label(now)
    vHW, vD, vDW = 16, 17, 18
    L_D = 57344
    sRF, sITA, sPEND = 's82', 's14', 's19'
    e(f's_mov_b32 {sNL}, {f2u(-math.log2(math.e)):#x}\ns_mov_b32 s81, {sNL}\ns_mov_b32 {sCNT}, 0\ns_lshl_b32 s33, {sW}, 10\nv_add_u32 v{vHW}, s33, v{tL16}')
    e(f's_lshl_b32 s33, {sW}, 2\ns_add_u32 s33, s33, {L_D}\nv_mov_b32 v{vDW}, s33\nv_mov_b32 v{vD}, {L_D}')
    XB = [40+4*i for i in range(8)]; FA, HF, LD = 72, 88, 120
    OB, PK, ST, ACC = 40, 72, 80, 120
    Y2, Y, RES, TMP = 160, 172, 184, 190
    ROWFLAG = f'v_mov_b32 v11, 1\nbuffer_store_dword v11, off, {WS}, {sRF} sc1'
    def xpoll(sit): return f's_lshl_b32 s31, {sit}, 7\ns_add_u32 s31, s31, {F_XN1}\n' + row_flags_load('s31')
    def dma(sit, voff):
        return [lambda: e(f's_lshr_b32 {sL}, {sW}, 1\ns_mul_i32 {sL}, {sL}, 20480\ns_mul_i32 {sG}, {sit}, {ITEM}\ns_add_u32 {sG}, {sG}, {sL}\ns_add_u32 {sG}, {sG}, {OFF_XN1}')] + dma_steps(e, sG, sL, 20, voff)
    def odd(f):
        l = e.lab('f'); n0 = (e.vmn, e.vmdone)
        e(f's_bitcmp1_b32 {sW}, 0\ns_cbranch_scc0 {l}'); f(); e.label(l)
        e.vmn, e.vmdone = n0
    def resl():
        e(f's_lshl_b32 s30, {sIT}, 5\ns_add_u32 s30, s30, {R.sROW}\ns_mul_i32 s30, s30, 1280\ns_add_u32 s30, s30, {OFF_X1}')
        res_load(e, R, WS, 's30', RES)
        e(f"""s_and_b32 s17, {sIT}, 63
        s_lshl_b32 s16, s17, 5
        s_add_u32 s16, s16, {R.sROW}
        s_lshl_b32 {sRF}, s16, 2
        s_add_u32 {sRF}, {sRF}, {F_XN+64*128}
        s_mul_i32 s16, s16, 1280
        s_add_u32 s15, s16, {OFF_X2}
        s_mul_i32 s17, s17, {ITEM}
        s_add_u32 s17, s17, {OFF_XN+64*ITEM}
        s_lshr_b32 s13, {sIT}, 6""")
    def fin(em, layer):
        reduce_gather(em, R, Y2, Y)
        if layer == 0: finish_row(em, R, Y, RES, TMP, True, (WS, 's15', 'sc1'), 's17', 's18', Y2)
        else: finish_row(em, R, Y, RES, TMP, True, ('s[96:99]', 's16', ''), None, None, Y2)
    def fin_now():
        skip = e.lab('f'); last = e.lab('f')
        e(f's_bitcmp1_b32 {sW}, 0\ns_cbranch_scc1 {skip}\ns_waitcnt vmcnt(0)\ns_cmp_eq_u32 s13, 1\ns_cbranch_scc1 {last}')
        fin(e, 0); e.vm0(); e(ROWFLAG + f'\ns_branch {skip}')
        e.label(last); fin(e, 1)
        e.label(skip)
    def front(h):
        xs = Stream(e, XB, [xfrag(e, u, b) for b in range(20) for u in range(2)]); xs.prime()
        e(f's_add_u32 s32, {sN}, {NGF}'); order_item(e, cfg, cfg.D, False, 's32', sIT2)
        for b in range(20):
            for u in range(2):
                x = xs.get(2*b+u)
                for t in range(2):
                    a = vr(FA+8*u+4*t)
                    e(f'{MF} {a}, {wname(w1(b,t))}, {x}, {a if b else 0}')
                xs.issue()
                if 'drip' in h: h['drip']()
            if b in h: h[b]()
            if b == 19: tp = e.vm(xpoll(sIT2))
        T = 40
        for r in range(0, 16, 2): e(f'v_pk_mul_f32 {vr(T+r,2)}, {vr(FA+r,2)}, s[80:81]')
        for r in range(16): e(f'v_exp_f32 v{T+r}, v{T+r}')
        for r in range(0, 16, 2): e(f'v_pk_add_f32 {vr(T+r,2)}, {vr(T+r,2)}, 1.0 op_sel_hi:[1,0]')
        for r in range(16): e(f'v_rcp_f32 v{T+r}, v{T+r}')
        for r in range(0, 16, 2): e(f'v_pk_mul_f32 {vr(FA+r,2)}, {vr(FA+r,2)}, {vr(T+r,2)}')
        for u in range(2):
            for r in range(4): e(f'v_cvt_pk_bf16_f32 v{HF+4*u+r}, v{FA+8*u+r}, v{FA+8*u+4+r}')
            e.ds(f'ds_write_b128 v{vHW}, {vr(HF+4*u)} offset:{L_H+u*4096}')
        if 'end' in h: h['end']()
        odd(lambda: (e.wvm(tp), e(ROW_TEST + gate(sPRE, tDMA, sIT2) + f'\nv_mov_b32 v11, {sPRE}\nds_write_b32 v{vDW}, v11')))
        e.ds0(); e('s_barrier')
    order_item(e, cfg, cfg.D, False, sN, sITA); dummy_addr(e, 's84')
    e(f'v_mov_b32 v11, 1\nds_write_b32 v{vDW}, v11\nds_write_b32 v{vDW}, v11 offset:16\ns_mov_b32 {sPRE}, 0')
    top, join, rtop = 'L_Ftop', 'L_Fjoin', 'L_Frtop'
    e(f's_cmp_lt_u32 {R.sM}, 14\ns_cbranch_scc1 L_Fblock')
    e.label(rtop)
    e(f's_mov_b32 {sIT}, {sITA}\ns_add_u32 {sCNT}, {sCNT}, 1')
    publish(e, R, sCNT)
    grp_wait(e, cfg, R, sCNT, 33)
    t_ = rs_loads(e, R, LD); resl()
    rs_sum(e, R, t_, LD, Y)
    e.ds0(); e('s_barrier'); fin_now()
    e(f's_barrier\ns_add_u32 {sN}, {sN}, {NGF}'); order_item(e, cfg, cfg.D, False, sN, sITA)
    e(f's_cmp_lt_u32 {sN}, 128\ns_cbranch_scc1 {rtop}\ns_endpgm')
    e.label(top); e.unknown()
    prof(e, cfg, 0)
    otok = {}
    for kk in range(4):
        for u in range(2): otok[kk, u] = e.ds(f'ds_read_b128 {vr(OB+16*u+4*kk)}, v{tL16} offset:{L_H+u*4096+kk*1024}')
    e(f's_mov_b32 {sIT}, {sITA}\ns_mov_b32 {sITA}, {sIT2}\ns_add_u32 {sN}, {sN}, {NGF}\ns_add_u32 {sCNT}, {sCNT}, 1')
    PUB = lambda: (e.wvm(ts), publish(e, R, sCNT))
    def RFL():
        l = e.lab('f'); e(f's_cmp_eq_u32 {sPEND}, 1\ns_cbranch_scc0 {l}\n' + ROWFLAG); e.label(l)
    e(f's_cmp_eq_u32 {sPEND}, 1\ns_cbranch_scc1 L_Fb1\ns_cmp_eq_u32 {sPEND}, 2\ns_cbranch_scc1 L_Fb2\ns_bitcmp1_b32 {sW}, 0\ns_cbranch_scc1 L_Fb3')
    st0 = (e.vmn, e.vmdone, e.lgn, e.lgdone)
    def back(kind):
        fill = {}; tm = {}
        if kind == 3:
            q = dma(sITA, tDMA)
            for j, f in enumerate(q): at(fill, int(cfg.FD0+cfg.FDS*j), f)
            at(fill, int(cfg.FD0+cfg.FDS*len(q)), lambda: tm.update(t=e.vmn))
        elif kind:
            at(fill, 0, lambda: e('s_waitcnt vmcnt(0)'))
            r = Rec(cfg.FSC); fin(r, kind-1); ch = r.chunks(e, cfg.FCH)
            for j, f in enumerate(ch): at(fill, 1+j, f)
        slot_free(e, cfg, R, fill, cfg.FSF, 47, 35)
        out_proj(e, R, lambda c,kk,t: wname(w2(c,kk,t)), 4, lambda u,kk: OB+16*u+4*kk, otok, ACC, PK, ST, '', fill)
        if kind == 3: e.wvm(tm['t'])
    for k_ in range(4):
        if k_: e.label(f'L_Fb{k_}'); e.vmn, e.vmdone, e.lgn, e.lgdone = st0
        back(k_)
        if k_ < 3: e(f's_branch {join}')
    e.label(join)
    ts = e.vmn; e.vmdone = ts - 1
    prof(e, cfg, 1)
    decide(e, vD, 40)
    e(f'v_xor_b32 v{vD}, 16, v{vD}\nv_xor_b32 v{vDW}, 16, v{vDW}')
    seq = e.lab('f')
    e(f's_cbranch_scc0 {seq}')
    st = (e.vmn, e.vmdone)
    prof(e, cfg, 2)
    k = {}
    front({cfg.FH[0]: lambda: (PUB(), RFL(), resl()), cfg.FH[1]: lambda: k.update(g=e.vm(grp_load(R))),
           cfg.FH[2]: lambda: (prof(e, cfg, 3), grp_wait(e, cfg, R, sCNT, 31, k['g']), prof(e, cfg, 4), k.update(t={}), k.update(q=rs_steps(e, R, LD, k['t'], 's34', 's35'))),
           'drip': lambda: k.get('q') and k['q'].pop(0)(),
           'end': lambda: ([f() for f in k['q']], prof(e, cfg, 5), rs_sum(e, R, k['t'], LD, Y))})
    e(f's_add_u32 {sPEND}, s13, 1\ns_bitcmp1_b32 {sW}, 0\ns_cselect_b32 {sPEND}, 0, {sPEND}')
    prof(e, cfg, 6); prof_flush(e, cfg, 7, sPF)
    e(f's_branch {top}')
    e.label(seq); e.vmn, e.vmdone = st
    prof(e, cfg, 2)
    PUB(); RFL()
    prof(e, cfg, 3)
    grp_wait(e, cfg, R, sCNT, 34)
    prof(e, cfg, 4)
    t_ = rs_loads(e, R, LD); resl()
    rs_sum(e, R, t_, LD, Y)
    e.ds0(); e('s_barrier')
    prof(e, cfg, 5)
    fin_now()
    prof(e, cfg, 6); prof_flush(e, cfg, 7, sPF)
    e(f's_cmp_ge_u32 {sITA}, 128\ns_cbranch_scc1 L_end')
    e.label('L_Fblock'); e.unknown()
    def fetch():
        got = e.lab('f')
        e(f's_cmp_eq_u32 {sPRE}, 1\ns_cbranch_scc1 {got}')
        poll(e, cfg, xpoll(sITA), ROW_TEST, 32)
        for f in dma(sITA, tL16): f()
        e.vm0(); e.label(got)
    odd(fetch)
    e('s_barrier')
    front({}); e(f's_mov_b32 {sPEND}, 0\ns_branch {top}')
    flush_cold(e); e.unknown()

def build(**kw):
    cfg = C()
    cfg.D = 10; cfg.A = 24; cfg.NGA = 3; cfg.KVF = 'sc1'
    cfg.RS_S = [0, 2, 4, 19, 25, 31, 37, 43, 49, 55]
    cfg.RS_L = [8, 15, 22, 28, 34, 40, 46, 52, 58, 60, 61, 62, 63, 66, 69, 72, 75, 78]
    cfg.RS_LB = {60: 1, 61: 2, 62: 0}
    cfg.PP = ['top','ag','qkv','sm','wo0','wo1','rs0','rs1']; cfg.SPAD = 256; cfg.FLAG = 6; cfg.RACK = 1; cfg.RDLY = 0; cfg.AACK = 0; cfg.ADLY = 0
    cfg.SPIN = 1 << 19; cfg.PROF = 0; cfg.FORCE = 0; cfg.PSLEEP = 1
    cfg.RFREE = 0; cfg.NOSTREAM = 0; cfg.NOKV = 0; cfg.ONLYR = 0; cfg.CPF = 0; cfg.NSL = 3; cfg.RNSL = 3; cfg.PAIR = 1; cfg.ADF = 'sc1'; cfg.AMF = 'sc1 nt'; cfg.FH = [3, 9, 13]; cfg.FD0 = 0; cfg.FDS = 2; cfg.FSC = True; cfg.FCH = 3; cfg.AP0 = 40; cfg.AP1 = 84; cfg.ARF = 128; cfg.ACH = 2; cfg.SINGLE = 1; cfg.ASF = 40; cfg.FSF = 18; cfg.AH = ['mid', 'p1']; cfg.AB1 = 3; cfg.ARES = 130; cfg.ABS = 3; cfg.AD1 = 8; cfg.AS0 = 85; cfg.AM0 = 80; cfg.AM1 = 118; cfg.NOPRE = 0; cfg.ADMA0 = 10; cfg.ADMAS = 2
    for k, v in kw.items(): setattr(cfg, k, v)
    e = E(); e.cold = []; WL.PROF = cfg.PROF
    e(f"""s_cmp_ge_u32 s2, 256
    s_cbranch_scc1 L_end
    s_load_dwordx16 s[36:51], s[0:1], 0
    s_load_dwordx8 s[52:59], s[0:1], 64
    s_load_dwordx2 s[60:61], s[0:1], 96
    s_getreg_b32 s3, hwreg(HW_REG_XCC_ID, 0, 4)
    {'s_memrealtime s[100:101]' if cfg.PROF else ''}
    v_lshrrev_b32 v1, 6, v0""")
    if cfg.CPF:
        e('s_getpc_b64 s[30:31]'); e.label('L_pc')
        e('v_lshlrev_b32 v2, 7, v0\ns_mov_b32 s32, L_codeend-L_pc-4')
        for j in range(4):
            e(f'v_min_u32 v3, s32, v2\nglobal_load_dword v{252+j}, v3, s[30:31]\nv_add_u32 v2, 32768, v2')
    e(f's_waitcnt lgkmcnt(0)\nv_readfirstlane_b32 {sW}, v1')
    srd(e, 4, P_WS); srd(e, 8, P_DBG)
    e(f"""s_lshr_b32 s30, s2, 4
    s_cmp_eq_u32 s30, 1
    s_cselect_b32 s30, -1, 0
    v_mov_b32 v4, s30
    v_mov_b32 v5, s30
    v_mov_b32 v6, s30
    v_mov_b32 v7, s30
    v_lshlrev_b32 v2, 4, v0
    s_lshl_b32 s31, s2, 12
    s_and_b32 s3, s3, 7
    buffer_store_dwordx4 v[4:7], v2, {WS}, s31 offen sc1
    s_mov_b32 {sGRP}, s3
    s_lshr_b32 {sH}, s2, 3
    s_mov_b32 {sMODE}, 0
L_dispatch:
    s_cmp_lt_u32 {sGRP}, 2
    s_cbranch_scc1 L_roleR""")
    if cfg.ONLYR: e.vm0(); arrive(e); e('s_endpgm')
    e(f"""s_cmp_eq_u32 {sGRP}, 2
    s_cbranch_scc1 L_roleK
    s_cmp_eq_u32 {sGRP}, 3
    s_cbranch_scc1 L_roleV
    s_cmp_eq_u32 {sGRP}, 4
    s_cbranch_scc1 L_roleQ""")
    group_ids(e, cfg.PAIR)
    e(f"""s_cmp_lt_u32 s71, {cfg.NGA}
    s_cbranch_scc1 L_roleA
    s_branch L_roleF
L_rank:
    v_and_b32 v1, 63, v0
    v_lshlrev_b32 v1, 2, v1
    buffer_load_dword v2, v1, {DBG}, 0 offen sc1
    s_mov_b32 {sH}, 0
    s_mov_b32 s31, 0
    s_waitcnt vmcnt(0)""")
    for b in range(4):
        e(f'v_bfe_u32 v{4+b}, v2, {8*b}, 3\nv_add_u32 v3, {b}, v1\nv_cmp_gt_u32 s[32:33], s2, v3\nv_cmp_eq_u32 vcc, s3, v{4+b}\ns_and_b64 vcc, vcc, s[32:33]\ns_bcnt1_i32_b64 s30, vcc\ns_add_u32 {sH}, {sH}, s30')
    for x in range(8):
        e('s_mov_b32 s34, 0')
        for b in range(4): e(f'v_cmp_eq_u32 vcc, {x}, v{4+b}\ns_bcnt1_i32_b64 s30, vcc\ns_add_u32 s34, s34, s30')
        e('s_xor_b32 s34, s34, 32\ns_or_b32 s31, s31, s34')
    if cfg.FORCE == 2: e('s_mov_b32 s31, 1')
    e(f"""s_mov_b32 {sMODE}, 1
    s_cmp_eq_u32 s31, 0
    s_cbranch_scc1 L_dispatch
    s_mov_b32 {sMODE}, 2
    s_lshr_b32 {sGRP}, s2, 5
    s_and_b32 {sH}, s2, 31
    s_branch L_dispatch
L_abort:
    s_lshl_b32 s30, {sGRP}, 16
    s_lshl_b32 s31, {sH}, 8
    s_or_b32 s29, s29, s30
    s_or_b32 s29, s29, s31
    v_mov_b32 v1, s29
    s_lshl_b32 s30, {sGRP}, 2
    s_add_u32 s30, s30, {F_ABORT}
    buffer_store_dword v1, off, {WS}, s30
L_end:
    s_endpgm""")
    role_R(e, cfg); role_F(e, cfg)
    for nm in 'KVQ': role_P(e, cfg, nm)
    role_A(e, cfg)
    e.label('L_codeend'); e('s_endpgm')
    head = open('cdna_kernels/'+NAME[:-7]+'.s.ref').read().split('; Override')[0] if cfg.__dict__.get('HEAD', 1) else ''
    return head + f"""; @launch grid=(256,1,1) block=(256,1,1) lds=163840
.amdgcn_target "amdgcn-amd-amdhsa--gfx950"
.text
.globl {NAME}
.p2align 8
.type {NAME},@function
{NAME}:
""" + e.text() + f""".section .rodata,"a"
.p2align 6
.amdhsa_kernel {NAME}
  .amdhsa_next_free_vgpr 512
  .amdhsa_next_free_sgpr 102
  .amdhsa_accum_offset 256
  .amdhsa_group_segment_fixed_size 0
  .amdhsa_kernarg_size 104
  .amdhsa_user_sgpr_count 2
  .amdhsa_user_sgpr_kernarg_segment_ptr 1
  .amdhsa_system_sgpr_workgroup_id_x 1
.end_amdhsa_kernel
"""

if __name__ == '__main__':
    kw = {}
    out = 'cdna_kernels/'+NAME[:-7]+'.s'
    for a in sys.argv[1:]:
        k, v = a.split('=', 1)
        if k == 'out': out = v
        else:
            try: kw[k] = eval(v)
            except Exception: kw[k] = v
    t = build(**kw)
    open(out, 'w').write(t)
    print(out, len(t), 'bytes', t.count('\n'), 'lines')
```

```python
import re

TRANS = ('v_exp_f32','v_log_f32','v_rcp_f32','v_rsq_f32','v_sqrt_f32','v_sin_f32','v_cos_f32')
REG_RE = re.compile(r'^(-|\|)?(abs\()?([vas])(\d+|\[(\d+):(\d+)\])\)?\|?$')

def parse_reg(tok):
    t = tok.strip()
    if t in ('vcc','vcc_lo','vcc_hi'): return [('s','vcc')]
    if t in ('exec','exec_lo','exec_hi'): return [('s','exec')]
    if t == 'm0': return [('s','m0')]
    m = REG_RE.match(t)
    if not m: return []
    k = m.group(3)
    if m.group(5) is not None:
        return [(k,i) for i in range(int(m.group(5)), int(m.group(6))+1)]
    return [(k,int(m.group(4)))]

def split_ops(s):
    out=[]; cur=''; depth=0
    for ch in s:
        if ch in '[(': depth+=1
        if ch in '])': depth-=1
        if ch==',' and depth==0:
            out.append(cur.strip()); cur=''
        else: cur+=ch
    if cur.strip(): out.append(cur.strip())
    return out

class Ins:
    __slots__=('text','op','kind','w','r','ws','srcC','srcAB','passes','dpp','target','store_data','lds_dma','is_label')
    def __init__(self, text):
        self.text=text; self.is_label=text.endswith(':')
        self.op=''; self.kind='other'; self.w=set(); self.r=set(); self.ws=1
        self.srcC=set(); self.srcAB=set(); self.passes=0; self.dpp=False; self.target=None
        self.store_data=set(); self.lds_dma=False
        if self.is_label or text.startswith('.') or text.startswith(';'):
            self.ws=0; self.kind='meta'; return
        body=text.split(';')[0].strip()
        p=body.split(None,1); op=p[0]; self.op=op
        rest=p[1] if len(p)>1 else ''
        ops=split_ops(rest)
        mods=''
        if ops:
            q=ops[-1].split(None,1)
            if len(q)>1 and not ops[-1].startswith('hwreg'):
                ops[-1]=q[0]; mods=q[1]
        R=[parse_reg(o) for o in ops]
        if op=='s_nop':
            self.ws=int(ops[0],0)+1; self.kind='salu'; return
        if op.startswith('v_mfma') or op.startswith('v_smfmac'):
            self.kind='mfma'; self.passes=8 if '32x32' in op else 4
            self.w=set(R[0]); self.srcAB=set(R[1])|set(R[2]); self.srcC=set(R[3])
            if op.startswith('v_smfmac'):
                self.srcAB|=set(R[3]); self.srcC=set(R[0])
            self.r=self.srcAB|self.srcC
            return
        if op.startswith('v_'):
            self.kind='valu'
            self.dpp=('row_' in mods or 'quad_perm' in mods or op.endswith('_dpp'))
            if 'permlane' in op and 'swap' in op:
                self.w=set(R[0])|set(R[1]); self.r=set(self.w); return
            nd=1
            if op.startswith(('v_add_co','v_sub_co','v_addc_co','v_subb_co','v_mad_u64')): nd=2
            for x in R[:nd]: self.w|=set(x)
            for x in R[nd:]: self.r|=set(x)
            if op.startswith(('v_fmac','v_dot2c','v_writelane')) or self.dpp: self.r|=set(R[0])
            return
        if op.startswith(('buffer_','global_')):
            self.kind='vmem'
            if op in ('buffer_wbl2','buffer_inv'): return
            lds=(' lds' in ' '+mods)
            if lds:
                self.lds_dma=True
                for x in R: self.r|=set(x)
                self.r.add(('s','m0'))
            elif 'load' in op:
                self.w=set(R[0])
                for x in R[1:]: self.r|=set(x)
                if 'd16' in op: self.r|=set(R[0])
            else:
                for x in R: self.r|=set(x)
                if 'atomic' in op and 'sc0' in mods: self.w=set(R[0])
                if 'dwordx4' in op or 'dwordx3' in op: self.store_data=set(R[0])
            return
        if op.startswith('ds_'):
            self.kind='ds'
            if op.startswith(('ds_read','ds_bpermute','ds_swizzle','ds_permute')):
                self.w=set(R[0])
                for x in R[1:]: self.r|=set(x)
            else:
                for x in R: self.r|=set(x)
            return
        if op.startswith('s_'):
            self.kind='salu'
            if op.startswith(('s_branch','s_cbranch')):
                self.target=ops[0]; return
            if op.startswith(('s_cmp','s_bitcmp','s_waitcnt','s_barrier','s_endpgm','s_sleep','s_setprio')):
                for x in R: self.r|=set(x)
                return
            if R:
                self.w=set(R[0])
                for x in R[1:]: self.r|=set(x)
                if 'saveexec' in op: self.w.add(('s','exec'))
            return
        raise ValueError('unknown instruction: '+text)

def isv(S): return {x for x in S if x[0] in 'va'}
def iss(S): return {x for x in S if x[0]=='s'}

def need(p, c):
    n=0
    if p.kind=='valu':
        wv=isv(p.w); wsg=iss(p.w)
        if wv:
            if c.kind=='mfma' and wv & c.r: n=max(n,2)
            if c.kind=='valu':
                if 'permlane' in c.op and wv & c.r: n=max(n,2)
                if c.dpp and wv & c.r: n=max(n,2)
                if c.op.startswith(('v_readlane','v_readfirstlane')) and wv & c.r: n=max(n,1)
                if p.op.replace('_e32','') in TRANS and wv & c.r: n=max(n,1)
        if wsg:
            if c.kind=='vmem' and wsg & c.r: n=max(n,5)
            if c.kind=='valu' and wsg & c.r:
                n=max(n,4 if c.op.startswith(('v_readlane','v_writelane')) else 2)
            if c.kind=='salu' and wsg & c.r: n=max(n,1)
    if p.kind=='mfma':
        big=p.passes==8
        if c.kind=='mfma':
            if p.w & c.srcAB: n=max(n,12 if big else 8)
            if p.w & c.srcC and not (p.w==c.srcC and p.passes==c.passes): n=max(n,10 if big else 6)
            if p.w & c.w and not (p.w & c.srcC): n=max(n,10 if big else 6)
        elif c.kind in ('valu','vmem','ds'):
            if p.w & (c.r|c.w): n=max(n,12 if big else 8)
            if c.kind=='valu' and p.srcC & c.w: n=max(n,7 if big else 3)
    if p.kind=='vmem' and p.store_data:
        if p.store_data & c.w: n=max(n,2 if c.kind in('valu','mfma') else 1)
    if p.kind=='salu' and ('s','m0') in p.w and c.lds_dma: n=max(n,1)
    return n

WIN=14
def fix_hazards(lines):
    ins=[Ins(l) for l in lines]
    out=[]
    def deficit(prev, c, keep=None):
        d=0; dist=0; fol=[]; after=None
        for ip, p in enumerate(reversed(prev)):
            if dist>=WIN: break
            if p.op in ('s_branch','s_endpgm') and not (keep is not None and p is keep): break
            if p.kind!='meta':
                r=need(p,c)
                eff=dist
                if p.kind=='mfma' and len(fol)>=2:
                    chain=[p.passes]+fol[::-1]
                    eff=max(eff, sum(chain[:len(fol)-1])+after)
                if r>eff: d=max(d,r-eff)
            if p.kind=='mfma':
                if after is None: after=dist
                fol.append(p.passes)
            dist+=p.ws
        return d
    for c in ins:
        if c.kind!='meta':
            d=deficit(out[-40:],c)
            if d>0:
                out.append(Ins(f's_nop {d-1}'))
        out.append(c)
    changed=True
    while changed:
        changed=False
        labels={x.text[:-1]:i for i,x in enumerate(out) if x.is_label}
        for i,b in enumerate(out):
            if b.target and b.target in labels:
                j=labels[b.target]
                prev=out[max(0,i-40):i+1]
                dist=0; k=j+1; worst=0
                seq=list(prev)
                while k<len(out) and dist<WIN:
                    c=out[k]
                    if c.kind!='meta':
                        d=deficit(seq,c,b)
                        if d>0: worst=d; break
                        if c.op in('s_branch','s_endpgm'): break
                    seq.append(c); dist+=c.ws; k+=1
                if worst:
                    out.insert(j+1, Ins(f's_nop {worst-1}')); changed=True; break
    return [x.text for x in out]

class E:
    def __init__(self):
        self.L=[]; self.nl=0
        self.vmn=0; self.vmdone=0
        self.lgn=0; self.lgdone=0
    def __call__(self, s):
        for l in s.split('\n'):
            l=l.split(';')[0].strip() if not l.strip().startswith('.') else l.strip()
            if l: self.L.append(l)
    def lab(self, p='L'):
        self.nl+=1; return f'{p}{self.nl}'
    def label(self, n): self.L.append(n+':')
    def vm(self, s):
        self(s); self.vmn+=1; return self.vmn
    def ds(self, s):
        self(s); self.lgn+=1; return self.lgn
    def wvm(self, tok=None):
        if tok is None: tok=self.vmn
        if tok<=self.vmdone: return
        n=self.vmn-tok
        assert n<=63, n
        self(f's_waitcnt vmcnt({n})'); self.vmdone=tok
    def wds(self, tok=None):
        if tok is None: tok=self.lgn
        if tok<=self.lgdone: return
        n=min(self.lgn-tok,15)
        self(f's_waitcnt lgkmcnt({n})'); self.lgdone=self.lgn-n
    def vm0(self):
        self('s_waitcnt vmcnt(0)'); self.vmdone=self.vmn
    def ds0(self):
        self('s_waitcnt lgkmcnt(0)'); self.lgdone=self.lgn
    def unknown(self):
        self.vmdone=self.vmn; self.lgdone=self.lgn
    def unknown_vm(self):
        self.vmdone=self.vmn
    def text(self):
        return '\n'.join(fix_hazards(self.L))+'\n'

def vr(i,n=4): return f'v[{i}:{i+n-1}]' if n>1 else f'v{i}'
def ar(i,n=4): return f'a[{i}:{i+n-1}]' if n>1 else f'a{i}'
```

```python
import sys, struct, math
sys.path.insert(0, 'gen')
from emit import *

NAME = 'interleave_layers__memory_aug_recurrent_mem_tr__dense_activation_silu__prompt_kernel'
MB = 1 << 20
class C: pass
def f2u(x): return struct.unpack('<I', struct.pack('<f', x))[0]

F_P3, F_R, F_PS, F_XN, F_XN1, F_ABORT, F_DUMMY = 0xC0000, 16384, 8192, 1*MB, 1*MB+512*1024, 0xF000, 0xC000
OFF_AG, OFF_RSR = 0x10000, 0x20000
OFF_XN, OFF_XN1, OFF_X1, OFF_X2, OFF_WSR, OFF_RSP = 3*MB, 9*MB, 15*MB, 21*MB, 24*MB, 34*MB
OFF_KF, OFF_VF, OFF_QF, OFF_MM, OFF_PROF = 64*MB, 96*MB, 128*MB, 160*MB, 200*MB
ITEM = 40960
RSP_ROW = 16*1280
RSP_SLOT = 32*RSP_ROW
WS='s[4:7]'; DBG='s[8:11]'
P_X,P_MEM,P_WQ,P_WK,P_WV,P_WO,P_W1,P_W2,P_OUT,P_DBG,P_WS = 0,1,2,3,4,5,8,9,10,11,12
SZ = {P_X:2048*1280, P_MEM:8*1280, P_WQ:640*8192, P_WK:640*8192, P_WV:640*8192, P_WO:4096*1280,
      P_W1:640*3456, P_W2:1728*1280, P_OUT:2048*1280, P_DBG:256, P_WS:256*MB}
sH, sW, sMODE, sGRP = 's24','s25','s26','s27'
MF = 'v_mfma_f32_16x16x32_bf16'
MF16 = 'v_mfma_f32_16x16x16_bf16'
SMF = 'v_smfmac_f32_16x16x64_bf16'
MF32 = 'v_mfma_f32_32x32x16_bf16'
CSC = (128 ** -0.5) * math.log2(math.e)
OOB = 0x40000000
NEG = 0xf149f2ca

def srd(e, base, p):
    e(f's_mov_b32 s{base}, s{36+2*p}\ns_mov_b32 s{base+1}, s{37+2*p}\ns_mov_b32 s{base+2}, {SZ[p]}\ns_mov_b32 s{base+3}, 0x20000')
def mask64(e, s, val):
    e(f's_mov_b32 s{s}, {val & 0xffffffff:#x}\ns_mov_b32 s{s+1}, {val >> 32:#x}')
def lanemask(fn): return sum(1 << l for l in range(64) if fn(l))
def sp(s): return f's[{s}:{s+1}]'

def spin_tail(e, cfg, loop, code, cnt='s28'):
    e(f's_add_u32 {cnt}, {cnt}, 1\ns_cmp_lt_u32 {cnt}, {cfg.SPIN}\ns_cbranch_scc1 {loop}\ns_mov_b32 s29, {code}\ns_branch L_abort')

def arrive(e):
    l = e.lab('ar')
    e(f's_barrier\ns_cmp_lg_u32 {sW}, 0\ns_cbranch_scc1 {l}\ns_or_b32 s33, s3, 0x80\nv_mov_b32 v7, s33\ns_mov_b64 exec, 1\nbuffer_store_byte v7, off, {DBG}, s2 sc1\ns_mov_b64 exec, -1')
    e.label(l)

STD = ((8, 16), list(range(8)))
class WL:
    PROF = 0
    def __init__(s, e, lane, lbase, piece, land, tmp, nsl=3):
        s.e=e; s.lane=lane; s.lbase=lbase; s.piece=piece; s.land=land; s.tmp=tmp; s.nsl=nsl
    def f(s, row): return (row & 15)*256 + (row >> 4)*s.piece
    def src(s, v, stride, sbase, gather):
        e = s.e; L = s.lane
        e(f'v_lshrrev_b32 v{v}, 4, v{L}\ns_lshl_b32 s30, {sW}, 4\nv_add_u32 v{v}, s30, v{v}\nv_mul_u32_u24 v{v}, {stride}, v{v}')
        if gather: e(f'v_bfe_u32 v{s.tmp}, v{L}, 2, 2\nv_mul_u32_u24 v{s.tmp}, 320, v{s.tmp}\nv_add_u32 v{v}, v{v}, v{s.tmp}\nv_and_b32 v{s.tmp}, 3, v{L}')
        else: e(f'v_and_b32 v{s.tmp}, 15, v{L}')
        e(f'v_lshl_add_u32 v{v}, v{s.tmp}, 4, v{v}\nv_add_u32 v{v}, {sbase}, v{v}')
        return (v, stride)
    def rows(s, v, mapping):
        e = s.e; L = s.lane; g, offs = mapping
        e(f"""v_bfe_u32 v{v}, v{L}, 4, 1
        v_mul_u32_u24 v{v}, {s.f(g[0])}, v{v}
        v_bfe_u32 v{v+1}, v{L}, 5, 1
        v_mul_u32_u24 v{v+1}, {s.f(g[1])}, v{v+1}
        v_add_u32 v{v}, v{v}, v{v+1}
        v_and_b32 v{v+1}, 15, v{L}
        v_lshl_add_u32 v{v}, v{v+1}, 2, v{v}
        s_lshl_b32 s30, {sW}, 6
        s_add_u32 s30, s30, {s.lbase}
        v_add_u32 v{v}, s30, v{v}
        v_add_u32 v{v+1}, {2*s.piece}, v{v}""")
        return (v, offs)
    def run(s, slabs, first=None):
        e = s.e
        e(f's_mov_b32 s31, 0x05040100\ns_mov_b32 s32, 0x07060302\ns_mul_i32 s34, {sW}, {s.piece}\ns_add_u32 s34, s34, {s.lbase}')
        tok = {}
        def issue(p):
            sr, (v, stride), so, _, _ = slabs[p]
            for j in range(4):
                e(f's_add_u32 m0, s34, {(p % s.nsl)*4096 + j*1024}\ns_mov_b32 s30, {so + 4*j*stride}')
                tok[p] = e.vm(f'buffer_load_dwordx4 v{v}, {sr}, s30 offen lds')
        for p in range(min(s.nsl-1, len(slabs))): issue(p)
        for p in range(len(slabs)):
            e.wvm(tok[p])
            if WL.PROF and p % (len(slabs)//5) == 0: e(f's_memrealtime s[{80+2*(p//(len(slabs)//5))}:{81+2*(p//(len(slabs)//5))}]')
            if p == 0 and first: first()
            else: e('s_barrier')
            if p + s.nsl - 1 < len(slabs): issue(p + s.nsl - 1)
            v, offs = slabs[p][3]
            rt = []
            for c in range(2):
                for jj in range(4):
                    o = [(s.f(offs[2*jj+x]) + (p % s.nsl)*4096)//256 for x in range(2)]
                    assert max(o) < 256
                    t = e.ds(f'ds_read2st64_b32 {vr(s.land+8*c+2*jj,2)}, v{v+c} offset0:{o[0]} offset1:{o[1]}')
                rt.append(t)
            for c in range(2):
                e.wds(rt[c]); b = s.land + 8*c
                for t in range(2):
                    d = slabs[p][4][c][t]
                    o = d[1] if d[0] == 'v' else s.tmp + 4*t
                    for jj in range(4): e(f'v_perm_b32 v{o+jj}, v{b+2*jj+1}, v{b+2*jj}, s{31+t}')
                for t in range(2):
                    d = slabs[p][4][c][t]; o = s.tmp + 4*t
                    if d[0] == 'a':
                        for jj in range(4): e(f'v_accvgpr_write_b32 a{d[1]+jj}, v{o+jj}')
                    elif d[0] == 'lds': e.ds(f'ds_write_b128 v{d[1]}, {vr(o)} offset:{d[2]}')
                    elif d[0] == 'ws':
                        e(f's_add_u32 s33, {d[2]}, {d[3]}')
                        e.vm(f'buffer_store_dwordx4 {vr(o)}, v{d[1]}, {WS}, s33 offen')
        e.vm0(); e.ds0(); e('s_barrier')
    def lanes32(s, v, vtype, rowbytes, wavebytes):
        e = s.e; L = s.lane
        if vtype: e(f'v_and_b32 v{v}, 15, v{L}\nv_bfe_u32 v{v+1}, v{L}, 4, 1\nv_lshl_add_u32 v{v}, v{v}, 1, v{v+1}')
        else: e(f'v_and_b32 v{v}, 19, v{L}\nv_bfe_u32 v{v+1}, v{L}, 2, 1\nv_lshl_add_u32 v{v}, v{v+1}, 3, v{v}\nv_bfe_u32 v{v+1}, v{L}, 3, 1\nv_lshl_add_u32 v{v}, v{v+1}, 2, v{v}')
        e(f"""v_and_b32 v{v+1}, 1, v{v}
        v_mul_u32_u24 v{v+1}, 0x0202, v{v+1}
        v_mul_u32_u24 v{v+1}, 0x10001, v{v+1}
        v_add_u32 v{v+1}, 0x05040100, v{v+1}
        v_lshrrev_b32 v{v}, 1, v{v}
        v_lshlrev_b32 v{v}, 2, v{v}
        v_lshrrev_b32 v{s.tmp}, 5, v{L}
        v_mul_u32_u24 v{s.tmp}, {8*rowbytes}, v{s.tmp}
        v_add_u32 v{v}, v{v}, v{s.tmp}
        s_mul_i32 s30, {sW}, {wavebytes}
        v_add_u32 v{v}, s30, v{v}""")
    def frags32(s, jobs, vsel):
        e = s.e; rt = {}
        def rd(k):
            va, o = jobs[k][0]()
            for jj in range(4): rt[k] = e.ds(f'ds_read2st64_b32 {vr(s.land+8*(k%2)+2*jj,2)}, v{va} offset0:{o[2*jj]} offset1:{o[2*jj+1]}')
        rd(0); rd(1)
        for k in range(len(jobs)):
            e.wds(rt[k]); b = s.land + 8*(k % 2); d = jobs[k][1]
            o = d[1] if d[0] == 'v' else s.tmp
            for jj in range(4): e(f'v_perm_b32 v{o+jj}, v{b+2*jj+1}, v{b+2*jj}, v{vsel}')
            if k + 2 < len(jobs): rd(k + 2)
            if d[0] == 'a':
                for jj in range(4): e(f'v_accvgpr_write_b32 a{d[1]+jj}, v{o+jj}')
    def cols32(s, sr, src, nslab, dst, va, vtype, first=None):
        e = s.e; v, stride = src
        s.lanes32(va, vtype, 256, 64)
        e(f's_mul_i32 s34, {sW}, {s.piece}')
        tok = {}
        def issue(p):
            for j in range(4):
                e(f's_add_u32 m0, s34, {(p % s.nsl)*4096 + j*1024}\ns_mov_b32 s30, {(64*p + 4*j)*stride}')
                tok[p] = e.vm(f'buffer_load_dwordx4 v{v}, {sr}, s30 offen lds')
        for p in range(s.nsl-1): issue(p)
        for p in range(nslab):
            e.wvm(tok[p])
            if p == 0 and first: first()
            else: e('s_barrier')
            if p + s.nsl - 1 < nslab: issue(p + s.nsl - 1)
            s.frags32([((lambda q=q: (va, [(q*s.piece + (p % s.nsl)*4096)//256 + j for j in range(8)])), dst(4*p+q)) for q in range(4)], va+1)
        e.vm0(); e.ds0(); e('s_barrier')
    def rows32(s, sr, sbase, nk, dst, va, first=None):
        e = s.e; L = s.lane
        s.lanes32(va, False, 1280, 320)
        e(f'v_lshlrev_b32 v{va+2}, 4, v{L}\ns_mul_i32 s34, {sW}, 10240\ns_add_u32 s35, s34, {sbase}')
        tok = {}
        def issue(p):
            for j in range(10):
                if j % 4 == 0: e(f's_add_u32 m0, s34, {(p % 3)*40960 + j*1024}\ns_add_u32 s30, s35, {p*40960 + j*1024}')
                tok[p] = e.vm(f'buffer_load_dwordx4 v{va+2}, {sr}, s30 offen offset:{(j%4)*1024} lds')
        for p in range(2): issue(p)
        for p in range(nk):
            e.wvm(tok[p])
            if p == 0 and first: first()
            else: e('s_barrier')
            if p + 2 < nk: issue(p + 2)
            def addr(c, q):
                if q == 0: e(f'v_add_u32 v{va+3}, {(p % 3)*40960 + c*64}, v{va}')
                return (va+3, [80*q + 5*j for j in range(8)])
            s.frags32([((lambda c=c, q=q: addr(c, q)), dst(c, 2*p+q)) for c in range(5) for q in range(2)], va+1)
        e.vm0(); e.ds0(); e('s_barrier')

def sync_start(e, cfg, a=12):
    lp = e.lab('sy'); ok = e.lab('sy'); done = e.lab('sy')
    e(f's_mov_b32 s28, 0\nv_and_b32 v{a}, 63, v0\nv_lshlrev_b32 v{a}, 2, v{a}\ns_mov_b32 s30, 0x80808080')
    e.label(lp)
    e(f'buffer_load_dword v{a+1}, v{a}, {DBG}, 0 offen sc1\ns_waitcnt vmcnt(0)\nv_and_b32 v{a+2}, s30, v{a+1}\nv_cmp_ne_u32 vcc, s30, v{a+2}\ns_cbranch_vccz {ok}\ns_sleep 2')
    spin_tail(e, cfg, lp, 1)
    e.label(ok)
    e(f's_cmp_lg_u32 {sMODE}, 0\ns_cbranch_scc1 {done}\nv_mov_b32 v{a+3}, 0')
    for b in range(4): e(f'v_bfe_u32 v{a+2}, v{a+1}, {8*b}, 3\nv_lshlrev_b32 v{a+2}, v{a+2}, 1\nv_or_b32 v{a+3}, v{a+3}, v{a+2}')
    e(f'v_mov_b32 v{a+2}, v{a+3} quad_perm:[1,0,3,2] row_mask:0xf bank_mask:0xf\nv_or_b32 v{a+3}, v{a+3}, v{a+2}\nv_cmp_ne_u32 vcc, 0xff, v{a+3}')
    if cfg.FORCE: e('s_branch L_rank')
    e(f's_cbranch_vccnz L_rank\ns_mov_b32 {sMODE}, 1')
    e.label(done)
    if cfg.PROF:
        pf_base(e, 's32')
        e(f's_memrealtime s[30:31]\ns_add_u32 s32, s32, {127*64}\ns_waitcnt lgkmcnt(0)\nv_mov_b32 v{a}, s100\nv_mov_b32 v{a+1}, s30\nbuffer_store_dwordx2 {vr(a,2)}, off, {WS}, s32\ns_waitcnt vmcnt(0)')
        for i in range(5): e(f'v_mov_b32 v{a}, s{80+2*i}\nbuffer_store_dword v{a}, off, {WS}, s32 offset:{8+4*i}')
        e('s_waitcnt vmcnt(0)')
    e.unknown()

def two_modes(e, name, body):
    e(f's_cmp_eq_u32 {sMODE}, 1\ns_cbranch_scc0 L_{name}_slow')
    body('', name + 'f'); e.unknown()
    e.label(f'L_{name}_slow')
    body('sc1', name + 's'); e.unknown()

class Stream:
    def __init__(s, e, bufs, loads, n=4):
        s.e=e; s.bufs=bufs; s.loads=loads; s.next=0; s.tok={}; s.n=n
    def issue(s):
        if s.next < len(s.loads):
            k=s.next; s.tok[k]=s.loads[k](s.bufs[k % len(s.bufs)]); s.next+=1
    def prime(s, n=None):
        for _ in range(len(s.bufs) if n is None else n): s.issue()
    def get(s, k):
        t = s.tok[k]
        if t is not None: (s.e.wds if t[0]=='ds' else s.e.wvm)(t[1])
        return vr(s.bufs[k % len(s.bufs)], s.n)

def xlane(e, op, v, t):
    for sw in ('v_permlane32_swap_b32', 'v_permlane16_swap_b32'):
        e(f'v_mov_b32 v{t}, v{v}\n{sw} v{v}, v{t}\n{op} v{v}, v{v}, v{t}')
def mk_sel(e, d, lane16, t, smask):
    e(f'v_and_b32 v{t}, 16, v{lane16}\nv_mov_b32 v{d}, 0x3f80\nv_lshlrev_b32 v{t}, v{t}, v{d}')
    for jj in range(4): e(f'v_cndmask_b32 v{d+jj}, 0, v{t}, {sp(smask+2*jj)}')
def sel_masks(e, smask, fn):
    for jj in range(4): mask64(e, smask+2*jj, lanemask(lambda l: fn(l) == jj))

def dummy_addr(e, d):
    e(f's_lshl_b32 {d}, {sGRP}, 5\ns_add_u32 {d}, {d}, {sH}\ns_lshl_b32 {d}, {d}, 2\ns_add_u32 {d}, {d}, {sW}\ns_lshl_b32 {d}, {d}, 2\ns_add_u32 {d}, {d}, {F_DUMMY}')
def pf_base(e, s):
    e(f's_lshl_b32 {s}, {sGRP}, 5\ns_add_u32 {s}, {s}, {sH}\ns_lshl_b32 {s}, {s}, 2\ns_add_u32 {s}, {s}, {sW}\ns_lshl_b32 {s}, {s}, 13\ns_add_u32 {s}, {s}, {OFF_PROF}')
def prof(e, cfg, idx):
    if cfg.PROF: e(f's_memtime s[{36+2*idx}:{37+2*idx}]')
def prof_flush(e, cfg, n, sbase, va=6, vd=7):
    if not cfg.PROF: return
    e('s_memrealtime s[58:59]\ns_waitcnt lgkmcnt(0)'); e.lgdone = e.lgn
    for i in range(n): e(f'v_writelane_b32 v{vd}, s{36+2*i}, {i}')
    e(f'v_writelane_b32 v{vd}, s58, 15\nv_mbcnt_lo_u32_b32 v{va}, -1, 0\nv_lshlrev_b32 v{va}, 2, v{va}\ns_mov_b64 exec, 0xffff')
    e.vm(f'buffer_store_dword v{vd}, v{va}, {WS}, {sbase} offen')
    e(f's_mov_b64 exec, -1\ns_add_u32 {sbase}, {sbase}, 64')

def unpk(line):
    import re
    m = re.match(r'v_pk_(add|mul|fma)_f32 (.*)', line)
    if not m: return [line]
    body = m.group(2); hi = None
    if ' op_sel_hi:' in body:
        body, h = body.split(' op_sel_hi:'); hi = eval(h.split()[0])
    ops = [int(re.match(r'v\[(\d+):', o.strip()).group(1)) for o in body.split(',')]
    hi = hi or [1]*(len(ops)-1)
    return [f'v_{m.group(1)}_f32 ' + ', '.join(f'v{r + (k if (i == 0 or hi[i-1]) else 0)}' for i, r in enumerate(ops)) for k in (0, 1)]
class Rec:
    def __init__(s, scalar=True): s.ops = []; s.n = 0; s.scalar = scalar
    def __call__(s, t):
        for l in t.split('\n'):
            if l.strip():
                for x in (unpk(l.strip()) if s.scalar else [l.strip()]): s.ops.append(('i', x))
    def vm(s, t): s.n += 1; s.ops.append(('vm', t, s.n)); return s.n
    def ds(s, t): s.n += 1; s.ops.append(('ds', t, s.n)); return s.n
    def wds(s, k): s.ops.append(('wds', k))
    def wvm(s, k): s.ops.append(('wvm', k))
    def chunks(s, e, size=2):
        m = {}; s.tok = m
        def play(ops):
            def f():
                for o in ops:
                    if o[0] == 'i': e(o[1])
                    elif o[0] == 'vm': m[o[2]] = e.vm(o[1]); m['last'] = m[o[2]]
                    elif o[0] == 'ds': m[o[2]] = e.ds(o[1])
                    elif o[0] == 'wds': e.wds(m[o[1]])
                    else: e.wvm(m[o[1]])
            return f
        out = []; cur = []; atomic = False
        for o in s.ops:
            if o[0] == 'i' and o[1].startswith('s_mov_b32 exec_hi, 0'): atomic = True
            cur.append(o)
            if o[0] == 'i' and o[1].startswith('s_mov_b32 exec_hi, -1'): atomic = False
            dep = o[0] == 'i' and ('row_ror' in o[1] or 'permlane' in o[1] or o[1].startswith('v_mov_b32') or o[1].startswith('v_rsq'))
            if not atomic and (len(cur) >= size or dep or o[0] == 'vm'): out.append(play(cur)); cur = []
        if cur: out.append(play(cur))
        return out

def op_cost(o, prev):
    if o[0] == 'vm': return 22 if 'store' in o[1] else 8
    if o[0] == 'ds': return 16 if 'write_b128' in o[1] else 4
    if o[0] != 'i': return 4
    t = o[1]
    c = 8 if ('permlane' in t or t.split()[0] in TRANS) else 4
    if not Red.onepass and prev and ('row_ror' in t or 'permlane' in t) and prev[0] == 'i' and prev[1].startswith('v_') and 'permlane' not in prev[1]: c += 8
    return c
def spread(e, rec, fill, cost, p0, budget):
    m = {}; rec.tok = m
    def play(ops):
        def f():
            for o in ops:
                if o[0] == 'i': e(o[1])
                elif o[0] == 'vm': m[o[2]] = e.vm(o[1]); m['last'] = m[o[2]]
                elif o[0] == 'ds': m[o[2]] = e.ds(o[1])
                elif o[0] == 'wds': e.wds(m[o[1]])
                else: e.wvm(m[o[1]])
        return f
    p = p0; cur = []; used = cost.get(p, 0); atomic = False
    for o in rec.ops:
        c = op_cost(o, cur[-1] if cur else None)
        while not atomic and used + c > budget and (cur or used):
            if cur: at(fill, p, play(cur))
            cur = []; p += 1; used = cost.get(p, 0); c = op_cost(o, None)
        if o[0] == 'wds' and len(m) == 0 and cur and cur[-1][0] == 'ds':
            at(fill, p, play(cur)); cur = []; p += 4; used = cost.get(p, 0)
        if o[0] == 'i' and o[1].startswith('s_mov_b32 exec_hi, 0'): atomic = True
        cur.append(o); used += c
        if o[0] == 'i' and o[1].startswith('s_mov_b32 exec_hi, -1'): atomic = False
    at(fill, p, play(cur))
    return p

def run(fill, i):
    for f in fill.pop(i, []): f()
def drain(fill):
    for i in sorted(fill):
        for f in fill[i]: f()
    fill.clear()
def at(fill, i, f): fill.setdefault(i, []).append(f)

def role_R(e, cfg):
    vL16, vIDX, vW, vSW, vSR, vPW, vPX, vPM, vRS, vAG = 0, 1, 2, 3, 4, 5, 8, 9, 10, 11
    SELT, KX, VX, P, WV = 12, 16, 24, 32, 96
    VXN = VX
    if cfg.VDB: VXN = 96; WV = 104
    NB = 4
    XB = [P+8*i for i in range(NB)]; MBUF = [P+32, P+36]; ACC = P+48; VA = [P+40, P+44]
    L_S, L_P, L_O, L_W = 0, 5888, 0, 8192
    SROW = 176; SWV = 8*SROW; NLMAX = 19; mVAL = 94
    cls = ['r']*80
    for n in cfg.RS_S: cls[n] = 's'
    for n in cfg.RS_L: assert cls[n] == 'r'; cls[n] = 'l'
    loc = {}; nr=nl=ns=0; ext = []
    for n in range(80):
        if cls[n]=='r': loc[n] = ('a',8*nr) if nr < 32 else ('v', WV+8*(nr-32)); nr+=1
        elif cls[n]=='l': loc[n]=('l',nl); nl+=1; ext.append(n)
        else: loc[n]=('s',ns); ns+=1; ext.append(n)
    assert nr <= (51 if cfg.VDB else 52) and nl <= NLMAX, (nr, nl, ns)
    chain = [[] for _ in range(NB)]
    for k, n in enumerate(cfg.RS_S): chain[k % 3].append(n)
    for n in cfg.RS_L: chain[cfg.RS_LB.get(n, 3)].append(n)
    for c_ in chain: c_.sort()
    bufof = {n: j for j in range(NB) for n in chain[j]}

    NS = ns
    sT, sPAR, sAGR, sAGW, sAG0, sWSR, sRSS, sRSL, sU, sMM, sKV, sN, sFL, sFR, sPF, sAGL = ['s%d' % i for i in range(62, 78)]
    sC = 78; mLO, mM, mHI, mSEL = 80, 82, 92, 84
    e.label('L_roleR')
    e('v_and_b32 v1, 63, v0')
    wl = WL(e, 1, L_W, NLMAX*2048, 16, 32, cfg.RNSL)
    e(f's_lshl_b32 s33, {sH}, 8'); sq = wl.src(8, 8192, 's33', False)
    e(f's_mul_i32 s33, {sH}, {128*1280}'); so = wl.src(9, 1280, 's33', True)
    rq = wl.rows(10, ((2, 1), [0,4,16,20,8,12,24,28])); ro = wl.rows(12, ((4, 16), [0,1,8,9,2,3,10,11]))
    srd(e,12,P_WQ); srd(e,16,P_WK); srd(e,20,P_WV); srd(e,96,P_WO)
    e(f"""v_lshlrev_b32 v6, 4, v1
    s_mul_i32 s33, {sW}, {NLMAX*2048}
    s_add_u32 s33, s33, {L_W}
    v_add_u32 v{vW}, s33, v6
    s_lshl_b32 {sWSR}, {sGRP}, 5
    s_add_u32 {sWSR}, {sWSR}, {sH}
    s_lshr_b32 {sWSR}, {sWSR}, {cfg.SHARE}
    s_lshl_b32 {sWSR}, {sWSR}, 2
    s_add_u32 {sWSR}, {sWSR}, {sW}
    s_mul_i32 {sWSR}, {sWSR}, {NS*2048}
    s_add_u32 {sWSR}, {sWSR}, {OFF_WSR}""")
    HOLD = 40
    def dst(n, c):
        k, i = loc[n]
        if k in 'av': return (k, i+4*c)
        if k == 'l': return ('lds', vW, i*2048+c*1024) if i >= 6 else ('v', HOLD+8*i+4*c)
        return ('ws', 6, sWSR, i*2048+c*1024)
    slabs = []
    for B in range(10):
        for x, sr in enumerate(('s[12:15]', 's[16:19]', 's[20:23]')):
            slabs.append((sr, sq, B*64*8192, rq, [(dst(6*B+2*x, c), dst(6*B+2*x+1, c)) for c in range(2)]))
    for k in range(2):
        for c5 in range(5): slabs.append(('s[96:99]', so, k*64*1280 + c5*64, ro, [(dst(60+4*c5+2*k, c), dst(61+4*c5+2*k, c)) for c in range(2)]))
    wl.run(slabs, first=lambda: arrive(e))
    for i in range(12): e.ds(f'ds_write_b128 v{vW}, {vr(HOLD+4*i)} offset:{i*1024}')
    e.ds0()
    sync_start(e, cfg)
    srd(e,12,P_MEM)
    e(f's_lshl_b32 {sAGL}, {sW}, 11\ns_add_u32 {sAGL}, {sAGL}, 2048')
    mask64(e, mLO, lanemask(lambda l: (l & 15) < 8))
    mask64(e, mHI, lanemask(lambda l: (l & 15) >= 8))
    mask64(e, mM, lanemask(lambda l: (l & 15) < 8 and l >= 32))
    mask64(e, mVAL, lanemask(lambda l: (l & 15) < 10))
    e(f"""v_and_b32 v6, 63, v0
    v_lshlrev_b32 v{vL16}, 4, v6
    v_lshrrev_b32 v7, 4, v6
    v_and_b32 v32, 7, v6
    v_mov_b32 v33, 0x4444
    v_mov_b32 v34, 0xeeee
    v_cndmask_b32 v{vIDX}, v34, v33, {sp(mLO)}
    v_lshlrev_b32 v{vPX}, 7, v7
    v_lshl_add_u32 v{vPX}, v32, 4, v{vPX}
    v_and_b32 v33, 1, v7
    v_lshlrev_b32 v{vPM}, 6, v33
    v_lshl_add_u32 v{vPM}, v32, 3, v{vPM}
    s_mul_i32 s33, {sW}, {SWV}
    s_add_u32 s33, s33, {L_S}
    v_mul_u32_u24 v{vSW}, {SROW}, v32
    v_add_u32 v48, s33, v{vSW}
    v_lshl_add_u32 v{vSW}, v7, 4, v48
    s_lshl_b32 s33, {sW}, 1
    v_add_u32 v34, s33, v33
    v_and_b32 v35, 15, v6
    v_mul_u32_u24 v{vSR}, {SROW}, v34
    v_cmp_gt_u32 vcc, 10, v35
    v_cndmask_b32 v36, 0, v35, vcc
    v_lshl_add_u32 v{vSR}, v36, 4, v{vSR}
    v_add_u32 v{vSR}, {L_S}, v{vSR}
    v_and_b32 v36, 3, v6
    v_bfe_u32 v37, v6, 2, 1
    v_lshlrev_b32 v{vPW}, 7, v36
    v_lshl_add_u32 v{vPW}, v34, 4, v{vPW}
    v_lshl_add_u32 v{vPW}, v37, 3, v{vPW}
    v_lshlrev_b32 v38, 6, v36
    v_lshl_add_u32 v38, v34, 3, v38
    v_add_u32 v38, 512, v38
    v_cmp_gt_u32 vcc, 8, v35
    v_cndmask_b32 v{vPW}, v38, v{vPW}, vcc
    v_mov_b32 v38, 768
    v_cmp_gt_u32 vcc, 10, v35
    v_cndmask_b32 v{vPW}, v38, v{vPW}, vcc
    v_lshrrev_b32 v38, 5, v6
    v_lshlrev_b32 v{vRS}, 13, v38
    v_and_b32 v39, 31, v6
    v_lshl_add_u32 v{vRS}, v39, 3, v{vRS}
    v_lshlrev_b32 v{vAG}, 7, v33
    v_lshl_add_u32 v{vAG}, v38, 6, v{vAG}
    v_lshl_add_u32 v{vAG}, v36, 4, v{vAG}
    v_lshl_add_u32 v{vAG}, v37, 3, v{vAG}
    s_lshl_b32 {sU}, {sW}, 5
    s_add_u32 {sU}, {sU}, {sH}
    v_lshl_add_u32 v39, v38, 2, v36
    v_mul_u32_u24 v39, 1280, v39
    v_lshl_add_u32 v39, v33, 5, v39
    v_lshl_add_u32 v39, v37, 2, v39
    s_lshr_b32 s33, {sU}, 1
    s_lshl_b32 s33, s33, 6
    s_and_b32 s34, {sU}, 1
    s_lshl_b32 s34, s34, 1
    s_add_u32 s33, s33, s34
    buffer_load_ushort v40, v39, s[12:15], s33 offen
    buffer_load_ushort v41, v39, s[12:15], s33 offen offset:16
    buffer_load_ushort v42, v39, s[12:15], s33 offen offset:8
    buffer_load_ushort v43, v39, s[12:15], s33 offen offset:24
    s_mul_i32 s33, {sGRP}, {40*8192}
    s_add_u32 s33, s33, {OFF_RSR}
    s_mul_i32 {sRSS}, {sW}, {10*8192}
    s_lshl_b32 s34, {sH}, 8
    s_add_u32 {sRSS}, {sRSS}, s34
    s_add_u32 {sRSS}, {sRSS}, s33
    s_lshl_b32 {sRSL}, {sU}, 13
    s_add_u32 {sRSL}, {sRSL}, s33
    s_lshl_b32 {sKV}, {sGRP}, 24
    s_lshl_b32 s33, {sH}, 13
    s_add_u32 {sKV}, {sKV}, s33
    s_add_u32 {sMM}, {sKV}, {OFF_MM}
    s_lshl_b32 s33, {sW}, 11
    s_add_u32 {sKV}, {sKV}, s33
    s_add_u32 {sKV}, {sKV}, {OFF_KF}
    s_lshl_b32 {sFL}, {sH}, 11
    s_lshl_b32 s33, {sW}, 9
    s_add_u32 {sFL}, {sFL}, s33
    s_lshl_b32 s33, {sGRP}, 2
    s_add_u32 {sFL}, {sFL}, s33
    s_add_u32 {sFL}, {sFL}, {F_P3}
    s_lshl_b32 {sFR}, {sGRP}, 5
    s_add_u32 {sFR}, {sFR}, {sH}
    s_lshl_b32 {sFR}, {sFR}, 7
    s_add_u32 {sFR}, {sFR}, {F_R}
    s_mov_b32 s{sC}, {f2u(CSC):#x}
    s_mov_b32 s{sC+1}, {f2u(CSC):#x}
    s_mov_b32 {sT}, 0
    s_mov_b32 {sPAR}, 1
    s_lshl_b32 {sAG0}, {sGRP}, 15
    s_add_u32 {sAG0}, {sAG0}, {OFF_AG}
    s_mov_b32 {sAGR}, {sAG0}
    s_add_u32 {sAGW}, {sAG0}, 10240
    s_mov_b32 {sN}, 0
    s_waitcnt vmcnt(0) lgkmcnt(0)
    v_lshl_or_b32 v40, v42, 16, v40
    v_lshl_or_b32 v41, v43, 16, v41
    v_min_u32 v40, -2, v40
    v_min_u32 v41, -2, v41""")
    pf_base(e, sPF)
    for i in range(6): e(f's_add_u32 s{12+i}, {sWSR}, {i*4096}')
    for c in range(5): e(f's_add_u32 s{18+c}, {sRSS}, {c*16384}')
    sel_masks(e, mSEL, lambda l: (2*((l & 15) >> 3) + ((l & 3) >> 1)) if ((l >> 2) & 1) == ((l >> 4) & 1) else -1)
    mk_sel(e, SELT, vL16, 7, mSEL)
    sel_masks(e, mSEL, lambda l: (l & 15) >> 1)
    sk = e.lab('r')
    e(f's_cmp_ge_u32 {sU}, 40\ns_cbranch_scc1 {sk}\ns_lshl_b32 s33, {sU}, 8\ns_add_u32 s33, s33, {sAGR}\ns_mov_b64 exec, {sp(mLO)}\nbuffer_store_dwordx2 v[40:41], v{vAG}, {WS}, s33 offen sc1\ns_mov_b64 exec, -1')
    e.label(sk)

    def flags_read():
        e(f'v_readlane_b32 {sN}, v6, 0\nv_readlane_b32 s29, v6, 8\ns_min_u32 {sN}, {sN}, s29')
    def kv_wait(need, code):
        if cfg.RFREE: return
        lp = e.lab('r'); ok = e.lab('r')
        e(f's_cmp_ge_u32 {sN}, {need}\ns_cbranch_scc1 {ok}\ns_mov_b32 s28, 0'); e.label(lp)
        e(f'v_and_b32 v6, 128, v{vL16}\nbuffer_load_dword v6, v6, {WS}, {sFL} offen sc1\ns_waitcnt vmcnt(0)')
        flags_read()
        e(f's_cmp_ge_u32 {sN}, {need}\ns_cbranch_scc1 {ok}')
        spin_tail(e, cfg, lp, code)
        e.label(ok)
    def kv_load(base, s):
        if cfg.NOKV: return
        for t in range(2): e.vm(f'buffer_load_dwordx4 {vr(base+4*t)}, v{vL16}, {WS}, {s} offen offset:{t*1024} {cfg.KVF}')
    xtok = {}
    def xload(n):
        k, i = loc[n]; r = XB[bufof[n]]
        if k == 'l':
            for c in range(2): t = e.ds(f'ds_read_b128 {vr(r+4*c)}, v{vW} offset:{i*2048+c*1024}')
            xtok[n] = ('ds', t); return
        xtok[n] = None
        if cfg.NOSTREAM: return
        for c in range(2): t = e.vm(f'buffer_load_dwordx4 {vr(r+4*c)}, v{vL16}, {WS}, s{12+i//2} offen offset:{(i%2)*2048+c*1024} {cfg.STF}')
        xtok[n] = ('vm', t)
    e('s_mov_b32 s35, 1'); kv_wait('s35', 2)
    kv_load(KX, sKV); e(f's_add_u32 s33, {sKV}, {OFF_VF-OFF_KF}'); kv_load(VX, 's33')
    for j in range(3): xload(chain[j][0])
    e.vm0(); e.ds0(); e('s_barrier')

    def body(fl, nm):
        top = f'L_{nm}top'; last = f'L_{nm}last'
        def pp(n):
            if n in cfg.PP: prof(e, cfg, cfg.PP.index(n))
        e.label(top)
        pp('top')
        for j in range(3): xtok[chain[j][0]] = None
        lp = e.lab('r'); ok = e.lab('r')
        G = [XB[NB-1], XB[NB-1]+4, MBUF[0], MBUF[1]]
        e.label(lp)
        tg = [e.vm(f'buffer_load_dwordx4 {vr(G[j])}, v{vL16}, {WS}, {"s34" if j < 2 else sAGR} offen offset:{(j%2)*1024} sc1') for j in range(4)]
        if cfg.PFL == 2:
            for j in range(3): xload(chain[j][0])
        for r in range(0, 24, 2): e(f'v_mov_b64 {vr(VA[0]+r,2)}, 0')
        e(f'v_lshl_add_u32 v7, {sW}, 11, v{vL16}')
        for j in range(4):
            e.wvm(tg[j])
            if j < 2: tw = e.ds(f'ds_write_b128 v7, {vr(G[j])} offset:{j*1024}')
            g = G[j]
            if j == 0: e(f'v_max3_u32 v6, v{g}, v{g+1}, v{g+2}\nv_max_u32 v6, v6, v{g+3}')
            else: e(f'v_max3_u32 v6, v6, v{g}, v{g+1}\nv_max3_u32 v6, v6, v{g+2}, v{g+3}')
        e(f'v_cmp_eq_u32 vcc, -1, v6\ns_cbranch_vccnz {lp}r')
        xload(chain[3][0])
        if cfg.FRL == 1:
            nofl = e.lab('r')
            e(f'v_mov_b32 v6, {sT}\ns_cmp_lg_u32 {sW}, 3\ns_cbranch_scc1 {nofl}\nbuffer_store_dword v6, off, {WS}, {sFR} sc1'); e.label(nofl)
        pp('ag')
        def smf(acc, a, n):
            k, i = loc[n]
            if k in 'ls':
                t = xtok.pop(n)
                if t: (e.wds if t[0] == 'ds' else e.wvm)(t[1])
            w = ar(i, 8) if k == 'a' else vr(i, 8) if k == 'v' else vr(XB[bufof[n]], 8)
            e(f'{SMF} {vr(acc)}, {a}, {w}, v{vIDX}')
            if k in 'ls':
                ch = chain[bufof[n]]; p = ch.index(n)
                if p+1 < len(ch): xload(ch[p+1])
                elif bufof[n] < 3 and not cfg.PFL: xload(ch[0])
        A6 = [ACC, ACC+4, ACC+8, ACC+12, VA[0], VA[1]]
        mtok = {}
        def mread(i): mtok[i] = e.ds(f'ds_read_b128 {vr(MBUF[i % 2])}, v{vL16} offset:{(i-2)*1024}')
        for B in range(10):
            if B >= 2: e.wds(mtok[B])
            for t in range(6):
                smf(A6[t], vr(MBUF[B % 2]), 6*B+t)
                if B == 8 and t == 2: e('s_barrier')
                if B == 0 and t == 4: pp('q1'); e.wds(tw); e('s_barrier'); pp('q2')
            if B in (2, 4, 6, 8): pp('q%d' % (B//2+2))
            if B+2 < 10: mread(B+2)
        pp('qkv')
        Q0, Q1, K0, K1 = ACC, ACC+4, ACC+8, ACC+12
        VMF = MBUF[0]
        e(f's_lshl_b32 s32, {sW}, 9\ns_add_u32 s33, {sMM}, 4096\ns_add_u32 s33, s33, s32\ns_lshl_b32 s34, {sW}, 10\ns_add_u32 s34, s34, {sMM}')
        for (a, b) in ((Q0, K0), (Q1, K1)):
            e(f'v_cvt_pk_bf16_f32 v{a}, v{a}, v{a+1}\nv_cvt_pk_bf16_f32 v{a+1}, v{a+2}, v{a+3}\nv_cvt_pk_bf16_f32 v{a+2}, v{b}, v{b+1}\nv_cvt_pk_bf16_f32 v{a+3}, v{b+2}, v{b+3}')
            e(f'{MF} {vr(b)}, {vr(a)}, {vr(SELT)}, 0')
        for t in range(2):
            for r in range(2): e(f'v_cvt_pk_bf16_f32 v{VMF+2*t+r}, v{VA[t]+2*r}, v{VA[t]+2*r+1}')
        if cfg.FRL == 2:
            e.vm(f'v_mov_b32 v6, {sT}\nbuffer_store_dword v6, off, {WS}, {sFR} sc1')
        if cfg.KLATE: tfl = e.vm(f'v_and_b32 v6, 128, v{vL16}\nbuffer_load_dword v6, v6, {WS}, {sFL} offen sc1')
        pp('a1')
        e.vm(f'buffer_store_dwordx4 {vr(VMF)}, v{vL16}, {WS}, s34 offen {cfg.MMF}' if not cfg.NOMM else 's_nop 0')
        pp('a2')
        e(f's_add_u32 s35, {sT}, 2\ns_min_u32 s35, s35, 64')
        for r in range(4): e(f'v_cvt_pk_bf16_f32 v{Q0+r}, v{K0+r}, v{K1+r}')
        e(f's_cmp_lt_u32 {sT}, 63\ns_cselect_b32 s34, {1<<18}, 0')
        e(f'{MF} {vr(Q1)}, {vr(KX)}, {vr(Q0)}, 0\n{MF} {vr(K0)}, {vr(KX+4)}, {vr(Q0)}, 0\n{MF} {vr(K1)}, {vr(Q0)}, {vr(Q0)}, 0')
        pp('a3')
        e(f's_mov_b64 exec, {sp(mHI)}')
        tmm = e.vm(f'buffer_store_dwordx4 {vr(Q0)}, v{vPX}, {WS}, s33 offen {cfg.MMF}' if not cfg.NOMM else 's_nop 0')
        e(f's_add_u32 {sKV}, {sKV}, s34\ns_cmp_eq_u32 {sT}, 63\ns_cbranch_scc1 {last}\ns_mov_b64 exec, {sp(mLO)}')
        pp('a4')
        e.ds(f'ds_write_b128 v{vSW}, {vr(Q1)}'); e.ds(f'ds_write_b128 v{vSW}, {vr(K0)} offset:64')
        e(f's_mov_b64 exec, {sp(mM)}')
        tw = e.ds(f'ds_write_b128 v{vSW}, {vr(K1)} offset:96')
        e('s_mov_b64 exec, -1')
        pp('a5')
        if cfg.KLATE: e('s_mov_b32 s57, s35')
        else: kv_wait('s35', 4); kv_load(KX, sKV)
        if cfg.VDB:
            e(f's_add_u32 s33, {sKV}, {OFF_VF-OFF_KF}'); kv_load(VXN, 's33')
            e.vm(f'v_and_b32 v6, 128, v{vL16}\nbuffer_load_dword v6, v6, {WS}, {sFL} offen sc1')
        pp('a6')
        e.wds(tw); pp('a7'); e('s_barrier')
        pp('a8')
        S = ACC
        tr = [e.ds(f'ds_read_b128 {vr(S+4*q)}, v{vSR} offset:{q*SWV}') for q in range(4)]
        WA = [VA[0], ACC+8, ACC]
        for r in range(0, 8, 2): e(f'v_mov_b64 {vr(WA[0]+r,2)}, 0')
        e(f'v_add_u32 v{MBUF[1]}, s32, v{vPX}\ns_add_u32 {sT}, {sT}, 1\ns_add_u32 {sMM}, {sMM}, {1<<18}')
        e.wds(tr[1]); e(f'v_pk_add_f32 {vr(S,2)}, {vr(S,2)}, {vr(S+4,2)}\nv_pk_add_f32 {vr(S+2,2)}, {vr(S+2,2)}, {vr(S+6,2)}')
        e.wds(tr[3]); e(f'v_pk_add_f32 {vr(S+8,2)}, {vr(S+8,2)}, {vr(S+12,2)}\nv_pk_add_f32 {vr(S+10,2)}, {vr(S+10,2)}, {vr(S+14,2)}')
        e(f'v_pk_add_f32 {vr(S,2)}, {vr(S,2)}, {vr(S+8,2)}\nv_pk_add_f32 {vr(S+2,2)}, {vr(S+2,2)}, {vr(S+10,2)}')
        pp('a9')
        MX = S+4; SM = S+6
        hk = [f's_mov_b32 s31, {sAGR}', f's_mov_b32 {sAGR}, {sAGW}', f's_add_u32 {sAGW}, {sAGW}, 10240', f's_add_u32 s33, {sAG0}, 30720',
              f's_cmp_eq_u32 {sAGW}, s33', f's_cselect_b32 {sAGW}, {sAG0}, {sAGW}', f's_lshl_b32 s30, {sU}, 8', 's_add_u32 s31, s31, s30',
              f's_add_u32 s30, s30, {sAGR}', f's_add_u32 s34, {sAGR}, {sAGL}', f's_add_u32 s35, {sRSL}, 4096', f's_add_u32 s33, {sKV}, {OFF_VF-OFF_KF}', 's_mov_b32 s28, 0']
        def H(k=2):
            for _ in range(k):
                if hk: e(hk.pop(0))
        e(f'v_max3_f32 v{MX}, v{S}, v{S+1}, v{S+2}\nv_max_f32 v{MX}, v{MX}, v{S+3}')
        for r in (8, 4, 2, 1):
            H(); e(f'v_max_f32 v{MX}, v{MX}, v{MX} row_ror:{r} row_mask:0xf bank_mask:0xf')
        e(f'v_mul_f32 v{MX}, s{sC}, v{MX}')
        for r in (0, 2): e(f'v_pk_fma_f32 {vr(S+r,2)}, {vr(S+r,2)}, {sp(sC)}, {vr(MX,2)} op_sel_hi:[1,1,0] neg_lo:[0,0,1] neg_hi:[0,0,1]')
        for r in range(4): e(f'v_exp_f32 v{S+r}, v{S+r}')
        H(1)
        e(f'v_pk_add_f32 {vr(SM,2)}, {vr(S,2)}, {vr(S+2,2)}\nv_add_f32 v{SM}, v{SM}, v{SM+1}\nv_cndmask_b32 v{SM}, 0, v{SM}, {sp(mVAL)}')
        for r in (8, 4, 2, 1):
            H(); e(f'v_add_f32 v{SM}, v{SM}, v{SM} row_ror:{r} row_mask:0xf bank_mask:0xf')
        e(f'v_rcp_f32 v{SM}, v{SM}')
        for r in (0, 2): e(f'v_pk_mul_f32 {vr(S+r,2)}, {vr(S+r,2)}, {vr(SM,2)} op_sel_hi:[1,0]')
        e(f'v_cvt_pk_bf16_f32 v{S}, v{S}, v{S+1}\nv_cvt_pk_bf16_f32 v{S+1}, v{S+2}, v{S+3}')
        tw = e.ds(f'ds_write_b64 v{vPW}, {vr(S,2)} offset:{L_P}')
        pp('a10')
        H(20)
        e.wds(tw); e('s_barrier')
        pp('sm')
        PX, PM, O = S, S+4, S+8
        t1 = e.ds(f'ds_read_b128 {vr(PX)}, v{vPX} offset:{L_P}')
        t2 = e.ds(f'ds_read_b64 {vr(PM,2)}, v{vPM} offset:{L_P+512}')
        e.wds(t1)
        for t in range(2): e(f'{MF} {vr(O+4*t)}, {vr(VX+4*t)}, {vr(PX)}, 0')
        e.wds(t2)
        for t in range(2): e(f'{MF16} {vr(O+4*t)}, {vr(VMF+2*t,2)}, {vr(PM,2)}, {vr(O+4*t)}')
        pp('p1')
        if not cfg.FRL: e.wvm(tmm)
        e(f's_mov_b64 exec, {sp(mLO)}')
        for r in range(4): e(f'v_cvt_pk_bf16_f32 v{PX+r}, v{O+r}, v{O+4+r}')
        tw = e.ds(f'ds_write_b128 v{MBUF[1]}, {vr(PX)} offset:{L_O}')
        e('s_mov_b64 exec, -1')
        pp('p2')
        if cfg.KLATE:
            e.wvm(tfl); flags_read(); kv_wait('s57', 4); e('s_mov_b32 s28, 0'); kv_load(KX, sKV)
        if not cfg.VDB: kv_load(VX, 's33')
        pp('p3')
        e.wds(tw); pp('p4'); e('s_barrier')
        pp('p5')
        OB = MBUF[0]
        to = [e.ds(f'ds_read_b128 {vr(OB+4*k)}, v{vL16} offset:{L_O+k*1024}') for k in range(2)]
        if not cfg.VDB and not cfg.KLATE and not cfg.NOFL: e.vm(f'v_and_b32 v6, 128, v{vL16}\nbuffer_load_dword v6, v6, {WS}, {sFL} offen sc1')
        for r in range(0, 8, 2): e(f'v_mov_b64 {vr(WA[1]+r,2)}, 0')
        if not cfg.FRL:
            nofl = e.lab('r')
            e(f'v_mov_b32 v{WA[2]}, {sT}\ns_cmp_lg_u32 {sW}, 3\ns_cbranch_scc1 {nofl}\nbuffer_store_dword v{WA[2]}, off, {WS}, {sFR} sc1')
            e.label(nofl)
        for r in range(0, 8, 2): e(f'v_mov_b64 {vr(WA[2]+r,2)}, 0')
        pp('wo0')
        def flush(c, part):
            a = WA[c % 3]
            if part == 0:
                for r in range(2): e(f'v_permlane32_swap_b32 v{a+r}, v{a+4+r}')
            if part == 1:
                for r in range(2, 4): e(f'v_permlane32_swap_b32 v{a+r}, v{a+4+r}')
            if part == 2:
                if cfg.WPK: e(f'v_pk_add_f32 {vr(a,2)}, {vr(a,2)}, {vr(a+4,2)}\nv_pk_add_f32 {vr(a+2,2)}, {vr(a+2,2)}, {vr(a+6,2)}')
                else:
                    for r in range(4): e(f'v_add_f32 v{a+r}, v{a+r}, v{a+4+r}')
                e(f'v_cvt_pk_bf16_f32 v{a+4}, v{a}, v{a+1}\nv_cvt_pk_bf16_f32 v{a+5}, v{a+2}, v{a+3}')
            if part == 3:
                e(f'v_and_or_b32 v{a+4}, v{a+4}, -2, {sPAR}')
                e.vm(f'buffer_store_dwordx2 {vr(a+4,2)}, v{vRS}, {WS}, s{18+c} offen {fl}')
                if c < 2:
                    for r in range(0, 8, 2): e(f'v_mov_b64 {vr(a+r,2)}, 0')
        parts = [(c, p) for c in range(5) for p in range(4)]
        i = 0
        for c in range(5):
            for k in range(2):
                e.wds(to[k])
                for t in range(2):
                    smf(WA[c % 3]+4*t, vr(OB+4*k), 60+4*c+2*k+t)
                    if i >= cfg.FLAG: flush(*parts.pop(0))
                    i += 1
        pp('w1')
        while parts: flush(*parts.pop(0))
        pp('wo1')
        SEL, RD, RL = XB[NB-1], XB[NB-1]+4, P+32
        nored = e.lab('r'); lp2 = e.lab('r')
        e(f's_cmp_ge_u32 {sU}, 40\ns_cbranch_scc1 {nored}')
        mk_sel(e, SEL, vL16, RD, mSEL)
        if cfg.RACK: e.vm0()
        if cfg.RDLY: e(f's_sleep {cfg.RDLY}')
        pp('rs0')
        e.label(lp2)
        toks = [e.vm(f'buffer_load_dwordx4 {vr(RL+4*j)}, v{vL16}, {WS}, {sRSL if j<4 else "s35"} offen offset:{(j%4)*1024} sc1') for j in range(8)]
        tt = sum((((a ^ c) | (b ^ c)) & 1) << (a*4+b*2+c) for a in (0,1) for b in (0,1) for c in (0,1))
        for j in range(8):
            e.wvm(toks[j])
            e(f'{MF} {vr(RD)}, {vr(RL+4*j)}, {vr(SEL)}, {vr(RD) if j else 0}')
            e(f'v_bitop3_b32 v{RL+4*j}, v{RL+4*j}, v{RL+4*j+2}, {sPAR} bitop3:{tt:#x}')
            if j == 2: e(f'v_or3_b32 v{RL}, v{RL}, v{RL+4}, v{RL+8}')
            if j in (4, 6): e(f'v_or3_b32 v{RL}, v{RL}, v{RL+4*j-4}, v{RL+4*j}')
        e(f'v_or_b32 v{RL}, v{RL}, v{RL+28}\nv_and_b32 v{RL}, 1, v{RL}\nv_cmp_ne_u32 vcc, 0, v{RL}\nv_mov_b64 {vr(RL+2,2)}, -1\ns_cbranch_vccnz {lp2}r')
        e(f"""s_mov_b64 exec, {sp(mLO)}
        v_cvt_pk_bf16_f32 v{RL}, v{RD}, v{RD+1}
        v_cvt_pk_bf16_f32 v{RL+1}, v{RD+2}, v{RD+3}
        v_min_u32 v{RL}, -2, v{RL}
        v_min_u32 v{RL+1}, -2, v{RL+1}
        buffer_store_dwordx2 {vr(RL,2)}, v{vAG}, {WS}, s30 offen {fl}
        buffer_store_dwordx2 {vr(RL+2,2)}, v{vAG}, {WS}, s31 offen {fl}
        s_mov_b64 exec, -1""")
        if cfg.AACK: e.vm0()
        j2 = e.lab('r')
        e(f's_branch {j2}'); e.label(nored); pp('rs0'); e('s_waitcnt vmcnt(0)'); e.label(j2)
        if cfg.PFL == 1:
            for j in range(3): xload(chain[j][0])
        if not cfg.KLATE: flags_read()
        if cfg.VDB:
            for r in range(0, 8, 2): e(f'v_mov_b64 {vr(VX+r,2)}, {vr(VXN+r,2)}')
        e(f's_xor_b32 {sPAR}, {sPAR}, 1\ns_mov_b32 s28, 0')
        pp('rs1')
        prof_flush(e, cfg, len(cfg.PP), sPF)
        e.ds0()
        e('s_barrier')
        if cfg.ADLY: e(f's_sleep {cfg.ADLY}')
        e(f's_branch {top}')
        e.label(lp + 'r'); spin_tail(e, cfg, lp, 3)
        e.label(lp2 + 'r'); spin_tail(e, cfg, lp2, 5)
        e.label(last)
        e(f's_mov_b64 exec, -1\ns_waitcnt vmcnt(0)\ns_barrier\nv_mov_b32 v6, 64\nbuffer_store_dword v6, off, {WS}, {sFR} sc1\ns_endpgm')
    e(f's_add_u32 s34, {sAGR}, {sAGL}\ns_mov_b32 s28, 0')
    two_modes(e, 'R', body)

tLANE, tL16, tDMA, tL4, tPOLL, tL128 = 1, 2, 5, 8, 9, 0
def tok_setup(e):
    e(f'v_and_b32 v{tLANE}, 63, v0\nv_lshlrev_b32 v{tL16}, 4, v{tLANE}\nv_lshlrev_b32 v{tL4}, 2, v{tLANE}')
def x_setup(e, xa):
    e(f"""v_bfe_u32 v10, v{tLANE}, 1, 3
    v_lshrrev_b32 v11, 5, v{tLANE}
    v_xor_b32 v10, v10, v11
    v_lshlrev_b32 v{xa}, 4, v10
    v_and_b32 v10, 7, v{tLANE}
    v_lshl_add_u32 v{xa}, v10, 7, v{xa}
    v_bfe_u32 v10, v{tLANE}, 3, 2
    v_mul_u32_u24 v10, 10240, v10
    v_add_u32 v{xa}, v{xa}, v10""")
    for q in range(1, 4): e(f'v_xor_b32 v{xa+q}, {32*q}, v{xa}')
def piece_setup(e, v, ustride):
    e(f'v_bfe_u32 v10, v{tLANE}, 4, 1\nv_mul_u32_u24 v{v}, {ustride}, v10\nv_lshrrev_b32 v10, 5, v{tLANE}\nv_lshl_add_u32 v{v}, v10, 8, v{v}\nv_and_b32 v10, 15, v{tLANE}\nv_lshl_add_u32 v{v}, v10, 4, v{v}')
def dma_steps(e, sG, sL, n, voff, fl='sc1'):
    def step(j):
        def f():
            if j % 4 == 0:
                if j: e(f's_add_u32 {sL}, {sL}, 4096\ns_add_u32 {sG}, {sG}, 4096')
                e(f's_mov_b32 m0, {sL}')
            e.vm(f'buffer_load_dwordx4 v{voff}, {WS}, {sG} offen offset:{(j%4)*1024} {fl} lds')
        return f
    return [step(j) for j in range(n)]
def xfrag(e, k, xa):
    return lambda r: ('ds', e.ds(f'ds_read_b128 {vr(r)}, v{xa + (k & 3)} offset:{(k>>2)*1024}'))
def poll(e, cfg, load, test, code):
    lp = e.lab('p'); ok = e.lab('p')
    e('s_mov_b32 s28, 0'); e.label(lp)
    e(load + '\ns_waitcnt vmcnt(0)\n' + test + f'\ns_cbranch_scc1 {ok}')
    if cfg.PSLEEP: e(f's_sleep {cfg.PSLEEP}')
    spin_tail(e, cfg, lp, code)
    e.label(ok); e.unknown_vm()
def row_flags_load(sBase): return f'buffer_load_dword v{tPOLL}, v{tL128}, {WS}, {sBase} offen sc1'
def l128_setup(e): e(f'v_and_b32 v{tL128}, 31, v{tLANE}\nv_lshlrev_b32 v{tL128}, 7, v{tL128}')
ROW_TEST = f'v_cmp_eq_u32 vcc, 0, v{tPOLL}\ns_cmp_eq_u32 vcc_lo, 0'
def wave_sum(e, v, t):
    for r in (8, 4, 2, 1): e(f'v_add_f32 v{v}, v{v}, v{v} row_ror:{r} row_mask:0xf bank_mask:0xf')
    xlane(e, 'v_add_f32', v, t)
def mk_order(lead, ratio, l2first=False):
    seq = [0]*lead; n1 = lead; n2 = 0; acc = 1.0 if l2first else 0.0
    while n1 < 64:
        while acc >= 1.0 - 1e-9 and n2 < 64: seq.append(1); n2 += 1; acc -= 1.0
        seq.append(0); n1 += 1; acc += ratio
    seq += [1]*(64-n2)
    return seq
def order_setup(e, seq):
    m = sum(b << i for i, b in enumerate(seq))
    mask64(e, 54, m & (2**64-1)); mask64(e, 56, m >> 64)
    e.pop0 = bin(m & (2**64-1)).count('1')
def order_item(e, sn, sIT):
    e(f"""s_cmp_lt_u32 {sn}, 64
    s_cselect_b64 s[60:61], s[54:55], s[56:57]
    s_cselect_b32 s33, 0, {e.pop0}
    s_bfm_b64 s[34:35], {sn}, 0
    s_and_b64 s[34:35], s[34:35], s[60:61]
    s_bcnt1_i32_b64 s34, s[34:35]
    s_add_u32 s33, s33, s34
    s_sub_u32 s34, {sn}, s33
    s_add_u32 s33, s33, 64
    s_bitcmp1_b64 s[60:61], {sn}
    s_cselect_b32 {sIT}, s33, s34
    s_cmp_ge_u32 {sn}, 128
    s_cselect_b32 {sIT}, {sn}, {sIT}""")

class Red:
    onepass = 0; sINV = 's101'
def row_setup(e, R, sRow):
    L = tLANE
    e(f"""v_bfe_u32 v10, v{L}, 4, 1
    v_lshrrev_b32 v11, 5, v{L}
    v_lshl_add_u32 v10, v10, 1, v11
    v_and_b32 v11, 15, v{L}
    v_lshlrev_b32 v{R.row+1}, 4, v11
    v_lshl_add_u32 v{R.row}, v10, 8, v{R.row+1}
    v_add_u32 v{R.row+1}, 1024, v{R.row+1}
    s_bfe_u32 s33, {sRow}, 0x30001
    v_and_b32 v11, 7, v{L}
    v_xor_b32 v11, s33, v11
    v_lshlrev_b32 v{R.xn+1}, 4, v11
    v_bfe_u32 v11, v{L}, 3, 1
    v_lshl_add_u32 v{R.xn+1}, v11, 10, v{R.xn+1}
    v_lshl_add_u32 v{R.xn}, v10, 11, v{R.xn+1}
    v_add_u32 v{R.xn+1}, 8192, v{R.xn+1}
    v_mov_b32 v10, {OOB:#x}
    v_cmp_gt_u32 vcc, 16, v{L}
    v_cndmask_b32 v{R.row+1}, v10, v{R.row+1}, vcc
    v_cndmask_b32 v{R.xn+1}, v10, v{R.xn+1}, vcc
    s_lshr_b32 {R.sXR}, {sRow}, 3
    s_mul_i32 {R.sXR}, {R.sXR}, 10240
    s_and_b32 s33, {sRow}, 7
    s_lshl_b32 s33, s33, 7
    s_add_u32 {R.sXR}, {R.sXR}, s33""")
def red_setup(e, R, base, nprod):
    R.la, R.lb, R.ga, R.gb, R.lw, R.p0, R.p1, R.res, R.res2, R.ly, R.xn = range(base, base+11)
    R.sel, R.sel2 = base+12, base+16
    R.sM, R.sG, R.sROW, R.sXR, R.sFP, R.sFPme, R.sRS, R.sRS2, R.sSTO, R.sLDO = ['s%d' % i for i in range(70, 80)]
    L = tLANE
    e(f"""s_mul_i32 s33, {sW}, {32*336}
    s_add_u32 s33, s33, {R.L_T}
    v_lshrrev_b32 v10, 3, v{L}
    v_and_b32 v11, 7, v{L}
    v_mul_u32_u24 v{R.la}, 336, v10
    v_lshl_add_u32 v{R.la}, v11, 4, v{R.la}
    v_add_u32 v{R.la}, s33, v{R.la}
    v_mul_u32_u24 v{R.ga}, {RSP_ROW}, v10
    v_lshl_add_u32 v{R.ga}, v11, 4, v{R.ga}
    v_lshrrev_b32 v10, 2, v{L}
    v_and_b32 v11, 3, v{L}
    v_mul_u32_u24 v{R.lb}, 336, v10
    v_lshl_add_u32 v{R.lb}, v11, 4, v{R.lb}
    v_add_u32 v{R.lb}, s33, v{R.lb}
    v_mul_u32_u24 v{R.gb}, {RSP_ROW}, v10
    v_lshl_add_u32 v{R.gb}, v11, 4, v{R.gb}
    v_lshrrev_b32 v10, 4, v{L}
    v_and_b32 v11, 15, v{L}
    v_and_b32 v6, 31, v{L}
    v_mul_u32_u24 v{R.lw}, 336, v6
    v_lshrrev_b32 v6, 5, v{L}
    v_lshl_add_u32 v{R.lw}, v6, 4, v{R.lw}
    v_add_u32 v{R.lw}, s33, v{R.lw}
    v_mul_u32_u24 v{R.p0}, 1280, v10
    v_lshl_add_u32 v{R.p0}, v11, 4, v{R.p0}
    v_mov_b32 v{R.p1}, v{R.p0}
    v_mov_b32 v6, {OOB:#x}
    s_and_b32 s33, {sW}, 1
    s_lshl_b32 s33, s33, 3
    v_add_u32 v7, s33, v10
    v_cmp_gt_u32 vcc, {nprod}, v7
    v_cndmask_b32 v{R.p0}, v6, v{R.p0}, vcc
    v_add_u32 v7, 4, v7
    v_cmp_gt_u32 vcc, {nprod}, v7
    v_cndmask_b32 v{R.p1}, v6, v{R.p1}, vcc
    v_lshrrev_b32 v7, 5, v{L}
    v_and_b32 v10, 1, v10
    v_lshlrev_b32 v{R.res}, 8, v7
    v_lshl_add_u32 v{R.res}, v11, 4, v{R.res}
    v_lshl_add_u32 v{R.res}, v10, 3, v{R.res}
    v_cmp_gt_u32 vcc, 32, v{L}
    v_cndmask_b32 v{R.res2}, v6, v{R.res}, vcc
    s_lshr_b32 s33, {sW}, 1
    s_mul_i32 s34, s33, 3072
    s_add_u32 s34, s34, {R.L_Y}
    v_add_u32 v{R.ly}, s34, v{tL16}
    s_lshl_b32 {R.sROW}, {R.sM}, 1
    s_add_u32 {R.sROW}, {R.sROW}, s33
    s_lshl_b32 {R.sFP}, {R.sG}, 8
    s_add_u32 {R.sFP}, {R.sFP}, {F_PS}
    s_lshl_b32 {R.sFPme}, {R.sM}, 4
    s_lshl_b32 s33, {sW}, 2
    s_add_u32 {R.sFPme}, {R.sFPme}, s33
    s_add_u32 {R.sFPme}, {R.sFPme}, {R.sFP}
    s_mul_i32 {R.sRS}, {R.sG}, {2*RSP_SLOT}
    s_add_u32 {R.sRS}, {R.sRS}, {OFF_RSP}
    s_add_u32 {R.sRS2}, {R.sRS}, {RSP_SLOT}
    s_mul_i32 {R.sSTO}, {R.sM}, 1280
    s_mul_i32 s33, {sW}, 320
    s_add_u32 {R.sSTO}, {R.sSTO}, s33
    s_mul_i32 {R.sLDO}, {R.sROW}, {RSP_ROW}
    s_and_b32 s33, {sW}, 1
    s_mul_i32 s33, s33, {8*1280}
    s_add_u32 {R.sLDO}, {R.sLDO}, s33""")
    e(f's_mov_b32 {R.sINV}, {f2u(1/640):#x}')
    sel_masks(e, 84, lambda l: (l & 15) >> 1); mk_sel(e, R.sel, tL16, 10, 84)
    sel_masks(e, 84, lambda l: ((l & 15) >> 1) - 4); mk_sel(e, R.sel2, tL16, 10, 84)
def group_ids(e, R):
    if R: e(f's_sub_u32 s71, {sGRP}, 5\ns_lshr_b32 s33, {sH}, 4\ns_mul_i32 s33, s33, 3\ns_add_u32 s71, s71, s33\ns_and_b32 s70, {sH}, 15')
    else: e(f's_sub_u32 s71, {sGRP}, 5\ns_lshl_b32 s71, s71, 1\ns_lshr_b32 s33, {sH}, 4\ns_add_u32 s71, s71, s33\ns_and_b32 s70, {sH}, 15')

def res_load(e, R, srd_, sOff, d):
    for T in range(3):
        t = e.vm(f'buffer_load_dwordx2 {vr(d+2*T,2)}, v{R.res2 if T==2 else R.res}, {srd_}, {sOff} offen offset:{T*512} sc1')
    return t

def row_store(e, R, Q, srd_, soff, fl, image):
    e(f'v_mov_b32 v{Q+6}, v{Q+4}\nv_mov_b32 v{Q+7}, v{Q+5}')
    for r in range(2): e(f'v_permlane16_swap_b32 v{Q+r}, v{Q+2+r}')
    for r in range(2): e(f'v_permlane16_swap_b32 v{Q+4+r}, v{Q+6+r}')
    va = R.xn if image else R.row
    e.vm(f'buffer_store_dwordx4 {vr(Q)}, v{va}, {srd_}, {soff} offen {fl}')
    e.vm(f'buffer_store_dwordx4 {vr(Q+4)}, v{va+1}, {srd_}, {soff} offen {fl}')

def finish_row(e, R, X, RES, TMP, has_y, xstore, sXNitem, st='s33', Q=None):
    if has_y:
        for p in range(6):
            e(f'v_lshlrev_b32 v{TMP}, 16, v{RES+p}\nv_and_b32 v{TMP+1}, 0xffff0000, v{RES+p}\nv_pk_add_f32 {vr(X+2*p,2)}, {vr(X+2*p,2)}, {vr(TMP,2)}')
            e(f'v_cvt_pk_bf16_f32 v{Q+p}, v{X+2*p}, v{X+2*p+1}')
        RES = Q
    if sXNitem is not None:
        for p in range(6): e(f'v_lshlrev_b32 v{X+2*p}, 16, v{RES+p}\nv_and_b32 v{X+2*p+1}, 0xffff0000, v{RES+p}')
    if xstore: row_store(e, R, Q, xstore[0], xstore[1], xstore[2], False)
    if sXNitem is None: return
    S, T1 = TMP, TMP+1
    if R.onepass:
        S2 = Q+8 if Q is not None else TMP+2; T2 = S2+1
        e(f'v_pk_add_f32 {vr(S,2)}, {vr(X,2)}, {vr(X+2,2)}\nv_pk_mul_f32 {vr(S2,2)}, {vr(X,2)}, {vr(X,2)}')
        for r in range(2, 12, 2):
            if r >= 4: e(f'v_pk_add_f32 {vr(S,2)}, {vr(S,2)}, {vr(X+r,2)}')
            e(f'v_pk_fma_f32 {vr(S2,2)}, {vr(X+r,2)}, {vr(X+r,2)}, {vr(S2,2)}')
        e(f'v_add_f32 v{S}, v{S}, v{T1}\nv_add_f32 v{S2}, v{S2}, v{T2}\ns_add_u32 {st}, {sXNitem}, {R.sXR}')
        for r in (8, 4, 2, 1):
            for v in (S, S2): e(f'v_add_f32 v{v}, v{v}, v{v} row_ror:{r} row_mask:0xf bank_mask:0xf')
            e('s_nop 0')
        for sw in ('v_permlane32_swap_b32', 'v_permlane16_swap_b32'):
            e(f'v_mov_b32 v{T1}, v{S}\nv_mov_b32 v{T2}, v{S2}\ns_nop 0\n{sw} v{S}, v{T1}\n{sw} v{S2}, v{T2}\nv_add_f32 v{S}, v{S}, v{T1}\nv_add_f32 v{S2}, v{S2}, v{T2}')
        e(f"""v_mul_f32 v{S}, {f2u(-1/640):#x}, v{S}
        v_mul_f32 v{T1}, v{S}, v{S}
        v_fma_f32 v{S2}, v{S2}, {R.sINV}, -v{T1}
        v_max_f32 v{S2}, 0, v{S2}
        v_add_f32 v{S2}, {f2u(1e-5):#x}, v{S2}
        v_rsq_f32 v{S2}, v{S2}
        s_nop 0
        v_mul_f32 v{S}, v{S}, v{S2}""")
        for p in range(6):
            e(f'v_pk_fma_f32 {vr(X+2*p,2)}, {vr(X+2*p,2)}, {vr(S2,2)}, {vr(S,2)} op_sel_hi:[1,0,0]\nv_cvt_pk_bf16_f32 v{X+p}, v{X+2*p}, v{X+2*p+1}')
    else:
        e(f'v_pk_add_f32 {vr(S,2)}, {vr(X,2)}, {vr(X+2,2)}')
        for r in range(4, 12, 2): e(f'v_pk_add_f32 {vr(S,2)}, {vr(S,2)}, {vr(X+r,2)}')
        e(f'v_add_f32 v{S}, v{S}, v{T1}')
        wave_sum(e, S, T1)
        e(f'v_mul_f32 v{S}, {f2u(-1/640):#x}, v{S}')
        for r in range(0, 8, 2): e(f'v_pk_add_f32 {vr(X+r,2)}, {vr(X+r,2)}, {vr(S,2)} op_sel_hi:[1,0]')
        e('s_mov_b32 exec_hi, 0')
        for r in range(8, 12, 2): e(f'v_pk_add_f32 {vr(X+r,2)}, {vr(X+r,2)}, {vr(S,2)} op_sel_hi:[1,0]')
        e('s_mov_b32 exec_hi, -1')
        e(f'v_pk_mul_f32 {vr(S,2)}, {vr(X,2)}, {vr(X,2)}')
        for r in range(2, 12, 2): e(f'v_pk_fma_f32 {vr(S,2)}, {vr(X+r,2)}, {vr(X+r,2)}, {vr(S,2)}')
        e(f'v_add_f32 v{S}, v{S}, v{T1}')
        wave_sum(e, S, T1)
        e(f'v_mov_b32 v{T1}, {f2u(1e-5):#x}\nv_fmac_f32 v{T1}, {f2u(1/640):#x}, v{S}\nv_rsq_f32 v{S}, v{T1}\ns_add_u32 {st}, {sXNitem}, {R.sXR}')
        for p in range(6):
            e(f'v_pk_mul_f32 {vr(X+2*p,2)}, {vr(X+2*p,2)}, {vr(S,2)} op_sel_hi:[1,0]\nv_cvt_pk_bf16_f32 v{X+p}, v{X+2*p}, v{X+2*p+1}')
    row_store(e, R, X, WS, st, 'sc1', True)

def out_proj(e, R, wfr, NK, OB, oread, ACC, PK, ST, fill, s0=None, stream=None, after=None, budget=24):
    per = NK; cost = {}
    def put(p, c, f): at(fill, p, f); cost[p] = cost.get(p, 0) + c
    for p in fill: cost[p] = 12*len(fill[p])
    def cv(c, h):
        a = ACC + 16*(c % 2) + 8*h
        for r in range(4): e(f'v_cvt_pk_bf16_f32 v{PK+4*h+r}, v{a+2*r}, v{a+2*r+1}')
    def wr(c, h): e.ds(f'ds_write_b128 v{R.lw}, {vr(PK+4*h)} offset:{c*64+h*32}')
    tk = {}
    def rd(j, half): tk[j] = e.ds(f'ds_read_b128 {vr(ST+4*j)}, v{R.la} offset:{j*8*336+half*128}')
    def st(j, half):
        e.wds(tk[j]); e(f's_add_u32 s33, s35, {j*8*RSP_ROW}')
        e.vm(f'buffer_store_dwordx4 {vr(ST+4*j)}, v{R.ga}, {WS}, s33 offen offset:{half*128}')
    otok = dict(oread.tok)
    for k in range(4, NK, 2): put((k-4)//2, 8, lambda k=k: otok.update({k: oread(k), k+1: oread(k+1)}))
    for c in range(4):
        p = (c+1)*per + 2
        put(p, 16, lambda c=c: cv(c, 0)); put(p+1, 16, lambda c=c: wr(c, 0)); put(p+2, 16, lambda c=c: cv(c, 1)); put(p+3, 16, lambda c=c: wr(c, 1))
    for half in range(2):
        base = (2*half+2)*per + 5
        if half == 0 and s0: base = s0
        put(base, 8, lambda half=half: (rd(0, half), rd(1, half))); put(base+1, 8, lambda half=half: (rd(2, half), rd(3, half)))
        gap = max(1, (per-9)//4) if half else max(1, (4*per-base-3)//4)
        for j in range(4): put(base+4+gap*j, 28, lambda j=j, half=half: st(j, half))
    put(NK, 4, lambda: e(f's_add_u32 s35, {R.sSTO}, {R.sRS}'))
    if stream:
        last = spread(e, stream, fill, cost, 1, budget)
        if after: after(last)
    i = 0
    for c in range(5):
        for k in range(NK):
            if c == 0: e.wds(otok[k])
            a = vr(ACC + 16*(c % 2), 16)
            e(f'{MF32} {a}, {wfr(c,k)}, {vr(OB+4*k)}, {a if k else 0}')
            run(fill, i); i += 1
    drain(fill)
def out_tail1(e, R, ACC, PK):
    for h in range(2):
        for r in range(4): e(f'v_cvt_pk_bf16_f32 v{PK+4*h+r}, v{ACC+8*h+2*r}, v{ACC+8*h+2*r+1}')
        e.ds(f'ds_write_b128 v{R.lw}, {vr(PK+4*h)} offset:{256+h*32}')
    return [e.ds(f'ds_read_b128 {vr(PK+4*j)}, v{R.lb} offset:{j*16*336+256}') for j in range(2)]
def out_tail2(e, R, PK, tk):
    for j in range(2):
        e.wds(tk[j]); e(f's_add_u32 s33, s35, {j*16*RSP_ROW}')
        e.vm(f'buffer_store_dwordx4 {vr(PK+4*j)}, v{R.gb}, {WS}, s33 offen offset:256')
    return e.vmn

def publish(e, R, sCnt):
    slow = e.lab('pb'); done = e.lab('pb')
    e(f'v_mov_b32 v10, {sCnt}\ns_cmp_eq_u32 {sMODE}, 1\ns_cbranch_scc0 {slow}')
    e.vm(f'buffer_store_dword v10, off, {WS}, {R.sFPme}')
    e.label(done)
    e.cold.append(f'{slow}:\nbuffer_wbl2 sc1\ns_waitcnt vmcnt(0)\nbuffer_store_dword v10, off, {WS}, {R.sFPme} sc1\ns_branch {done}')
def flush_cold(e):
    for t in e.cold: e(t)
    e.cold = []
def grp_load(R): return f'buffer_load_dword v10, v{tL4}, {WS}, {R.sFP} offen sc1'
def grp_wait(e, cfg, R, sCnt, code, tok=None):
    test = f'v_cmp_gt_u32 vcc, {sCnt}, v10\ns_cmp_eq_u64 vcc, 0'
    ok = e.lab('g')
    if tok is not None:
        e.wvm(tok); e(test + f'\ns_cbranch_scc1 {ok}')
        st = e.vmdone
    ps = cfg.PSLEEP; cfg.PSLEEP = 0
    poll(e, cfg, grp_load(R), test, code)
    cfg.PSLEEP = ps
    e.label(ok)
    if tok is not None: e.vmdone = st
    slow = e.lab('gq'); done = e.lab('gq')
    e(f's_cmp_eq_u32 {sMODE}, 1\ns_cbranch_scc0 {slow}'); e.label(done)
    e.cold.append(f'{slow}:\nbuffer_inv sc1\ns_waitcnt vmcnt(0)\ns_branch {done}')
def rs_steps(e, R, LD, toks, sa='s30', sb='s31'):
    e(f's_add_u32 {sa}, {R.sLDO}, {R.sRS}\ns_add_u32 {sb}, {sa}, {4*1280}')
    def one(jj, j): toks[jj, j] = e.vm(f'buffer_load_dwordx4 {vr(LD+20*jj+4*j)}, v{R.p1 if jj else R.p0}, {WS}, {sb if jj else sa} offen offset:{j*256} sc1')
    return [(lambda jj=jj, j=j: one(jj, j)) for jj in range(2) for j in range(5)]
def rs_loads(e, R, LD):
    e(f's_add_u32 s30, {R.sLDO}, {R.sRS}\ns_add_u32 s31, s30, {4*1280}')
    return {(jj, j): e.vm(f'buffer_load_dwordx4 {vr(LD+20*jj+4*j)}, v{R.p1 if jj else R.p0}, {WS}, {"s31" if jj else "s30"} offen offset:{j*256} sc1') for jj in range(2) for j in range(5)}
def rs_sum(e, R, toks, LD, Y):
    for jj in range(2):
        for j in range(5):
            e.wvm(toks[jj,j]); a = vr(Y+4*(j>>1))
            first = (jj == 0 and j % 2 == 0)
            e(f'{MF} {a}, {vr(R.sel2 if j & 1 else R.sel)}, {vr(LD+20*jj+4*j)}, {0 if first else a}')
    if R.single:
        slow = e.lab('cs'); done = e.lab('cs')
        e(f'v_mov_b32 v10, {R.sCNT}\ns_cmp_eq_u32 {sMODE}, 1\ns_cbranch_scc0 {slow}')
        e.vm(f'buffer_store_dword v10, off, {WS}, {R.sFPme} offset:2048')
        e.label(done)
        e.cold.append(f'{slow}:\nbuffer_store_dword v10, off, {WS}, {R.sFPme} offset:2048 sc1\ns_branch {done}')
    ev = e.lab('d')
    e(f's_bitcmp1_b32 {sW}, 0\ns_cbranch_scc0 {ev}')
    for T in range(3): e(f'ds_write_b128 v{R.ly}, {vr(Y+4*T)} offset:{T*1024}')
    e.label(ev)
    if not R.single: swap_rs(e, R)
def slot_free(e, cfg, R, fill, p0, p1, code):
    if not R.single: return
    k = {}
    ld = f'buffer_load_dword v10, v{tL4}, {WS}, {R.sFP} offen offset:2048 sc1'
    test = f'v_add_u32 v10, 1, v10\nv_cmp_gt_u32 vcc, {R.sCNT}, v10'
    def chk():
        lp = e.lab('sf'); ok = e.lab('sf')
        e.wvm(k['t']); e(test + f'\ns_mov_b32 s28, 0\ns_cbranch_vccnz {lp}'); e.label(ok)
        e.cold.append(f'{lp}:\n{ld}\ns_waitcnt vmcnt(0)\n{test}\ns_cbranch_vccz {ok}\ns_add_u32 s28, s28, 1\ns_cmp_lt_u32 s28, {cfg.SPIN}\ns_cbranch_scc1 {lp}\ns_mov_b32 s29, {code}\ns_branch L_abort')
    at(fill, p0, lambda: k.update(t=e.vm(ld))); at(fill, p1, chk)
def decide(e, vD, t, mid):
    e('s_barrier')
    tk = e.ds(f'ds_read_b128 {vr(t)}, v{vD}')
    r = mid()
    e.wds(tk)
    e(f'v_and_b32 v{t}, v{t}, v{t+1}\nv_and_b32 v{t+2}, v{t+2}, v{t+3}\nv_and_b32 v{t}, v{t}, v{t+2}\nv_readfirstlane_b32 s30, v{t}\ns_cmp_eq_u32 s30, 1')
    return r
def gate(flag, vd, sit):
    return f"""
    s_cselect_b32 {flag}, 1, 0
    s_cmp_ge_u32 {sit}, 128
    s_cselect_b32 {flag}, 0, {flag}
    s_cmp_eq_u32 {flag}, 1
    s_cselect_b32 s33, 0, {OOB:#x}
    v_or_b32 v{vd}, s33, v{tL16}"""
def reduce_gather(e, R, LD, Y):
    toks = [e.ds(f'ds_read_b128 {vr(LD+4*q)}, v{R.ly} offset:{q*1024}') for q in range(3)]
    for q in range(3):
        e.wds(toks[q])
        for r in (0, 2): e(f'v_pk_add_f32 {vr(Y+4*q+r,2)}, {vr(Y+4*q+r,2)}, {vr(LD+4*q+r,2)}')
def swap_rs(e, R):
    e(f's_mov_b32 s33, {R.sRS}\ns_mov_b32 {R.sRS}, {R.sRS2}\ns_mov_b32 {R.sRS2}, s33')

def role_P(e, cfg, nm):
    isV = nm == 'V'
    which = {'K':0, 'V':1, 'Q':2}[nm]
    WV = 96; XB = [16+4*i for i in range(6)]; ACC = 48; PK = 64; vXA, vX0, vPO = 72, 76, 80
    sN, sIT, sIT2, sBUF, sPRE, sFA, sFB, sFV, sOB, sG, sL, sPF, sIT3 = ['s%d' % i for i in range(62, 75)]
    e.label(f'L_role{nm}')
    tok_setup(e)
    wl = WL(e, tLANE, 0, 4096*cfg.NSL, 24, 40, cfg.NSL)
    e(f's_lshl_b32 s33, {sH}, 8'); sq = wl.src(16, 8192, 's33', False)
    srd(e, 12, {'K':P_WK, 'V':P_WV, 'Q':P_WQ}[nm])
    wl.cols32('s[12:15]', sq, 10, lambda k: ('v', WV+4*k), 18, isV, first=lambda: arrive(e))
    x_setup(e, vX0); piece_setup(e, vPO, 1024)
    sync_start(e, cfg)
    l128_setup(e); pf_base(e, sPF); order_setup(e, mk_order(cfg.A, cfg.PRAT, True))
    def flag_line(sit, d): e(f's_lshl_b32 {d}, {sit}, 12\ns_add_u32 {d}, {d}, {F_XN}')
    def dma_setup(sit):
        e(f's_mul_i32 {sL}, {sW}, 10240\ns_mul_i32 {sG}, {sit}, {ITEM}\ns_add_u32 {sG}, {sG}, {sL}\ns_add_u32 {sG}, {sG}, {OFF_XN}\ns_add_u32 {sL}, {sL}, {sBUF}')
    def fetch(sit, code):
        flag_line(sit, 's31'); poll(e, cfg, row_flags_load('s31'), ROW_TEST, code)
        dma_setup(sit)
        for f in dma_steps(e, sG, sL, 10, tL16): f()
    e(f"""s_lshl_b32 {sFB}, {sH}, 11
    s_lshl_b32 s33, {sW}, 9
    s_add_u32 {sFB}, {sFB}, s33
    s_lshl_b32 {sOB}, {sFB}, 2
    s_add_u32 {sOB}, {sOB}, {dict(K=OFF_KF, V=OFF_VF, Q=OFF_QF)[nm]}
    s_add_u32 {sFB}, {sFB}, {F_P3 + which*128}
    s_mov_b32 {sFA}, {sFB}
    s_mov_b32 {sFV}, 0
    s_mov_b32 {sN}, 0
    s_mov_b32 {sIT}, 0
    s_mov_b32 {sIT2}, 1
    s_mov_b32 {sBUF}, 0""")
    fetch(sIT, 10)
    flag_line(sIT2, 's31'); e(row_flags_load('s31'))
    e.vm0()
    top = f'L_{nm}top'; e.label(top)
    prof(e, cfg, 0)
    for q in range(4): e(f'v_add_u32 v{vXA+q}, {sBUF}, v{vX0+q}')
    e(f's_waitcnt vmcnt({4 if cfg.PROF else 3})\ns_barrier')
    xs = Stream(e, XB, [xfrag(e, k, vXA) for k in range(40)]); xs.prime()
    e(f"""{ROW_TEST}
    s_cselect_b32 {sPRE}, 1, 0
    s_cmp_ge_u32 {sN}, 127
    s_cselect_b32 {sPRE}, 0, {sPRE}
    s_cmp_eq_u32 {sPRE}, 1
    s_cselect_b32 s33, 0, {OOB:#x}
    v_or_b32 v{tDMA}, s33, v{tL16}
    s_xor_b32 {sBUF}, {sBUF}, {ITEM}""")
    dma_setup(sIT2)
    prof(e, cfg, 1)
    fill = {}
    for j, f in enumerate(dma_steps(e, sG, sL, 10, tDMA)): at(fill, 2*j, f)
    r = Rec(); r.pop0 = e.pop0
    r(f's_add_u32 s32, {sN}, 2'); order_item(r, 's32', sIT3)
    def whole(rec): return rec.chunks(e, 1000)[0]
    at(fill, cfg.PPOLL-2, whole(r))
    at(fill, cfg.PPOLL, lambda: (flag_line(sIT3, 's31'), e(row_flags_load('s31'))))
    def mid():
        prof(e, cfg, 2)
        e('s_waitcnt vmcnt(11)')
        prof(e, cfg, 3); prof_flush(e, cfg, 4, sPF)
        e(f'v_mov_b32 v10, {sFV}\nbuffer_store_dword v10, off, {WS}, {sFA} sc1')
    at(fill, cfg.PMID, mid); assert cfg.PPOLL < cfg.PMID
    at(fill, 30, lambda: e(f's_lshl_b32 s34, {sIT}, 18\ns_add_u32 s34, s34, {sOB}\ns_lshr_b32 {sFA}, {sIT}, 6\ns_lshl_b32 {sFA}, {sFA}, 2'))
    at(fill, 31, lambda: e(f's_add_u32 {sFA}, {sFA}, {sFB}\ns_and_b32 {sFV}, {sIT}, 63\ns_add_u32 {sFV}, {sFV}, 1\ns_add_u32 {sN}, {sN}, 1'))
    at(fill, 32, lambda: e(f's_mov_b32 {sIT}, {sIT2}\ns_mov_b32 {sIT2}, {sIT3}'))
    a = vr(ACC, 16)
    for k in range(40):
        x = xs.get(k); w = vr(WV+4*k)
        e(f'{MF32} {a}, {x if isV else w}, {w if isV else x}, {a if k else 0}')
        xs.issue(); run(fill, k)
    for f in range(2):
        src = [4*f, 4*f+2, 8+4*f, 10+4*f] if isV else [8*f+2*r for r in range(4)]
        for r_ in range(4): e(f'v_cvt_pk_bf16_f32 v{PK+4*f+r_}, v{ACC+src[r_]}, v{ACC+src[r_]+1}')
        e(f'buffer_store_dwordx4 {vr(PK+4*f)}, v{vPO}, {WS}, s34 offen offset:{f*512} sc1')
    e(f's_cmp_eq_u32 {sPRE}, 1\ns_cbranch_scc1 {top}')
    e(f's_waitcnt vmcnt(0)\nv_mov_b32 v10, {sFV}\nbuffer_store_dword v10, off, {WS}, {sFA} sc1')
    e(f's_cmp_ge_u32 {sN}, 128\ns_cbranch_scc1 L_end')
    fetch(sIT, 11)
    flag_line(sIT2, 's31'); e(row_flags_load('s31'))
    e.vm0()
    e(f's_branch {top}')
    e.unknown()

def wname(d): return ar(d[1]) if d[0] == 'a' else vr(d[1])
def w80(i): return ('a', 4*i) if i < 64 else ('v', 192+4*(i-64))

def role_A(e, cfg):
    R = Red(); R.L_T = 65536; L_O = 49152; R.L_Y = L_O; L_M = 65536 + 4*32*336
    sN, sIT, sIT2, sCNT, sPRE, sG, sL, sPF = ['s%d' % i for i in range(62, 70)]
    sC = 98; sMP, sRF, sHD, sML = 's96', 's97', 's12', 's13'
    wo = lambda c, k: w80(16*c+k)
    e.label('L_roleA')
    tok_setup(e)
    wl = WL(e, tLANE, 0, 4096*cfg.NSL, 24, 40, cfg.NSL)
    srd(e, 16, P_WO); srd(e, 20, P_X)
    e(f's_mul_i32 s62, s70, {256*1280}')
    wl.rows32('s[16:19]', 's62', 8, wo, 16, first=lambda: arrive(e))
    sync_start(e, cfg)
    R.row = 3; R.single = cfg.SINGLE; R.sCNT = sCNT
    red_setup(e, R, 16, 16); row_setup(e, R, R.sROW); order_setup(e, mk_order(cfg.D, cfg.RAT))
    pf_base(e, sPF)
    vQ, vKV, vKM, vOW, vVM, vMD = 36, 37, 38, 39, 12, 13
    mreg = [80, 82, 84, 86, 88, 90, 92, 94]
    e(f"""s_lshr_b32 s32, {sW}, 1
    s_lshl_b32 {sHD}, {R.sM}, 1
    s_add_u32 {sHD}, {sHD}, s32
    s_lshl_b32 s33, s32, 13
    v_add_u32 v{vKV}, s33, v{tL16}
    s_and_b32 s34, {sW}, 1
    s_lshl_b32 s35, s34, 10
    v_add_u32 v{vQ}, s35, v{vKV}
    s_lshl_b32 s35, s34, 13
    s_lshr_b32 s33, s33, 1
    s_add_u32 s35, s35, s33
    v_add_u32 v{vOW}, s35, v{tL16}
    s_mul_i32 s33, s32, 6144
    s_add_u32 s33, s33, {L_M}
    v_add_u32 v{vVM}, s33, v{tL16}
    v_lshrrev_b32 v10, 4, v{tLANE}
    v_and_b32 v11, 7, v{tLANE}
    v_lshlrev_b32 v{vKM}, 7, v10
    v_lshl_add_u32 v{vKM}, v11, 4, v{vKM}
    v_add_u32 v{vKM}, s33, v{vKM}
    s_mov_b32 {sML}, s33
    s_lshl_b32 s34, s34, 4
    v_and_b32 v11, 15, v{tLANE}
    v_add_u32 v11, s34, v11
    v_lshlrev_b32 v10, 2, v10
    v_sub_u32 v11, v11, v10
    s_mov_b32 s{sC}, {f2u(CSC):#x}
    s_mov_b32 s{sC+1}, {f2u(CSC):#x}
    s_mov_b32 {sN}, s71
    s_mov_b32 {sCNT}, 0
    s_mov_b32 {sMP}, 0""")
    dummy_addr(e, sRF)
    for kt in range(2):
        for r in range(4): e(f'v_cmp_le_i32 {sp(mreg[4*kt+r])}, {16*kt+r}, v11')
    PLOAD = f's_lshl_b32 s31, {sHD}, 11\ns_add_u32 s31, s31, {F_P3}\nv_bfe_u32 v{tPOLL}, v{tLANE}, 1, 4\nv_lshlrev_b32 v{tPOLL}, 7, v{tPOLL}\nv_and_or_b32 v{tPOLL}, v{tL4}, 4, v{tPOLL}\nbuffer_load_dword v{tPOLL}, v{tPOLL}, {WS}, s31 offen sc1'
    def ptest(sit):
        return (f's_and_b32 s30, {sit}, 63\nv_cmp_ge_u32 vcc, s30, v{tPOLL}\ns_lshr_b32 s30, {sit}, 6\ns_lshl_b32 s30, 0x15151515, s30\n'
                f's_and_b32 s31, vcc_lo, s30\ns_cmp_eq_u32 s31, 0')
    def mload(sit): return f's_lshr_b32 s31, {sit}, 6\ns_lshl_b32 s31, s31, 5\ns_add_u32 s31, s31, {sHD}\ns_lshl_b32 s31, s31, 7\ns_add_u32 s31, s31, {F_R}\nbuffer_load_dword v14, off, {WS}, s31 sc1'
    def mtest(sit): return f's_and_b32 s30, {sit}, 63\nv_cmp_ge_u32 vcc, s30, v14\ns_cmp_eq_u64 vcc, 0'
    def base(sit, off): return f's_lshl_b32 {sG}, {sit}, 18\ns_lshl_b32 {sL}, {sHD}, 13\ns_add_u32 {sG}, {sG}, {sL}\ns_add_u32 {sG}, {sG}, {off}\n'
    def mdma(sit, voff):
        return [lambda: e(base(sit, OFF_MM) + f's_mov_b32 {sL}, {sML}')] + dma_steps(e, sG, sL, 6, voff, cfg.AMF)
    def dma(sit, voff):
        out = [lambda: e(base(sit, OFF_KF) + f's_and_b32 {sL}, {sL}, 8192')]
        for x in range(3):
            if x: out.append(lambda: e(f's_add_u32 {sG}, {sG}, {32*MB-4096}\ns_add_u32 {sL}, {sL}, {16384-4096}'))
            out += dma_steps(e, sG, sL, 8, voff, cfg.ADF if x < 2 else cfg.AMF)
        return out
    ROWFLAG = f'v_mov_b32 v11, 1\nbuffer_store_dword v11, off, {WS}, {sRF} sc1'
    QF, KM, KB, S, VM, VF = 40, 56, 72, 112, 124, 140
    LD, O = 72, 40
    OB, PK, ST, ACC = 40, 104, 112, 128
    Y2, Y, RES, TMP = 160, 172, 184, 190
    L_D = L_M + 12288
    e(f'v_add_u32 v{R.ly}, {L_D+64-L_O}, v{R.ly}\ns_lshl_b32 s33, {sW}, 2\ns_add_u32 s33, s33, {L_D}\nv_mov_b32 v{vMD}, s33\nv_mov_b32 v15, {L_D}')
    sITA, sIT3, sPEND = 's14', 's15', 's19'
    piece_setup(e, 0, 8192)
    def att(h):
        def H(n):
            if n in h: h[n]()
        tq = [e.ds(f'ds_read_b128 {vr(QF+4*k)}, v{vQ} offset:{32768+k*2048}') for k in range(4)]
        tk = [e.ds(f'ds_read_b128 {vr(KB+4*j)}, v{vKV} offset:{j*1024}') for j in range(8)]
        H('start')
        for k in range(4):
            for t in range(2):
                e.wds(tk[2*k+t]); a = vr(S+4*t)
                e(f'{MF} {a}, {vr(KB+8*k+4*t)}, {vr(QF+4*k)}, {a if k else 0}')
                e.ds(f'ds_read_b128 {vr(VF+4*(2*k+t))}, v{vKV} offset:{16384+(2*k+t)*1024}')
        H('mid')
        MX, TT, SM = 6, 7, TMP
        e(f'v_mov_b32 v7, {NEG:#x}')
        for j in range(8): e(f'v_cndmask_b32 v{S+j}, v7, v{S+j}, {sp(mreg[j])}')
        e(f'v_max3_f32 v{MX}, v{S}, v{S+1}, v{S+2}\nv_max3_f32 v{MX}, v{MX}, v{S+3}, v{S+4}\nv_max3_f32 v{MX}, v{MX}, v{S+5}, v{S+6}\nv_max_f32 v{MX}, v{MX}, v{S+7}')
        H('mm')
        tkm = [e.ds(f'ds_read_b128 {vr(KM+4*k)}, v{vKM} offset:{4096+k*512}') for k in range(4)]
        tvm = [e.ds(f'ds_read_b128 {vr(VM+4*k)}, v{vVM} offset:{k*1024}') for k in range(4)]
        H('early')
        for k in range(4):
            e.wds(tkm[k]); e(f'{MF} {vr(S+8)}, {vr(KM+4*k)}, {vr(QF+4*k)}, {vr(S+8) if k else 0}')
        H('p1')
        e(f'v_max3_f32 v{MX}, v{MX}, v{S+8}, v{S+9}\nv_max3_f32 v{MX}, v{MX}, v{S+10}, v{S+11}')
        xlane(e, 'v_max_f32', MX, TT)
        e(f'v_mul_f32 v{MX}, s{sC}, v{MX}')
        for r in range(0, 12, 2): e(f'v_pk_fma_f32 {vr(S+r,2)}, {vr(S+r,2)}, {sp(sC)}, {vr(MX,2)} op_sel_hi:[1,1,0] neg_lo:[0,0,1] neg_hi:[0,0,1]')
        for r in range(12): e(f'v_exp_f32 v{S+r}, v{S+r}')
        e(f'v_pk_add_f32 {vr(SM,2)}, {vr(S+8,2)}, {vr(S+10,2)}\nv_pk_fma_f32 {vr(SM,2)}, {vr(SM,2)}, 0.5, {vr(S,2)} op_sel_hi:[1,0,1]')
        for r in range(2, 8, 2): e(f'v_pk_add_f32 {vr(SM,2)}, {vr(SM,2)}, {vr(S+r,2)}')
        e(f'v_add_f32 v{SM}, v{SM}, v{SM+1}')
        xlane(e, 'v_add_f32', SM, TT)
        e(f'v_rcp_f32 v{SM}, v{SM}')
        H('p2a')
        for r in range(0, 12, 2): e(f'v_pk_mul_f32 {vr(S+r,2)}, {vr(S+r,2)}, {vr(SM,2)} op_sel_hi:[1,0]')
        PX, PM = S, S+4
        for r in range(6): e(f'v_cvt_pk_bf16_f32 v{PX+r}, v{S+2*r}, v{S+2*r+1}')
        H('p2')
        e.wds(tvm[3])
        def oc(f, hh):
            for r in (2*hh, 2*hh+1): e(f'v_cvt_pk_bf16_f32 v{VF+8*f+r}, v{O+8*f+r}, v{O+8*f+4+r}')
        def ow(f): e.ds(f'ds_write_b128 v{vOW}, {vr(VF+8*f)} offset:{L_O+f*1024}')
        q = [x for f in range(4) for x in ((oc, f, 0), (oc, f, 1), (ow, f))]
        for f in range(4):
            for t in (2*f, 2*f+1): e(f'{MF} {vr(O+4*t)}, {vr(VF+4*t)}, {vr(PX)}, 0')
            H('drip')
            for t in (2*f, 2*f+1): e(f'{MF16} {vr(O+4*t)}, {vr(VM+2*t,2)}, {vr(PM,2)}, {vr(O+4*t)}')
            H('drip')
            if f >= 2:
                for _ in range(3): x = q.pop(0); x[0](*x[1:])
        for x in q:
            x[0](*x[1:])
            if x[0] is ow: H('drip')
    def odd(f, track=True):
        l = e.lab('A_'); n0 = (e.vmn, e.vmdone)
        e(f's_bitcmp1_b32 {sW}, 0\ns_cbranch_scc0 {l}'); f(); e.label(l)
        e.vmn, e.vmdone = n0
    def blocking_att(code):
        def f():
            h1 = e.lab('A_'); h2 = e.lab('A_')
            e(f's_cmp_eq_u32 {sPRE}, 1\ns_cbranch_scc1 {h1}')
            poll(e, cfg, PLOAD, ptest(sITA), code)
            for x in dma(sITA, tL16): x()
            e.vm0(); e.label(h1)
        odd(f)
        e('s_barrier')
        def g():
            h2 = e.lab('A_')
            e(f's_cmp_eq_u32 {sMP}, 1\ns_cbranch_scc1 {h2}')
            poll(e, cfg, mload(sITA), mtest(sITA), code+1)
            for x in mdma(sITA, tL16): x()
            e.vm0(); e.label(h2)
        att({'mm': lambda: (odd(g), e('s_barrier')), 'p1': lambda: odd(lambda: e(PLOAD))})
        e.vm0()
        e.ds0(); e(f's_barrier\ns_mov_b32 {sPEND}, 0')
    def resl():
        l1 = e.lab('A_'); l2 = e.lab('A_')
        e(f's_and_b32 s33, {sIT}, 63\ns_lshl_b32 s33, s33, 5\ns_add_u32 s33, s33, {R.sROW}\ns_mul_i32 s33, s33, 1280\ns_cmp_lt_u32 {sIT}, 64\ns_cbranch_scc1 {l1}\ns_add_u32 s33, s33, {OFF_X2}')
        n0 = e.vmn; res_load(e, R, WS, 's33', RES); e.vmn = n0
        e(f's_branch {l2}'); e.label(l1)
        res_load(e, R, 's[20:23]', 's33', RES); e.label(l2)
    def fin_addr():
        e(f's_lshl_b32 s16, {sIT}, 5\ns_add_u32 s16, s16, {R.sROW}\ns_lshl_b32 {sRF}, s16, 7\ns_add_u32 {sRF}, {sRF}, {F_XN1}\ns_mul_i32 s16, s16, 1280\ns_add_u32 s16, s16, {OFF_X1}\ns_mul_i32 s17, {sIT}, {ITEM}\ns_add_u32 s17, s17, {OFF_XN1}')
    def RFL():
        if not cfg.ARL: return
        l = e.lab('A_'); e(f's_bitcmp1_b32 {sW}, 0\ns_cbranch_scc1 {l}\ns_cmp_eq_u32 {sPEND}, 1\ns_cbranch_scc0 {l}\n' + ROWFLAG); e.label(l)
    def fin(em):
        reduce_gather(em, R, Y2, Y)
        finish_row(em, R, Y, RES, TMP, True, (WS, 's16', 'sc1'), 's17', 's18', Y2)
    e(f'v_mov_b32 v11, 1\nds_write_b32 v{vMD}, v11\nds_write_b32 v{vMD}, v11 offset:16\ns_mov_b32 {sPRE}, 0')
    if cfg.DRY:
        order_item(e, sN, sIT3)
        e(f's_sub_u32 {sN}, {sN}, {cfg.NGA}\ns_mov_b32 {sITA}, 128\ns_mov_b32 {sPRE}, 1\ns_mov_b32 {sMP}, 1')
    else:
        order_item(e, sN, sITA)
        e(f's_add_u32 s32, {sN}, {cfg.NGA}'); order_item(e, 's32', sIT3)
    e('s_branch L_Ablock')
    top, join = 'L_Atop', 'L_Ajoin'
    e.label(top); e.unknown()
    prof(e, cfg, 0)
    def oread(k): return e.ds(f'ds_read_b128 {vr(OB+4*k)}, v0 offset:{L_O+k*512}')
    oread.tok = {k: oread(k) for k in range(4)}
    e(f's_mov_b32 {sIT}, {sITA}\ns_mov_b32 {sITA}, {sIT3}\ns_add_u32 {sN}, {sN}, {cfg.NGA}\ns_add_u32 {sCNT}, {sCNT}, 1')
    e(f's_bitcmp1_b32 {sW}, 0\ns_cbranch_scc1 L_Ab2\ns_cmp_eq_u32 {sPEND}, 1\ns_cbranch_scc1 L_Ab1')
    st0 = (e.vmn, e.vmdone, e.lgn, e.lgdone)
    def back(kind):
        fill = {}; tm = {}; r = None; aft = None
        at(fill, 32, lambda: prof(e, cfg, 1))
        at(fill, 9, lambda: (e(f's_add_u32 s32, {sN}, {cfg.NGA}'), order_item(e, 's32', sIT3)))
        if kind == 1:
            at(fill, 1, lambda: e('s_waitcnt vmcnt(0)'))
            r = Rec(); fin(r)
            def aft(last):
                p = min(last + cfg.ARD, 79)
                if not cfg.ARL: at(fill, p, lambda: (e.wvm(r.tok['last']), e.vm(ROWFLAG)))
            at(fill, cfg.ARES, resl)
        if kind == 0: at(fill, 7, resl)
        if kind == 2:
            e(ptest(sITA) + gate(sPRE, tDMA, sITA))
            q = dma(sITA, tDMA)
            for j, f in enumerate(q): at(fill, int(cfg.AB1+cfg.ABS*j), f)
            p = int(cfg.AB1+cfg.ABS*len(q))
            at(fill, p-cfg.AML, lambda: tm.update(m=e.vm(mload(sITA))))
            at(fill, p, lambda: (e.wvm(tm['m']), e(mtest(sITA) + gate(sMP, 14, sITA))))
            q = mdma(sITA, 14)
            for j, f in enumerate(q): at(fill, int(p+1+cfg.ABS*j), f)
            p = int(p+1+cfg.ABS*len(q))
            at(fill, p, lambda: tm.update(t=e.vm(PLOAD)))
            at(fill, p+1, lambda: (e(f's_and_b32 s30, {sPRE}, {sMP}\nv_mov_b32 v11, s30'), e.ds(f'ds_write_b32 v{vMD}, v11')))
        slot_free(e, cfg, R, fill, cfg.ASF, (cfg.AS0 or 37)+2, 27)
        out_proj(e, R, lambda c,k: wname(wo(c,k)), 16, OB, oread, ACC, PK, ST, fill, cfg.AS0, r, aft, cfg.ABUD)
        if kind == 2: e.wvm(tm['t'])
    for k_ in range(3):
        if k_: e.label(f'L_Ab{k_}'); e.vmn, e.vmdone, e.lgn, e.lgdone = st0
        back(k_)
        if k_ < 2: e(f's_branch {join}')
    e.label(join)
    e.vmdone = e.vmn - 1
    prof(e, cfg, 2)
    tt = decide(e, 15, 40, lambda: out_tail1(e, R, ACC, PK))
    e(f'v_xor_b32 v15, 16, v15\nv_xor_b32 v{vMD}, 16, v{vMD}')
    seq = e.lab('A_')
    e(f's_cbranch_scc0 {seq}')
    st = (e.vmn, e.vmdone, e.lgn, e.lgdone)
    prof(e, cfg, 3)
    k = {}
    att({'start': lambda: k.update(ts=out_tail2(e, R, PK, tt)),
         cfg.AH[0]: lambda: (e.wvm(k['ts']), publish(e, R, sCNT), RFL(), fin_addr()),
         cfg.AH[1]: lambda: k.update(g=e.vm(grp_load(R))),
         'p2': lambda: (prof(e, cfg, 4), grp_wait(e, cfg, R, sCNT, 23, k['g']), prof(e, cfg, 5), k.update(t={}), k.update(q=rs_steps(e, R, LD, k['t']))),
         'drip': lambda: k['q'].pop(0)()})
    assert not k['q']
    prof(e, cfg, 6)
    rs_sum(e, R, k['t'], LD, Y)
    e.ds0(); e(f's_barrier\ns_mov_b32 {sPEND}, 1')
    prof(e, cfg, 7); prof_flush(e, cfg, 8, sPF)
    e(f's_branch {top}')
    e.label(seq); e.vmn, e.vmdone, e.lgn, e.lgdone = st
    for i in (3, 4): prof(e, cfg, i)
    e.wvm(out_tail2(e, R, PK, tt)); publish(e, R, sCNT); RFL(); fin_addr()
    if cfg.GDLY: e(f's_sleep {cfg.GDLY}')
    grp_wait(e, cfg, R, sCNT, 25)
    for i in (5, 6): prof(e, cfg, i)
    t_ = rs_loads(e, R, LD)
    rs_sum(e, R, t_, LD, Y)
    e.ds0()
    skip = e.lab('A_')
    e(f's_barrier\ns_bitcmp1_b32 {sW}, 0\ns_cbranch_scc1 {skip}')
    e.vm0(); fin(e); e.vm0(); e(ROWFLAG)
    e.label(skip)
    prof(e, cfg, 7); prof_flush(e, cfg, 8, sPF)
    e(f's_cmp_ge_u32 {sITA}, 128\ns_cbranch_scc1 L_end')
    e.label('L_Ablock'); e.unknown()
    blocking_att(26)
    e(f's_branch {top}')
    flush_cold(e); e.unknown()

def role_F(e, cfg):
    NGF = 6 - cfg.NGA
    R = Red(); R.L_T = 65536; L_H = 40960; R.L_Y = 49152
    sN, sIT, sIT2, sCNT, sPRE, sG, sL, sPF = ['s%d' % i for i in range(62, 70)]
    sNL = 's80'
    w1 = lambda k: w80(k)
    w2 = lambda c, k: w80(40+8*c+k)
    e.label('L_roleF')
    tok_setup(e)
    srd(e, 12, P_W1); srd(e, 16, P_W2); srd(e, 96, P_OUT)
    now = e.lab('f'); now2 = e.lab('f')
    e(f's_cmp_lt_u32 s70, 14\ns_cbranch_scc1 {now}')
    e.vm0(); arrive(e); e(f's_branch {now2}')
    e.label(now)
    wl = WL(e, tLANE, 0, 4096*cfg.NSL, 24, 40, cfg.NSL)
    e(f's_lshl_b32 s33, s70, 8'); s1 = wl.src(16, 3456, 's33', False)
    wl.cols32('s[12:15]', s1, 10, w1, 18, False, first=lambda: arrive(e))
    e(f's_mul_i32 s62, s70, {128*1280}')
    wl.rows32('s[16:19]', 's62', 4, w2, 16)
    e.label(now2)
    sync_start(e, cfg)
    R.row = 96; R.single = cfg.SINGLE; R.sCNT = sCNT
    red_setup(e, R, 100, 14); row_setup(e, R, R.sROW); order_setup(e, mk_order(cfg.D, cfg.RAT))
    pf_base(e, sPF)
    e(f's_sub_u32 {sN}, {R.sG}, {cfg.NGA}')
    vHW, vD, vDW, vXA = 16, 17, 18, 20
    x_setup(e, vXA); l128_setup(e)
    L_D = 57344
    sRF, sITA, sPEND = 's82', 's14', 's19'
    e(f's_mov_b32 {sNL}, {f2u(-math.log2(math.e)):#x}\ns_mov_b32 s81, {sNL}\ns_mov_b32 {sCNT}, 0\ns_lshl_b32 s33, {sW}, 11\nv_add_u32 v{vHW}, s33, v{tL16}')
    e(f's_lshl_b32 s33, {sW}, 2\ns_add_u32 s33, s33, {L_D}\nv_mov_b32 v{vDW}, s33\nv_mov_b32 v{vD}, {L_D}')
    XB = [40+4*i for i in range(8)]; FA, HF, LD = 72, 88, 120
    OB, PK, ST, ACC = 40, 72, 80, 120
    Y2, Y, RES, TMP = 160, 172, 184, 190
    ROWFLAG = f'v_mov_b32 v11, 1\nbuffer_store_dword v11, off, {WS}, {sRF} sc1'
    def xpoll(sit): return f's_lshl_b32 s31, {sit}, 12\ns_add_u32 s31, s31, {F_XN1}\n' + row_flags_load('s31')
    def dma(sit, voff):
        return [lambda: e(f's_lshr_b32 {sL}, {sW}, 1\ns_mul_i32 {sL}, {sL}, 20480\ns_mul_i32 {sG}, {sit}, {ITEM}\ns_add_u32 {sG}, {sG}, {sL}\ns_add_u32 {sG}, {sG}, {OFF_XN1}')] + dma_steps(e, sG, sL, 20, voff)
    def odd(f):
        l = e.lab('f'); n0 = (e.vmn, e.vmdone)
        e(f's_bitcmp1_b32 {sW}, 0\ns_cbranch_scc0 {l}'); f(); e.label(l)
        e.vmn, e.vmdone = n0
    def resl():
        e(f's_lshl_b32 s30, {sIT}, 5\ns_add_u32 s30, s30, {R.sROW}\ns_mul_i32 s30, s30, 1280\ns_add_u32 s30, s30, {OFF_X1}')
        res_load(e, R, WS, 's30', RES)
        e(f"""s_and_b32 s17, {sIT}, 63
        s_cmp_ge_u32 {sIT}, 128
        s_cselect_b32 s17, 64, s17
        s_lshl_b32 s16, s17, 5
        s_add_u32 s16, s16, {R.sROW}
        s_lshl_b32 {sRF}, s16, 7
        s_add_u32 {sRF}, {sRF}, {F_XN+64*4096}
        s_cmp_ge_u32 {sIT}, 128
        s_cselect_b32 {sRF}, s84, {sRF}
        s_mul_i32 s16, s16, 1280
        s_add_u32 s15, s16, {OFF_X2}
        s_mul_i32 s17, s17, {ITEM}
        s_add_u32 s17, s17, {OFF_XN+64*ITEM}
        s_bfe_u32 s13, {sIT}, 0x10006""")
    def fin(em, layer):
        reduce_gather(em, R, Y2, Y)
        if layer == 0: finish_row(em, R, Y, RES, TMP, True, (WS, 's15', 'sc1'), 's17', 's18', Y2)
        else: finish_row(em, R, Y, RES, TMP, True, ('s[96:99]', 's16', ''), None, None, Y2)
    def fin_now():
        skip = e.lab('f'); last = e.lab('f')
        e(f's_bitcmp1_b32 {sW}, 0\ns_cbranch_scc1 {skip}\ns_waitcnt vmcnt(0)\ns_cmp_eq_u32 s13, 1\ns_cbranch_scc1 {last}')
        fin(e, 0); e.vm0(); e(ROWFLAG + f'\ns_branch {skip}')
        e.label(last); fin(e, 1)
        e.label(skip)
    def front(h):
        xs = Stream(e, XB, [xfrag(e, k, vXA) for k in range(40)]); xs.prime()
        if 'start' in h: h['start']()
        a = vr(FA, 16)
        for k in range(40):
            e(f'{MF32} {a}, {wname(w1(k))}, {xs.get(k)}, {a if k else 0}')
            xs.issue()
            if 'drip' in h: h['drip']()
            if k in h: h[k]()
            if k == 2: e(f's_add_u32 s32, {sN}, {NGF}'); order_item(e, 's32', sIT2)
            if k == 39: tp = e.vm(xpoll(sIT2))
        T = 40
        for r in range(0, 16, 2): e(f'v_pk_mul_f32 {vr(T+r,2)}, {vr(FA+r,2)}, s[80:81]')
        for r in range(16): e(f'v_exp_f32 v{T+r}, v{T+r}')
        for r in range(0, 16, 2): e(f'v_pk_add_f32 {vr(T+r,2)}, {vr(T+r,2)}, 1.0 op_sel_hi:[1,0]')
        for r in range(16): e(f'v_rcp_f32 v{T+r}, v{T+r}')
        for r in range(0, 16, 2): e(f'v_pk_mul_f32 {vr(FA+r,2)}, {vr(FA+r,2)}, {vr(T+r,2)}')
        for u in range(2):
            for r in range(4): e(f'v_cvt_pk_bf16_f32 v{HF+4*u+r}, v{FA+8*u+2*r}, v{FA+8*u+2*r+1}')
            e.ds(f'ds_write_b128 v{vHW}, {vr(HF+4*u)} offset:{L_H+u*1024}')
        if 'end' in h: h['end']()
        odd(lambda: (e.wvm(tp), e(ROW_TEST + gate(sPRE, tDMA, sIT2) + f'\nv_mov_b32 v11, {sPRE}\nds_write_b32 v{vDW}, v11')))
        e.ds0(); e('s_barrier')
    order_item(e, sN, sITA); dummy_addr(e, 's84')
    e(f'v_mov_b32 v11, 1\nds_write_b32 v{vDW}, v11\nds_write_b32 v{vDW}, v11 offset:16\ns_mov_b32 {sPRE}, 0')
    if cfg.DRY: e(f's_sub_u32 {sN}, {sN}, {NGF}\ns_mov_b32 {sITA}, 128\ns_mov_b32 {sPRE}, 1')
    top, join, rtop = 'L_Ftop', 'L_Fjoin', 'L_Frtop'
    e(f's_cmp_lt_u32 {R.sM}, 14\ns_cbranch_scc1 L_Fblock')
    e.label(rtop)
    e(f's_mov_b32 {sIT}, {sITA}\ns_add_u32 {sCNT}, {sCNT}, 1')
    publish(e, R, sCNT)
    grp_wait(e, cfg, R, sCNT, 33)
    t_ = rs_loads(e, R, LD); resl()
    rs_sum(e, R, t_, LD, Y)
    e.ds0(); e('s_barrier'); fin_now()
    e(f's_barrier\ns_add_u32 {sN}, {sN}, {NGF}'); order_item(e, sN, sITA)
    e(f's_cmp_lt_u32 {sN}, 128\ns_cbranch_scc1 {rtop}\ns_endpgm')
    e.label(top); e.unknown()
    prof(e, cfg, 0)
    def oread(k): return e.ds(f'ds_read_b128 {vr(OB+4*k)}, v{tL16} offset:{L_H+k*1024}')
    oread.tok = {k: oread(k) for k in range(4)}
    e(f's_mov_b32 {sIT}, {sITA}\ns_mov_b32 {sITA}, {sIT2}\ns_add_u32 {sN}, {sN}, {NGF}\ns_add_u32 {sCNT}, {sCNT}, 1')
    def RFL():
        l = e.lab('f'); e(f's_cmp_eq_u32 {sPEND}, 1\ns_cbranch_scc0 {l}\n' + ROWFLAG); e.label(l)
    e(f's_cmp_eq_u32 {sPEND}, 1\ns_cbranch_scc1 L_Fb1\ns_cmp_eq_u32 {sPEND}, 2\ns_cbranch_scc1 L_Fb2\ns_bitcmp1_b32 {sW}, 0\ns_cbranch_scc1 L_Fb3')
    st0 = (e.vmn, e.vmdone, e.lgn, e.lgdone)
    def back(kind):
        fill = {}; tm = {}; r = None
        if kind == 3:
            q = dma(sITA, tDMA)
            for j, f in enumerate(q): at(fill, int(cfg.FD0+cfg.FDS*j), f)
            at(fill, int(cfg.FD0+cfg.FDS*len(q)), lambda: tm.update(t=e.vmn))
        elif kind:
            at(fill, 0, lambda: e('s_waitcnt vmcnt(0)'))
            r = Rec(cfg.FSC); fin(r, kind-1)
        slot_free(e, cfg, R, fill, cfg.FSF, 23, 35)
        out_proj(e, R, lambda c,k: wname(w2(c,k)), 8, OB, oread, ACC, PK, ST, fill, None, r, None, cfg.FBUD)
        if kind == 3: e.wvm(tm['t'])
    for k_ in range(4):
        if k_: e.label(f'L_Fb{k_}'); e.vmn, e.vmdone, e.lgn, e.lgdone = st0
        back(k_)
        if k_ < 3: e(f's_branch {join}')
    e.label(join)
    e.vmdone = e.vmn - 1
    prof(e, cfg, 1)
    PKT = 24
    tt = decide(e, vD, 40, lambda: out_tail1(e, R, ACC, PKT))
    e(f'v_xor_b32 v{vD}, 16, v{vD}\nv_xor_b32 v{vDW}, 16, v{vDW}')
    seq = e.lab('f')
    e(f's_cbranch_scc0 {seq}')
    st = (e.vmn, e.vmdone, e.lgn, e.lgdone)
    prof(e, cfg, 2)
    k = {}
    front({'start': lambda: k.update(ts=out_tail2(e, R, PKT, tt)),
           cfg.FH[0]: lambda: (e.wvm(k['ts']), publish(e, R, sCNT), RFL(), resl()), cfg.FH[1]: lambda: k.update(g=e.vm(grp_load(R))),
           cfg.FH[2]: lambda: (prof(e, cfg, 3), grp_wait(e, cfg, R, sCNT, 31, k['g']), prof(e, cfg, 4), k.update(t={}), k.update(q=rs_steps(e, R, LD, k['t'], 's34', 's35'))),
           'drip': lambda: k.get('q') and k['q'].pop(0)(),
           'end': lambda: ([f() for f in k['q']], prof(e, cfg, 5), rs_sum(e, R, k['t'], LD, Y))})
    e(f's_add_u32 {sPEND}, s13, 1\ns_bitcmp1_b32 {sW}, 0\ns_cselect_b32 {sPEND}, 0, {sPEND}')
    prof(e, cfg, 6); prof_flush(e, cfg, 7, sPF)
    e(f's_branch {top}')
    e.label(seq); e.vmn, e.vmdone, e.lgn, e.lgdone = st
    prof(e, cfg, 2)
    e.wvm(out_tail2(e, R, PKT, tt)); publish(e, R, sCNT); RFL()
    if cfg.GDLY: e(f's_sleep {cfg.GDLY}')
    prof(e, cfg, 3)
    grp_wait(e, cfg, R, sCNT, 34)
    prof(e, cfg, 4)
    t_ = rs_loads(e, R, LD); resl()
    rs_sum(e, R, t_, LD, Y)
    e.ds0(); e('s_barrier')
    prof(e, cfg, 5)
    fin_now()
    prof(e, cfg, 6); prof_flush(e, cfg, 7, sPF)
    e(f's_cmp_ge_u32 {sITA}, 128\ns_cbranch_scc1 L_end')
    e.label('L_Fblock'); e.unknown()
    def fetch():
        got = e.lab('f')
        e(f's_cmp_eq_u32 {sPRE}, 1\ns_cbranch_scc1 {got}')
        poll(e, cfg, xpoll(sITA), ROW_TEST, 32)
        for f in dma(sITA, tL16): f()
        e.vm0(); e.label(got)
    odd(fetch)
    e('s_barrier')
    front({}); e(f's_mov_b32 {sPEND}, 0\ns_branch {top}')
    flush_cold(e); e.unknown()

def role_LN(e, cfg):
    R = Red(); R.L_T = 0; R.L_Y = 0; R.row = 96
    e.label('L_roleLN')
    tok_setup(e)
    e.vm0(); arrive(e)
    e('s_mov_b32 s70, 0\ns_mov_b32 s71, 0')
    red_setup(e, R, 100, 14)
    srd(e, 20, P_X)
    e(f's_lshl_b32 s62, {sH}, 2\ns_add_u32 s62, s62, {sW}\ns_and_b32 s34, s62, 31\ns_mul_i32 s30, s62, 1280')
    row_setup(e, R, 's34')
    for k in range(16):
        res_load(e, R, 's[20:23]', 's30', 128+6*k); e(f's_add_u32 s30, s30, {128*1280}')
    sync_start(e, cfg)
    e(f's_lshr_b32 s31, s62, 5\ns_mul_i32 s31, s31, {ITEM}\ns_add_u32 s31, s31, {OFF_XN}\ns_lshl_b32 s32, s62, 7\ns_add_u32 s32, s32, {F_XN}\nv_mov_b32 v11, 1')
    prev = None
    for k in range(16):
        finish_row(e, R, 40+16*(k & 1), 128+6*k, 52+16*(k & 1), False, None, 's31')
        e(f's_add_u32 s31, s31, {4*ITEM}')
        if k:
            e.wvm(prev); e.vm(f'buffer_store_dword v11, off, {WS}, s32 sc1'); e(f's_add_u32 s32, s32, {4*4096}')
            prev = e.vmn - 1
        else: prev = e.vmn
    e.vm0(); e(f'buffer_store_dword v11, off, {WS}, s32 sc1\ns_branch L_roleR')
    e.unknown()

def build(**kw):
    cfg = C()
    cfg.D = 12; cfg.A = 24; cfg.NGA = 3; cfg.KVF = 'sc1'
    cfg.RS_S = [0, 2, 4, 20, 27, 34, 41, 48, 55]
    cfg.RS_L = [7,13,18,24,30,36,42,47,52,58,60,61,64,66,68,70,72,75,78]
    cfg.RS_LB = {60:2,64:2,68:2,72:2}
    cfg.PP = ['top','ag','qkv','sm','wo0','wo1','rs0','rs1']; cfg.SPAD = 256; cfg.SHARE = 0; cfg.STF = 'sc1'; cfg.NOMM = 0; cfg.NOFL = 0; cfg.PFL = 0; cfg.MMF = 'sc1'; cfg.PMID = 23; cfg.PPOLL = 19; cfg.RAT = 1.0; cfg.PRAT = 1.0; cfg.DRY = 1; cfg.KLATE = 0; cfg.VDB = 0; cfg.FRL = 2; cfg.WPK = 1; cfg.FLAG = 6; cfg.RACK = 1; cfg.RDLY = 0; cfg.AACK = 0; cfg.ADLY = 0
    cfg.SPIN = 1 << 19; cfg.PROF = 0; cfg.FORCE = 0; cfg.PSLEEP = 1
    cfg.RFREE = 0; cfg.NOSTREAM = 0; cfg.NOKV = 0; cfg.ONLYR = 0; cfg.CPF = 0; cfg.NSL = 3; cfg.RNSL = 3; cfg.PAIR = 1; cfg.ADF = 'sc1'; cfg.AMF = 'sc1 nt'; cfg.FH = [9, 21, 28]; cfg.FD0 = 0; cfg.FDS = 1; cfg.FSC = True; cfg.FCH = 6; cfg.AP0 = 40; cfg.AP1 = 84; cfg.ARF = 62; cfg.ONEP = 1; cfg.ARD = 20; cfg.ABUD = 24; cfg.FBUD = 32; cfg.GDLY = 3; cfg.SINGLE = 1; cfg.ASF = 20; cfg.FSF = 8; cfg.AH = ['mm', 'p1']; cfg.AB1 = 0; cfg.AML = 22; cfg.ARES = 26; cfg.ARL = 0; cfg.ABS = 1.4; cfg.AD1 = 8; cfg.AS0 = 48; cfg.AM0 = 80; cfg.AM1 = 118; cfg.NOPRE = 0; cfg.ADMA0 = 10; cfg.ADMAS = 2
    for k, v in kw.items(): setattr(cfg, k, v)
    if cfg.VDB and 'RS_S' not in kw: cfg.RS_S = [0, 2, 4, 19, 25, 31, 37, 43, 49, 55]; cfg.RS_LB = {60: 1, 61: 2, 62: 0}
    e = E(); e.cold = []; Red.onepass = cfg.ONEP; WL.PROF = cfg.PROF
    e(f"""s_cmp_ge_u32 s2, 256
    s_cbranch_scc1 L_end
    s_load_dwordx16 s[36:51], s[0:1], 0
    s_load_dwordx8 s[52:59], s[0:1], 64
    s_load_dwordx2 s[60:61], s[0:1], 96
    s_getreg_b32 s3, hwreg(HW_REG_XCC_ID, 0, 4)
    {'s_memrealtime s[100:101]' if cfg.PROF else ''}
    v_lshrrev_b32 v1, 6, v0""")
    if cfg.CPF:
        e('s_getpc_b64 s[30:31]'); e.label('L_pc')
        e('v_lshlrev_b32 v2, 7, v0\ns_mov_b32 s32, L_codeend-L_pc-4')
        for j in range(4):
            e(f'v_min_u32 v3, s32, v2\nglobal_load_dword v{252+j}, v3, s[30:31]\nv_add_u32 v2, 32768, v2')
    e(f's_waitcnt lgkmcnt(0)\nv_readfirstlane_b32 {sW}, v1')
    srd(e, 4, P_WS); srd(e, 8, P_DBG)
    e(f"""s_lshr_b32 s30, s2, 4
    s_cmp_eq_u32 s30, 1
    s_cselect_b32 s30, -1, 0
    v_mov_b32 v4, s30
    v_mov_b32 v5, s30
    v_mov_b32 v6, s30
    v_mov_b32 v7, s30
    v_lshlrev_b32 v2, 4, v0
    s_lshl_b32 s31, s2, 12
    s_and_b32 s3, s3, 7
    buffer_store_dwordx4 v[4:7], v2, {WS}, s31 offen sc1
    v_mov_b64 v[8:9], 0
    v_mov_b64 v[10:11], 0
    s_add_u32 s31, s31, {MB}
    buffer_store_dwordx4 v[8:11], v2, {WS}, s31 offen sc1
    s_mov_b32 {sGRP}, s3
    s_lshr_b32 {sH}, s2, 3
    s_mov_b32 {sMODE}, 0
L_dispatch:
    s_cmp_eq_u32 {sGRP}, 0
    s_cbranch_scc1 L_roleR
    s_cmp_eq_u32 {sGRP}, 1
    s_cbranch_scc1 L_roleLN""")
    if cfg.ONLYR: e.vm0(); arrive(e); e('s_endpgm')
    e(f"""s_cmp_eq_u32 {sGRP}, 2
    s_cbranch_scc1 L_roleK
    s_cmp_eq_u32 {sGRP}, 3
    s_cbranch_scc1 L_roleV
    s_cmp_eq_u32 {sGRP}, 4
    s_cbranch_scc1 L_roleQ""")
    group_ids(e, cfg.PAIR)
    e(f"""s_cmp_lt_u32 s71, {cfg.NGA}
    s_cbranch_scc1 L_roleA
    s_branch L_roleF
L_rank:
    v_and_b32 v1, 63, v0
    v_lshlrev_b32 v1, 2, v1
    buffer_load_dword v2, v1, {DBG}, 0 offen sc1
    s_mov_b32 {sH}, 0
    s_mov_b32 s31, 0
    s_waitcnt vmcnt(0)""")
    for b in range(4):
        e(f'v_bfe_u32 v{4+b}, v2, {8*b}, 3\nv_add_u32 v3, {b}, v1\nv_cmp_gt_u32 s[32:33], s2, v3\nv_cmp_eq_u32 vcc, s3, v{4+b}\ns_and_b64 vcc, vcc, s[32:33]\ns_bcnt1_i32_b64 s30, vcc\ns_add_u32 {sH}, {sH}, s30')
    for x in range(8):
        e('s_mov_b32 s34, 0')
        for b in range(4): e(f'v_cmp_eq_u32 vcc, {x}, v{4+b}\ns_bcnt1_i32_b64 s30, vcc\ns_add_u32 s34, s34, s30')
        e('s_xor_b32 s34, s34, 32\ns_or_b32 s31, s31, s34')
    if cfg.FORCE == 2: e('s_mov_b32 s31, 1')
    e(f"""s_mov_b32 {sMODE}, 1
    s_cmp_eq_u32 s31, 0
    s_cbranch_scc1 L_dispatch
    s_mov_b32 {sMODE}, 2
    s_lshr_b32 {sGRP}, s2, 5
    s_and_b32 {sH}, s2, 31
    s_branch L_dispatch
L_abort:
    s_lshl_b32 s30, {sGRP}, 16
    s_lshl_b32 s31, {sH}, 8
    s_or_b32 s29, s29, s30
    s_or_b32 s29, s29, s31
    v_mov_b32 v1, s29
    s_lshl_b32 s30, {sGRP}, 2
    s_add_u32 s30, s30, {F_ABORT}
    buffer_store_dword v1, off, {WS}, s30
L_end:
    s_endpgm""")
    role_R(e, cfg); role_LN(e, cfg); role_F(e, cfg)
    for nm in 'KVQ': role_P(e, cfg, nm)
    role_A(e, cfg)
    e.label('L_codeend'); e('s_endpgm')
    head = open('cdna_kernels/'+NAME[:-7]+'.s.ref').read().split('; Override')[0] if cfg.__dict__.get('HEAD', 1) else ''
    return head + f"""; @launch grid=(256,1,1) block=(256,1,1) lds=163840
.amdgcn_target "amdgcn-amd-amdhsa--gfx950"
.text
.globl {NAME}
.p2align 8
.type {NAME},@function
{NAME}:
""" + e.text() + f""".section .rodata,"a"
.p2align 6
.amdhsa_kernel {NAME}
  .amdhsa_next_free_vgpr 512
  .amdhsa_next_free_sgpr 102
  .amdhsa_accum_offset 256
  .amdhsa_group_segment_fixed_size 0
  .amdhsa_kernarg_size 104
  .amdhsa_user_sgpr_count 2
  .amdhsa_user_sgpr_kernarg_segment_ptr 1
  .amdhsa_system_sgpr_workgroup_id_x 1
.end_amdhsa_kernel
"""

if __name__ == '__main__':
    kw = {}
    out = 'cdna_kernels/'+NAME[:-7]+'.s'
    for a in sys.argv[1:]:
        k, v = a.split('=', 1)
        if k == 'out': out = v
        else:
            try: kw[k] = eval(v)
            except Exception: kw[k] = v
    t = build(**kw)
    open(out, 'w').write(t)
    print(out, len(t), 'bytes', t.count('\n'), 'lines')
```

```python
import re

TRANS = ('v_exp_f32','v_log_f32','v_rcp_f32','v_rsq_f32','v_sqrt_f32','v_sin_f32','v_cos_f32')
REG_RE = re.compile(r'^(-|\|)?(abs\()?([vas])(\d+|\[(\d+):(\d+)\])\)?\|?$')

def parse_reg(tok):
    t = tok.strip()
    if t in ('vcc','vcc_lo','vcc_hi'): return [('s','vcc')]
    if t in ('exec','exec_lo','exec_hi'): return [('s','exec')]
    if t == 'm0': return [('s','m0')]
    m = REG_RE.match(t)
    if not m: return []
    k = m.group(3)
    if m.group(5) is not None:
        return [(k,i) for i in range(int(m.group(5)), int(m.group(6))+1)]
    return [(k,int(m.group(4)))]

def split_ops(s):
    out=[]; cur=''; depth=0
    for ch in s:
        if ch in '[(': depth+=1
        if ch in '])': depth-=1
        if ch==',' and depth==0:
            out.append(cur.strip()); cur=''
        else: cur+=ch
    if cur.strip(): out.append(cur.strip())
    return out

class Ins:
    __slots__=('text','op','kind','w','r','ws','srcC','srcAB','passes','dpp','target','store_data','lds_dma','is_label')
    def __init__(self, text):
        self.text=text; self.is_label=text.endswith(':')
        self.op=''; self.kind='other'; self.w=set(); self.r=set(); self.ws=1
        self.srcC=set(); self.srcAB=set(); self.passes=0; self.dpp=False; self.target=None
        self.store_data=set(); self.lds_dma=False
        if self.is_label or text.startswith('.') or text.startswith(';'):
            self.ws=0; self.kind='meta'; return
        body=text.split(';')[0].strip()
        p=body.split(None,1); op=p[0]; self.op=op
        rest=p[1] if len(p)>1 else ''
        ops=split_ops(rest)
        mods=''
        if ops:
            q=ops[-1].split(None,1)
            if len(q)>1 and not ops[-1].startswith('hwreg'):
                ops[-1]=q[0]; mods=q[1]
        R=[parse_reg(o) for o in ops]
        if op=='s_nop':
            self.ws=int(ops[0],0)+1; self.kind='salu'; return
        if op.startswith('v_mfma') or op.startswith('v_smfmac'):
            self.kind='mfma'; self.passes=8 if '32x32' in op else 4
            self.w=set(R[0]); self.srcAB=set(R[1])|set(R[2]); self.srcC=set(R[3])
            if op.startswith('v_smfmac'):
                self.srcAB|=set(R[3]); self.srcC=set(R[0])
            self.r=self.srcAB|self.srcC
            return
        if op.startswith('v_'):
            self.kind='valu'
            self.dpp=('row_' in mods or 'quad_perm' in mods or op.endswith('_dpp'))
            if 'permlane' in op and 'swap' in op:
                self.w=set(R[0])|set(R[1]); self.r=set(self.w); return
            nd=1
            if op.startswith(('v_add_co','v_sub_co','v_addc_co','v_subb_co','v_mad_u64')): nd=2
            for x in R[:nd]: self.w|=set(x)
            for x in R[nd:]: self.r|=set(x)
            if op.startswith(('v_fmac','v_dot2c','v_writelane')) or self.dpp: self.r|=set(R[0])
            return
        if op.startswith(('buffer_','global_')):
            self.kind='vmem'
            if op in ('buffer_wbl2','buffer_inv'): return
            lds=(' lds' in ' '+mods)
            if lds:
                self.lds_dma=True
                for x in R: self.r|=set(x)
                self.r.add(('s','m0'))
            elif 'load' in op:
                self.w=set(R[0])
                for x in R[1:]: self.r|=set(x)
                if 'd16' in op: self.r|=set(R[0])
            else:
                for x in R: self.r|=set(x)
                if 'atomic' in op and 'sc0' in mods: self.w=set(R[0])
                if 'dwordx4' in op or 'dwordx3' in op: self.store_data=set(R[0])
            return
        if op.startswith('ds_'):
            self.kind='ds'
            if op.startswith(('ds_read','ds_bpermute','ds_swizzle','ds_permute')):
                self.w=set(R[0])
                for x in R[1:]: self.r|=set(x)
            else:
                for x in R: self.r|=set(x)
            return
        if op.startswith('s_'):
            self.kind='salu'
            if op.startswith(('s_branch','s_cbranch')):
                self.target=ops[0]; return
            if op.startswith(('s_atomic','s_cmp','s_bitcmp','s_waitcnt','s_barrier','s_endpgm','s_sleep','s_setprio')):
                for x in R: self.r|=set(x)
                return
            if R:
                self.w=set(R[0])
                for x in R[1:]: self.r|=set(x)
                if 'saveexec' in op: self.w.add(('s','exec'))
            return
        raise ValueError('unknown instruction: '+text)

def isv(S): return {x for x in S if x[0] in 'va'}
def iss(S): return {x for x in S if x[0]=='s'}

def need(p, c):
    n=0
    if p.kind=='valu':
        wv=isv(p.w); wsg=iss(p.w)
        if wv:
            if c.kind=='mfma' and wv & c.r: n=max(n,2)
            if c.kind=='valu':
                if 'permlane' in c.op and wv & c.r: n=max(n,2)
                if c.dpp and wv & c.r: n=max(n,2)
                if c.op.startswith(('v_readlane','v_readfirstlane')) and wv & c.r: n=max(n,1)
                if p.op.replace('_e32','') in TRANS and wv & c.r: n=max(n,1)
        if wsg:
            if c.kind=='vmem' and wsg & c.r: n=max(n,5)
            if c.kind=='valu' and wsg & c.r:
                n=max(n,4 if c.op.startswith(('v_readlane','v_writelane')) else 2)
            if c.kind=='salu' and wsg & c.r: n=max(n,1)
    if p.kind=='mfma':
        big=p.passes==8
        if c.kind=='mfma':
            if p.w & c.srcAB: n=max(n,12 if big else 8)
            if p.w & c.srcC and not (p.w==c.srcC and p.passes==c.passes): n=max(n,10 if big else 6)
            if p.w & c.w and not (p.w & c.srcC): n=max(n,10 if big else 6)
        elif c.kind in ('valu','vmem','ds'):
            if p.w & (c.r|c.w): n=max(n,12 if big else 8)
            if c.kind=='valu' and p.srcC & c.w: n=max(n,7 if big else 3)
    if p.kind=='vmem' and p.store_data:
        if p.store_data & c.w: n=max(n,2 if c.kind in('valu','mfma') else 1)
    if p.kind=='salu' and ('s','m0') in p.w and c.lds_dma: n=max(n,1)
    return n

WIN=14
def fix_hazards(lines):
    ins=[Ins(l) for l in lines]
    out=[]
    def deficit(prev, c, keep=None):
        d=0; dist=0; fol=[]; after=None
        for ip, p in enumerate(reversed(prev)):
            if dist>=WIN: break
            if p.op in ('s_branch','s_endpgm') and not (keep is not None and p is keep): break
            if p.kind!='meta':
                r=need(p,c)
                eff=dist
                if p.kind=='mfma' and len(fol)>=2:
                    chain=[p.passes]+fol[::-1]
                    eff=max(eff, sum(chain[:len(fol)-1])+after)
                if r>eff: d=max(d,r-eff)
            if p.kind=='mfma':
                if after is None: after=dist
                fol.append(p.passes)
            dist+=p.ws
        return d
    for c in ins:
        if c.kind!='meta':
            d=deficit(out[-40:],c)
            if d>0:
                out.append(Ins(f's_nop {d-1}'))
        out.append(c)
    changed=True
    while changed:
        changed=False
        labels={x.text[:-1]:i for i,x in enumerate(out) if x.is_label}
        for i,b in enumerate(out):
            if b.target and b.target in labels:
                j=labels[b.target]
                prev=out[max(0,i-40):i+1]
                dist=0; k=j+1; worst=0
                seq=list(prev)
                while k<len(out) and dist<WIN:
                    c=out[k]
                    if c.kind!='meta':
                        d=deficit(seq,c,b)
                        if d>0: worst=d; break
                        if c.op in('s_branch','s_endpgm'): break
                    seq.append(c); dist+=c.ws; k+=1
                if worst:
                    out.insert(j+1, Ins(f's_nop {worst-1}')); changed=True; break
    return [x.text for x in out]

class E:
    def __init__(self):
        self.L=[]; self.nl=0
        self.vmn=0; self.vmdone=0
        self.lgn=0; self.lgdone=0
    def __call__(self, s):
        for l in s.split('\n'):
            l=l.split(';')[0].strip() if not l.strip().startswith('.') else l.strip()
            if l: self.L.append(l)
    def lab(self, p='L'):
        self.nl+=1; return f'{p}{self.nl}'
    def label(self, n): self.L.append(n+':')
    def vm(self, s):
        self(s); self.vmn+=1; return self.vmn
    def ds(self, s):
        self(s); self.lgn+=1; return self.lgn
    def wvm(self, tok=None):
        if tok is None: tok=self.vmn
        if tok<=self.vmdone: return
        n=self.vmn-tok
        assert n<=63, n
        self(f's_waitcnt vmcnt({n})'); self.vmdone=tok
    def wds(self, tok=None):
        if tok is None: tok=self.lgn
        if tok<=self.lgdone: return
        n=min(self.lgn-tok,15)
        self(f's_waitcnt lgkmcnt({n})'); self.lgdone=self.lgn-n
    def vm0(self):
        self('s_waitcnt vmcnt(0)'); self.vmdone=self.vmn
    def ds0(self):
        self('s_waitcnt lgkmcnt(0)'); self.lgdone=self.lgn
    def unknown(self):
        self.vmdone=self.vmn; self.lgdone=self.lgn
    def unknown_vm(self):
        self.vmdone=self.vmn
    def merge_waits(self):
        out=[]
        for l in self.L:
            m=re.match(r's_waitcnt (vmcnt|lgkmcnt)\((\d+)\)$', l)
            if m and out:
                p=re.match(r's_waitcnt (vmcnt|lgkmcnt)\((\d+)\)$', out[-1])
                if p and p.group(1)==m.group(1):
                    out[-1]=f's_waitcnt {m.group(1)}({min(int(p.group(2)),int(m.group(2)))})'; continue
                if p:
                    a,b=(p,m) if p.group(1)=='vmcnt' else (m,p)
                    out[-1]=f's_waitcnt vmcnt({a.group(2)}) lgkmcnt({b.group(2)})'; continue
            out.append(l)
        self.L=out
    def text(self):
        self.merge_waits()
        return '\n'.join(fix_hazards(self.L))+'\n'

def vr(i,n=4): return f'v[{i}:{i+n-1}]' if n>1 else f'v{i}'
def ar(i,n=4): return f'a[{i}:{i+n-1}]' if n>1 else f'a{i}'
```

```python
import sys, struct, math
sys.path.insert(0, 'gen')
from emit import *

NAME = 'interleave_layers__memory_aug_recurrent_mem_tr__dense_activation_silu__prompt_kernel'
MB = 1 << 20
class C: pass
COLD = []
def f2u(x): return struct.unpack('<I', struct.pack('<f', x))[0]

F_P3, F_R, F_PS, F_XN, F_XN1, F_ABORT, F_DUMMY = 0xC0000, 16384, 8192, 1*MB, 1*MB+512*1024, 0xF000, 0xC000
OFF_AG, OFF_RSR = 0xD0000, 0x20000
AGS = 16384
OFF_XN, OFF_XN1, OFF_X1, OFF_X2, OFF_WSR, OFF_RSP = 3*MB, 9*MB, 15*MB, 21*MB, 24*MB, 34*MB
OFF_KF, OFF_VF, OFF_QF, OFF_MM, OFF_PROF = 64*MB, 96*MB, 128*MB, 160*MB, 200*MB
ITEM = 40960
RSP_ROW = 16*1280
RSP_SLOT = 32*RSP_ROW
WS='s[4:7]'; DBG='s[8:11]'
P_X,P_MEM,P_WQ,P_WK,P_WV,P_WO,P_W1,P_W2,P_OUT,P_DBG,P_WS = 0,1,2,3,4,5,8,9,10,11,12
SZ = {P_X:2048*1280, P_MEM:8*1280, P_WQ:640*8192, P_WK:640*8192, P_WV:640*8192, P_WO:4096*1280,
      P_W1:640*3456, P_W2:1728*1280, P_OUT:2048*1280, P_DBG:256, P_WS:256*MB}
sH, sW, sMODE, sGRP = 's24','s25','s26','s27'
MF = 'v_mfma_f32_16x16x32_bf16'
MF16 = 'v_mfma_f32_16x16x16_bf16'
SMF = 'v_smfmac_f32_16x16x64_bf16'
MF32 = 'v_mfma_f32_32x32x16_bf16'
CSC = (128 ** -0.5) * math.log2(math.e)
OOB = 0x40000000
NEG = 0xf149f2ca

def srd(e, base, p):
    e(f's_mov_b32 s{base}, s{36+2*p}\ns_mov_b32 s{base+1}, s{37+2*p}\ns_mov_b32 s{base+2}, {SZ[p]}\ns_mov_b32 s{base+3}, 0x20000')
def mask64(e, s, val):
    e(f's_mov_b32 s{s}, {val & 0xffffffff:#x}\ns_mov_b32 s{s+1}, {val >> 32:#x}')
def lanemask(fn): return sum(1 << l for l in range(64) if fn(l))
def sp(s): return f's[{s}:{s+1}]'

def spin_tail(e, cfg, loop, code, cnt='s28'):
    e(f's_add_u32 {cnt}, {cnt}, 1\ns_cmp_lt_u32 {cnt}, {cfg.SPIN}\ns_cbranch_scc1 {loop}\ns_mov_b32 s29, {code}\ns_branch L_abort')

def arrive(e):
    l = e.lab('ar')
    e(f's_barrier\ns_cmp_lg_u32 {sW}, 0\ns_cbranch_scc1 {l}\ns_or_b32 s33, s3, 0x80\nv_mov_b32 v7, s33\ns_mov_b64 exec, 1\nbuffer_store_byte v7, off, {DBG}, s2 sc1\ns_mov_b64 exec, -1')
    e.label(l)

STD = ((8, 16), list(range(8)))
class WL:
    PROF = 0; WSF = ''
    def __init__(s, e, lane, lbase, piece, land, tmp, nsl=3):
        s.e=e; s.lane=lane; s.lbase=lbase; s.piece=piece; s.land=land; s.tmp=tmp; s.nsl=nsl
    def f(s, row): return (row & 15)*256 + (row >> 4)*s.piece
    def src(s, v, stride, sbase, gather):
        e = s.e; L = s.lane
        e(f'v_lshrrev_b32 v{v}, 4, v{L}\ns_lshl_b32 s30, {sW}, 4\nv_add_u32 v{v}, s30, v{v}\nv_mul_u32_u24 v{v}, {stride}, v{v}')
        if gather: e(f'v_bfe_u32 v{s.tmp}, v{L}, 2, 2\nv_mul_u32_u24 v{s.tmp}, 320, v{s.tmp}\nv_add_u32 v{v}, v{v}, v{s.tmp}\nv_and_b32 v{s.tmp}, 3, v{L}')
        else: e(f'v_and_b32 v{s.tmp}, 15, v{L}')
        e(f'v_lshl_add_u32 v{v}, v{s.tmp}, 4, v{v}\nv_add_u32 v{v}, {sbase}, v{v}')
        return (v, stride)
    def rows(s, v, mapping):
        e = s.e; L = s.lane; g, offs = mapping
        e(f"""v_bfe_u32 v{v}, v{L}, 4, 1
        v_mul_u32_u24 v{v}, {s.f(g[0])}, v{v}
        v_bfe_u32 v{v+1}, v{L}, 5, 1
        v_mul_u32_u24 v{v+1}, {s.f(g[1])}, v{v+1}
        v_add_u32 v{v}, v{v}, v{v+1}
        v_and_b32 v{v+1}, 15, v{L}
        v_lshl_add_u32 v{v}, v{v+1}, 2, v{v}
        s_lshl_b32 s30, {sW}, 6
        s_add_u32 s30, s30, {s.lbase}
        v_add_u32 v{v}, s30, v{v}
        v_add_u32 v{v+1}, {2*s.piece}, v{v}""")
        return (v, offs)
    def run(s, slabs, first=None):
        e = s.e
        e(f's_mov_b32 s31, 0x05040100\ns_mov_b32 s32, 0x07060302\ns_mul_i32 s34, {sW}, {s.piece}\ns_add_u32 s34, s34, {s.lbase}')
        tok = {}
        def issue(p):
            sr, (v, stride), so, _, _ = slabs[p]
            for j in range(4):
                e(f's_add_u32 m0, s34, {(p % s.nsl)*4096 + j*1024}\ns_mov_b32 s30, {so + 4*j*stride}')
                tok[p] = e.vm(f'buffer_load_dwordx4 v{v}, {sr}, s30 offen lds')
        for p in range(min(s.nsl-1, len(slabs))): issue(p)
        for p in range(len(slabs)):
            e.wvm(tok[p])
            if WL.PROF and p % (len(slabs)//5) == 0: e(f's_memrealtime s[{80+2*(p//(len(slabs)//5))}:{81+2*(p//(len(slabs)//5))}]')
            if p == 0 and first: first()
            else: e('s_barrier')
            if p + s.nsl - 1 < len(slabs): issue(p + s.nsl - 1)
            v, offs = slabs[p][3]
            rt = []
            for c in range(2):
                for jj in range(4):
                    o = [(s.f(offs[2*jj+x]) + (p % s.nsl)*4096)//256 for x in range(2)]
                    assert max(o) < 256
                    t = e.ds(f'ds_read2st64_b32 {vr(s.land+8*c+2*jj,2)}, v{v+c} offset0:{o[0]} offset1:{o[1]}')
                rt.append(t)
            for c in range(2):
                e.wds(rt[c]); b = s.land + 8*c
                for t in range(2):
                    d = slabs[p][4][c][t]
                    o = d[1] if d[0] == 'v' else s.tmp + 4*t
                    for jj in range(4): e(f'v_perm_b32 v{o+jj}, v{b+2*jj+1}, v{b+2*jj}, s{31+t}')
                for t in range(2):
                    d = slabs[p][4][c][t]; o = s.tmp + 4*t
                    if d[0] == 'a':
                        for jj in range(4): e(f'v_accvgpr_write_b32 a{d[1]+jj}, v{o+jj}')
                    elif d[0] == 'lds': e.ds(f'ds_write_b128 v{d[1]}, {vr(o)} offset:{d[2]}')
                    elif d[0] == 'ws':
                        e(f's_add_u32 s33, {d[2]}, {d[3]}')
                        e.vm(f'buffer_store_dwordx4 {vr(o)}, v{d[1]}, {WS}, s33 offen {WL.WSF}')
        e.vm0(); e.ds0(); e('s_barrier')
    def lanes32(s, v, vtype, rowbytes, wavebytes):
        e = s.e; L = s.lane
        if vtype: e(f'v_and_b32 v{v}, 15, v{L}\nv_bfe_u32 v{v+1}, v{L}, 4, 1\nv_lshl_add_u32 v{v}, v{v}, 1, v{v+1}')
        else: e(f'v_and_b32 v{v}, 19, v{L}\nv_bfe_u32 v{v+1}, v{L}, 2, 1\nv_lshl_add_u32 v{v}, v{v+1}, 3, v{v}\nv_bfe_u32 v{v+1}, v{L}, 3, 1\nv_lshl_add_u32 v{v}, v{v+1}, 2, v{v}')
        e(f"""v_and_b32 v{v+1}, 1, v{v}
        v_mul_u32_u24 v{v+1}, 0x0202, v{v+1}
        v_mul_u32_u24 v{v+1}, 0x10001, v{v+1}
        v_add_u32 v{v+1}, 0x05040100, v{v+1}
        v_lshrrev_b32 v{v}, 1, v{v}
        v_lshlrev_b32 v{v}, 2, v{v}
        v_lshrrev_b32 v{s.tmp}, 5, v{L}
        v_mul_u32_u24 v{s.tmp}, {8*rowbytes}, v{s.tmp}
        v_add_u32 v{v}, v{v}, v{s.tmp}
        s_mul_i32 s30, {sW}, {wavebytes}
        v_add_u32 v{v}, s30, v{v}""")
    def frags32(s, jobs, vsel):
        e = s.e; rt = {}
        def rd(k):
            va, o = jobs[k][0]()
            for jj in range(4): rt[k] = e.ds(f'ds_read2st64_b32 {vr(s.land+8*(k%2)+2*jj,2)}, v{va} offset0:{o[2*jj]} offset1:{o[2*jj+1]}')
        rd(0); rd(1)
        for k in range(len(jobs)):
            e.wds(rt[k]); b = s.land + 8*(k % 2); d = jobs[k][1]
            o = d[1] if d[0] == 'v' else s.tmp
            for jj in range(4): e(f'v_perm_b32 v{o+jj}, v{b+2*jj+1}, v{b+2*jj}, v{vsel}')
            if k + 2 < len(jobs): rd(k + 2)
            if d[0] == 'a':
                for jj in range(4): e(f'v_accvgpr_write_b32 a{d[1]+jj}, v{o+jj}')
    def cols32(s, sr, src, nslab, dst, va, vtype, first=None):
        e = s.e; v, stride = src
        s.lanes32(va, vtype, 256, 64)
        e(f's_mul_i32 s34, {sW}, {s.piece}')
        tok = {}
        def issue(p):
            for j in range(4):
                e(f's_add_u32 m0, s34, {(p % s.nsl)*4096 + j*1024}\ns_mov_b32 s30, {(64*p + 4*j)*stride}')
                tok[p] = e.vm(f'buffer_load_dwordx4 v{v}, {sr}, s30 offen lds')
        for p in range(s.nsl-1): issue(p)
        for p in range(nslab):
            e.wvm(tok[p])
            if p == 0 and first: first()
            else: e('s_barrier')
            if p + s.nsl - 1 < nslab: issue(p + s.nsl - 1)
            s.frags32([((lambda q=q: (va, [(q*s.piece + (p % s.nsl)*4096)//256 + j for j in range(8)])), dst(4*p+q)) for q in range(4)], va+1)
        e.vm0(); e.ds0(); e('s_barrier')
    def rows32(s, sr, sbase, nk, dst, va, first=None):
        e = s.e; L = s.lane
        s.lanes32(va, False, 1280, 320)
        e(f'v_lshlrev_b32 v{va+2}, 4, v{L}\ns_mul_i32 s34, {sW}, 10240\ns_add_u32 s35, s34, {sbase}')
        tok = {}
        def issue(p):
            for j in range(10):
                if j % 4 == 0: e(f's_add_u32 m0, s34, {(p % 3)*40960 + j*1024}\ns_add_u32 s30, s35, {p*40960 + j*1024}')
                tok[p] = e.vm(f'buffer_load_dwordx4 v{va+2}, {sr}, s30 offen offset:{(j%4)*1024} lds')
        for p in range(2): issue(p)
        for p in range(nk):
            e.wvm(tok[p])
            if p == 0 and first: first()
            else: e('s_barrier')
            if p + 2 < nk: issue(p + 2)
            def addr(c, q):
                if q == 0: e(f'v_add_u32 v{va+3}, {(p % 3)*40960 + c*64}, v{va}')
                return (va+3, [80*q + 5*j for j in range(8)])
            s.frags32([((lambda c=c, q=q: addr(c, q)), dst(c, 2*p+q)) for c in range(5) for q in range(2)], va+1)
        e.vm0(); e.ds0(); e('s_barrier')

def sync_start(e, cfg, a=12):
    lp = e.lab('sy'); ok = e.lab('sy'); done = e.lab('sy')
    e(f's_mov_b32 s28, 0\nv_and_b32 v{a}, 63, v0\nv_lshlrev_b32 v{a}, 2, v{a}\ns_mov_b32 s30, 0x80808080')
    e.label(lp)
    e(f'buffer_load_dword v{a+1}, v{a}, {DBG}, 0 offen sc1\ns_waitcnt vmcnt(0)\nv_and_b32 v{a+2}, s30, v{a+1}\nv_cmp_ne_u32 vcc, s30, v{a+2}\ns_cbranch_vccz {ok}\ns_sleep 2')
    spin_tail(e, cfg, lp, 1)
    e.label(ok)
    e(f's_cmp_lg_u32 {sMODE}, 0\ns_cbranch_scc1 {done}\nv_mov_b32 v{a+3}, 0')
    for b in range(4): e(f'v_bfe_u32 v{a+2}, v{a+1}, {8*b}, 3\nv_lshlrev_b32 v{a+2}, v{a+2}, 1\nv_or_b32 v{a+3}, v{a+3}, v{a+2}')
    e(f'v_mov_b32 v{a+2}, v{a+3} quad_perm:[1,0,3,2] row_mask:0xf bank_mask:0xf\nv_or_b32 v{a+3}, v{a+3}, v{a+2}\nv_cmp_ne_u32 vcc, 0xff, v{a+3}')
    if cfg.FORCE: e('s_branch L_rank')
    e(f's_cbranch_vccnz L_rank\ns_mov_b32 {sMODE}, 1')
    e.label(done)
    if cfg.PROF:
        pf_base(e, 's32')
        e(f's_memrealtime s[30:31]\ns_add_u32 s32, s32, {127*64}\ns_waitcnt lgkmcnt(0)\nv_mov_b32 v{a}, s100\nv_mov_b32 v{a+1}, s30\nbuffer_store_dwordx2 {vr(a,2)}, off, {WS}, s32\ns_waitcnt vmcnt(0)')
        for i in range(5): e(f'v_mov_b32 v{a}, s{80+2*i}\nbuffer_store_dword v{a}, off, {WS}, s32 offset:{8+4*i}')
        e('s_waitcnt vmcnt(0)')
    e.unknown()

def two_modes(e, name, body):
    e(f's_cmp_eq_u32 {sMODE}, 1\ns_cbranch_scc0 L_{name}_slow')
    body('', name + 'f'); e.unknown()
    e.label(f'L_{name}_slow')
    body('sc1', name + 's'); e.unknown()

class Stream:
    def __init__(s, e, bufs, loads, n=4):
        s.e=e; s.bufs=bufs; s.loads=loads; s.next=0; s.tok={}; s.n=n
    def issue(s):
        if s.next < len(s.loads):
            k=s.next; s.tok[k]=s.loads[k](s.bufs[k % len(s.bufs)]); s.next+=1
    def prime(s, n=None):
        for _ in range(len(s.bufs) if n is None else n): s.issue()
    def get(s, k):
        t = s.tok[k]
        if t is not None: (s.e.wds if t[0]=='ds' else s.e.wvm)(t[1])
        return vr(s.bufs[k % len(s.bufs)], s.n)

def xlane(e, op, v, t):
    for sw in ('v_permlane32_swap_b32', 'v_permlane16_swap_b32'):
        e(f'v_mov_b32 v{t}, v{v}\n{sw} v{v}, v{t}\n{op} v{v}, v{v}, v{t}')
def mk_sel(e, d, lane16, t, smask):
    e(f'v_and_b32 v{t}, 16, v{lane16}\nv_mov_b32 v{d}, 0x3f80\nv_lshlrev_b32 v{t}, v{t}, v{d}')
    for jj in range(4): e(f'v_cndmask_b32 v{d+jj}, 0, v{t}, {sp(smask+2*jj)}')
def sel_masks(e, smask, fn):
    for jj in range(4): mask64(e, smask+2*jj, lanemask(lambda l: fn(l) == jj))

def dummy_addr(e, d):
    e(f's_lshl_b32 {d}, {sGRP}, 5\ns_add_u32 {d}, {d}, {sH}\ns_lshl_b32 {d}, {d}, 2\ns_add_u32 {d}, {d}, {sW}\ns_lshl_b32 {d}, {d}, 2\ns_add_u32 {d}, {d}, {F_DUMMY}')
def pf_base(e, s):
    e(f's_lshl_b32 {s}, {sGRP}, 5\ns_add_u32 {s}, {s}, {sH}\ns_lshl_b32 {s}, {s}, 2\ns_add_u32 {s}, {s}, {sW}\ns_lshl_b32 {s}, {s}, 13\ns_add_u32 {s}, {s}, {OFF_PROF}')
def prof(e, cfg, idx):
    if cfg.PROF: e(f's_memtime s[{36+2*idx}:{37+2*idx}]')
def prof_flush(e, cfg, n, sbase, va=6, vd=7):
    if not cfg.PROF: return
    e('s_memrealtime s[58:59]\ns_waitcnt lgkmcnt(0)'); e.lgdone = e.lgn
    for i in range(n): e(f'v_writelane_b32 v{vd}, s{36+2*i}, {i}')
    e(f'v_writelane_b32 v{vd}, s58, 15\nv_mbcnt_lo_u32_b32 v{va}, -1, 0\nv_lshlrev_b32 v{va}, 2, v{va}\ns_mov_b64 exec, 0xffff')
    e.vm(f'buffer_store_dword v{vd}, v{va}, {WS}, {sbase} offen')
    e(f's_mov_b64 exec, -1\ns_add_u32 {sbase}, {sbase}, 64')

def unpk(line):
    import re
    m = re.match(r'v_pk_(add|mul|fma)_f32 (.*)', line)
    if not m: return [line]
    body = m.group(2); hi = None
    if ' op_sel_hi:' in body:
        body, h = body.split(' op_sel_hi:'); hi = eval(h.split()[0])
    ops = [int(re.match(r'v\[(\d+):', o.strip()).group(1)) for o in body.split(',')]
    hi = hi or [1]*(len(ops)-1)
    return [f'v_{m.group(1)}_f32 ' + ', '.join(f'v{r + (k if (i == 0 or hi[i-1]) else 0)}' for i, r in enumerate(ops)) for k in (0, 1)]
class Rec:
    def __init__(s, scalar=True): s.ops = []; s.n = 0; s.scalar = scalar
    def __call__(s, t):
        for l in t.split('\n'):
            if l.strip():
                for x in (unpk(l.strip()) if s.scalar else [l.strip()]): s.ops.append(('i', x))
    def vm(s, t): s.n += 1; s.ops.append(('vm', t, s.n)); return s.n
    def ds(s, t): s.n += 1; s.ops.append(('ds', t, s.n)); return s.n
    def wds(s, k): s.ops.append(('wds', k))
    def wvm(s, k): s.ops.append(('wvm', k))
    def chunks(s, e, size=2):
        m = {}; s.tok = m
        def play(ops):
            def f():
                for o in ops:
                    if o[0] == 'i': e(o[1])
                    elif o[0] == 'vm': m[o[2]] = e.vm(o[1]); m['last'] = m[o[2]]
                    elif o[0] == 'ds': m[o[2]] = e.ds(o[1])
                    elif o[0] == 'wds': e.wds(m[o[1]])
                    else: e.wvm(m[o[1]])
            return f
        out = []; cur = []; atomic = False
        for o in s.ops:
            if o[0] == 'i' and o[1].startswith('s_mov_b32 exec_hi, 0'): atomic = True
            cur.append(o)
            if o[0] == 'i' and o[1].startswith('s_mov_b32 exec_hi, -1'): atomic = False
            dep = o[0] == 'i' and ('row_ror' in o[1] or 'permlane' in o[1] or o[1].startswith('v_mov_b32') or o[1].startswith('v_rsq'))
            if not atomic and (len(cur) >= size or dep or o[0] == 'vm'): out.append(play(cur)); cur = []
        if cur: out.append(play(cur))
        return out

def op_cost(o, prev):
    if o[0] == 'vm': return 22 if 'store' in o[1] else 8
    if o[0] == 'ds': return 16 if 'write_b128' in o[1] else 4
    if o[0] != 'i': return 4
    t = o[1]
    c = 8 if ('permlane' in t or t.split()[0] in TRANS) else 4
    if not Red.onepass and prev and ('row_ror' in t or 'permlane' in t) and prev[0] == 'i' and prev[1].startswith('v_') and 'permlane' not in prev[1]: c += 8
    return c
def spread(e, rec, fill, cost, p0, budget):
    m = {}; rec.tok = m
    def play(ops):
        def f():
            for o in ops:
                if o[0] == 'i': e(o[1])
                elif o[0] == 'vm': m[o[2]] = e.vm(o[1]); m['last'] = m[o[2]]
                elif o[0] == 'ds': m[o[2]] = e.ds(o[1])
                elif o[0] == 'wds': e.wds(m[o[1]])
                else: e.wvm(m[o[1]])
        return f
    p = p0; cur = []; used = cost.get(p, 0); atomic = False
    for o in rec.ops:
        c = op_cost(o, cur[-1] if cur else None)
        while not atomic and used + c > budget and (cur or used):
            if cur: at(fill, p, play(cur))
            cur = []; p += 1; used = cost.get(p, 0); c = op_cost(o, None)
        if o[0] == 'wds' and len(m) == 0 and cur and cur[-1][0] == 'ds':
            at(fill, p, play(cur)); cur = []; p += 4; used = cost.get(p, 0)
        if o[0] == 'i' and o[1].startswith('s_mov_b32 exec_hi, 0'): atomic = True
        cur.append(o); used += c
        if o[0] == 'i' and o[1].startswith('s_mov_b32 exec_hi, -1'): atomic = False
    at(fill, p, play(cur))
    return p

def run(fill, i):
    for f in fill.pop(i, []): f()
def drain(fill):
    for i in sorted(fill):
        for f in fill[i]: f()
    fill.clear()
def at(fill, i, f): fill.setdefault(i, []).append(f)

def role_R(e, cfg):
    vL16, vIDX, vW, vSW, vSR, vPW, vPX, vPM, vRS, vAG = 0, 1, 2, 3, 4, 5, 8, 9, 10, 11
    SELT, KX, VX, P, WV = 12, 16, 24, 32, 96
    VXN = VX
    if cfg.VDB: VXN = 96; WV = 104
    NB = 4
    XB = [P+8*i for i in range(NB)]; MBUF = [P+32, P+36]; ACC = P+48; VA = [P+40, P+44]
    L_O, L_W = 6144, 8192; sVM = 's23'
    SROW = 176; SWV = 8*SROW; NLMAX = 19; mVAL = 94
    cls = ['r']*80
    chain = [[int(x[1:]) for x in c.split()] for c in cfg.CH]
    for c in cfg.CH:
        for x in c.split(): assert cls[int(x[1:])] == 'r'; cls[int(x[1:])] = x[0].lower()
    loc = {}; nr=nl=ns=0; ext = []
    for n in range(80):
        if cls[n]=='r': loc[n] = ('a',8*nr) if nr < 32 else ('v', WV+8*(nr-32)); nr+=1
        elif cls[n]=='l': loc[n]=('l',nl); nl+=1; ext.append(n)
        else: loc[n]=('s',ns); ns+=1; ext.append(n)
    assert nr <= (51 if cfg.VDB else 52) and nl <= NLMAX, (nr, nl, ns)
    bufof = {n: j for j in range(NB) for n in chain[j]}

    NS = ns
    sT, sPAR, sAGR, sAGW, sAG0, sWSR, sRSS, sRSL, sU, sMM, sKV, sN, sFL, sFR, sPF, sAGL = ['s%d' % i for i in range(62, 78)]
    sC = 78; mLO, mM, mHI, mSEL = 80, 82, 92, 84
    e.label('L_roleR')
    e('v_and_b32 v1, 63, v0')
    wl = WL(e, 1, L_W, NLMAX*2048, 16, 32, cfg.RNSL)
    e(f's_lshl_b32 s33, {sH}, 8'); sq = wl.src(8, 8192, 's33', False)
    e(f's_mul_i32 s33, {sH}, {128*1280}'); so = wl.src(9, 1280, 's33', False)
    rq = wl.rows(10, ((1, 16), [0,2,8,10,4,6,12,14]) if cfg.MS else ((2, 1), [0,4,16,20,8,12,24,28])); ro = wl.rows(12, ((4, 16), [0,1,8,9,2,3,10,11]))
    srd(e,12,P_WQ); srd(e,16,P_WK); srd(e,20,P_WV); srd(e,96,P_WO)
    e(f"""v_lshlrev_b32 v6, 4, v1
    s_mul_i32 s33, {sW}, {NLMAX*2048}
    s_add_u32 s33, s33, {L_W}
    v_add_u32 v{vW}, s33, v6
    s_lshl_b32 {sWSR}, {sGRP}, 5
    s_add_u32 {sWSR}, {sWSR}, {sH}
    s_lshr_b32 {sWSR}, {sWSR}, {cfg.SHARE}
    s_lshl_b32 {sWSR}, {sWSR}, 2
    s_add_u32 {sWSR}, {sWSR}, {sW}
    s_mul_i32 {sWSR}, {sWSR}, {NS*2048}
    s_add_u32 {sWSR}, {sWSR}, {OFF_WSR}""")
    HOLD = 40
    def dst(n, c):
        k, i = loc[n]
        if k in 'av': return (k, i+4*c)
        if k == 'l': return ('lds', vW, i*2048+c*1024) if i >= 6 else ('v', HOLD+8*i+4*c)
        return ('ws', 6, sWSR, i*2048+c*1024)
    slabs = []
    for B in range(10):
        for x, sr in enumerate(('s[12:15]', 's[16:19]', 's[20:23]')):
            slabs.append((sr, sq, B*64*8192, rq, [(dst(6*B+2*x, c), dst(6*B+2*x+1, c)) for c in range(2)]))
    for k in range(2):
        for c5 in range(5): slabs.append(('s[96:99]', so, k*64*1280 + c5*256, ro, [(dst(60+4*c5+2*k, c), dst(61+4*c5+2*k, c)) for c in range(2)]))
    wl.run(slabs, first=lambda: arrive(e))
    for i in range(12): e.ds(f'ds_write_b128 v{vW}, {vr(HOLD+4*i)} offset:{i*1024}')
    e.ds0()
    sync_start(e, cfg)
    srd(e,12,P_MEM)
    e(f's_lshl_b32 {sAGL}, {sW}, 11\ns_add_u32 {sAGL}, {sAGL}, 2048')
    AGM = f"""    v_bfe_u32 v34, v6, 3, 1
    v_lshl_add_u32 v35, v36, 1, v33
    v_lshlrev_b32 v{vAG}, 7, v34
    v_lshl_add_u32 v{vAG}, v35, 4, v{vAG}
    v_lshl_add_u32 v{vAG}, v37, 3, v{vAG}
    s_lshl_b32 s33, {sW}, 3
    s_sub_u32 {sU}, {sH}, s33
    s_and_b32 {sU}, {sU}, 31
    s_lshl_b32 s33, {sW}, 5
    s_add_u32 {sU}, {sU}, s33
    v_mul_u32_u24 v39, 1280, v35
    v_lshl_add_u32 v39, v34, 4, v39
    v_lshl_add_u32 v39, v37, 1, v39
    s_lshl_b32 s33, {sU}, 5
    buffer_load_ushort v40, v39, s[12:15], s33 offen
    buffer_load_ushort v41, v39, s[12:15], s33 offen offset:8
    buffer_load_ushort v42, v39, s[12:15], s33 offen offset:4
    buffer_load_ushort v43, v39, s[12:15], s33 offen offset:12
""" if cfg.MS else f"""    v_lshlrev_b32 v{vAG}, 7, v33
    v_lshl_add_u32 v{vAG}, v38, 6, v{vAG}
    v_lshl_add_u32 v{vAG}, v36, 4, v{vAG}
    v_lshl_add_u32 v{vAG}, v37, 3, v{vAG}
    s_lshl_b32 s33, {sW}, 3
    s_sub_u32 {sU}, {sH}, s33
    s_and_b32 {sU}, {sU}, 31
    s_lshl_b32 s33, {sW}, 5
    s_add_u32 {sU}, {sU}, s33
    v_lshl_add_u32 v39, v38, 2, v36
    v_mul_u32_u24 v39, 1280, v39
    v_lshl_add_u32 v39, v33, 5, v39
    v_lshl_add_u32 v39, v37, 2, v39
    s_lshr_b32 s33, {sU}, 1
    s_lshl_b32 s33, s33, 6
    s_and_b32 s34, {sU}, 1
    s_lshl_b32 s34, s34, 1
    s_add_u32 s33, s33, s34
    buffer_load_ushort v40, v39, s[12:15], s33 offen
    buffer_load_ushort v41, v39, s[12:15], s33 offen offset:16
    buffer_load_ushort v42, v39, s[12:15], s33 offen offset:8
    buffer_load_ushort v43, v39, s[12:15], s33 offen offset:24
"""
    mask64(e, mLO, lanemask(lambda l: (l & 15) < 8))
    mPUB = mM if cfg.MS else mLO
    mask64(e, mHI, lanemask(lambda l: (l & 15) >= 8))
    mask64(e, mM, lanemask(lambda l: l < 32))
    e(f"""v_and_b32 v6, 63, v0
    v_lshlrev_b32 v{vL16}, 4, v6
    v_lshrrev_b32 v7, 4, v6
    v_and_b32 v32, 7, v6
    v_mov_b32 v33, 0x4444
    v_mov_b32 v34, 0xeeee
    v_cndmask_b32 v{vIDX}, v34, v33, {sp(mLO)}
    v_lshlrev_b32 v{vPX}, 7, v7
    v_lshl_add_u32 v{vPX}, v32, 4, v{vPX}
    v_and_b32 v33, 1, v7
    v_and_b32 v34, 8, v6
    v_add_u32 v{vPM}, v34, v{vPX}
    v_lshl_add_u32 v{vPM}, {sW}, 9, v{vPM}
    v_lshl_add_u32 v{vSW}, {sW}, 10, v{vL16}
    v_lshrrev_b32 v{vPW}, 1, v{vSW}
    v_or_b32 v{vSR}, 32, v6
    v_lshlrev_b32 v{vSR}, 3, v{vSR}
    v_and_b32 v36, 3, v6
    v_bfe_u32 v37, v6, 2, 1
    v_lshrrev_b32 v38, 5, v6
    v_lshlrev_b32 v{vRS}, 13, v38
    v_and_b32 v39, 31, v6
    v_lshl_add_u32 v{vRS}, v39, 3, v{vRS}
{AGM}
    s_mul_i32 s33, {sGRP}, {40*8192}
    s_add_u32 s33, s33, {OFF_RSR}
    s_mul_i32 {sRSS}, {sW}, {2*8192}
    s_lshl_b32 s34, {sH}, 8
    s_add_u32 {sRSS}, {sRSS}, s34
    s_add_u32 {sRSS}, {sRSS}, s33
    s_lshl_b32 {sRSL}, {sU}, 13
    s_add_u32 {sRSL}, {sRSL}, s33
    s_lshl_b32 {sKV}, {sGRP}, 24
    s_lshl_b32 s33, {sH}, 13
    s_add_u32 {sKV}, {sKV}, s33
    s_add_u32 {sMM}, {sKV}, {OFF_MM}
    s_lshl_b32 s33, {sW}, 11
    s_add_u32 {sKV}, {sKV}, s33
    s_add_u32 {sKV}, {sKV}, {OFF_KF}
    s_lshl_b32 {sFL}, {sH}, 11
    s_lshl_b32 s33, {sW}, 9
    s_add_u32 {sFL}, {sFL}, s33
    s_lshl_b32 s33, {sGRP}, 2
    s_add_u32 {sFL}, {sFL}, s33
    s_add_u32 {sFL}, {sFL}, {F_P3}
    s_lshl_b32 {sFR}, {sGRP}, 5
    s_add_u32 {sFR}, {sFR}, {sH}
    s_lshl_b32 {sFR}, {sFR}, 7
    s_add_u32 {sFR}, {sFR}, {F_R}
    s_mov_b32 s{sC}, {f2u(CSC):#x}
    s_mov_b32 s{sC+1}, {f2u(CSC):#x}
    s_mov_b32 {sT}, 0
    s_mov_b32 {sPAR}, 1
    s_lshl_b32 {sAG0}, {sGRP}, 16
    s_add_u32 {sAG0}, {sAG0}, {OFF_AG}
    s_mov_b32 {sAGR}, {sAG0}
    s_add_u32 {sAGW}, {sAG0}, {AGS}
    s_mov_b32 {sN}, 0
    s_waitcnt vmcnt(0) lgkmcnt(0)
    v_lshl_or_b32 v40, v42, 16, v40
    v_lshl_or_b32 v41, v43, 16, v41
    v_min_u32 v40, -2, v40
    v_min_u32 v41, -2, v41""")
    pf_base(e, sPF)
    for i in range(6): e(f's_add_u32 s{12+i}, {sWSR}, {i*4096}')
    e(f's_lshl_b32 s33, {sW}, 10\ns_add_u32 {sVM}, {sMM}, s33\ns_lshr_b32 s33, s33, 1\ns_add_u32 {sMM}, {sMM}, s33\ns_add_u32 {sMM}, {sMM}, 4096\ns_lshl_b32 s96, {sU}, 8\ns_add_u32 s97, {sAG0}, {3*AGS}\ns_lshl_b32 s99, {sW}, 11\ns_add_u32 s99, s99, 8192\ns_cmp_eq_u32 {sW}, 0\ns_cselect_b32 s99, 0, s99\ns_mul_i32 s99, s99, {cfg.REP}\ns_add_u32 s98, {sRSL}, 4096')
    for c in range(5): e(f's_add_u32 s{18+c}, {sRSS}, {c*65536}')
    sel_masks(e, mSEL, lambda l: (2*((l & 15) >> 3) + ((l & 3) >> 1)) if ((l >> 2) & 1) == ((l >> 4) & 1) else -1)
    mk_sel(e, SELT, vL16, 7, mSEL)
    sel_masks(e, mSEL, lambda l: (l & 15) >> 1)
    sk = e.lab('r')
    e(f's_cmp_ge_u32 {sU}, 40\ns_cbranch_scc1 {sk}\ns_lshl_b32 s33, {sU}, 8\ns_add_u32 s33, s33, {sAGR}\ns_mov_b64 exec, {sp(mPUB)}\nbuffer_store_dwordx2 v[40:41], v{vAG}, {WS}, s33 offen sc1\ns_cmp_ge_u32 {sU}, 8\ns_cbranch_scc1 {sk}')
    for r_ in range(3): e(f's_add_u32 s35, s33, {10240+2048*r_}\nbuffer_store_dwordx2 v[40:41], v{vAG}, {WS}, s35 offen sc1')
    e.label(sk); e('s_mov_b64 exec, -1')

    def flags_read():
        e(f'v_readlane_b32 {sN}, v6, 0\nv_readlane_b32 s29, v6, 8\ns_min_u32 {sN}, {sN}, s29')
    def kv_wait(need, code):
        if cfg.RFREE: return
        lp = e.lab('r'); ok = e.lab('r')
        e(f's_cmp_ge_u32 {sN}, {need}\ns_cbranch_scc1 {ok}\ns_mov_b32 s28, 0'); e.label(lp)
        e(f'v_and_b32 v6, 128, v{vL16}\nbuffer_load_dword v6, v6, {WS}, {sFL} offen sc1\ns_waitcnt vmcnt(0)')
        flags_read()
        e(f's_cmp_ge_u32 {sN}, {need}\ns_cbranch_scc1 {ok}')
        spin_tail(e, cfg, lp, code)
        e.label(ok)
    def kv_load(base, s):
        if cfg.NOKV: return
        for t in range(2): e.vm(f'buffer_load_dwordx4 {vr(base+4*t)}, v{vL16}, {WS}, {s} offen offset:{t*1024} {cfg.KVF}')
    xtok = {}; dripq = []
    def xload(n, drip=False):
        k, i = loc[n]; r = XB[bufof[n]]
        def one(c):
            if k == 'l': xtok[n] = ('ds', e.ds(f'ds_read_b128 {vr(r+4*c)}, v{vW} offset:{i*2048+c*1024}'))
            elif cfg.NOSTREAM: xtok[n] = None
            else: xtok[n] = ('vm', e.vm(f'buffer_load_dwordx4 {vr(r+4*c)}, v{vL16}, {WS}, s{12+i//2} offen offset:{(i%2)*2048+c*1024} {cfg.STF}'))
        for c in range(2):
            if drip and k == 'l': dripq.insert(c, (n, lambda c=c: one(c)))
            elif drip: dripq.append((n, lambda c=c: one(c)))
            else: one(c)
    e('s_mov_b32 s35, 1'); kv_wait('s35', 2)
    kv_load(KX, sKV); e(f's_add_u32 s33, {sKV}, {OFF_VF-OFF_KF}'); kv_load(VX, 's33')
    for j in range(3): xload(chain[j][0])
    e.vm0(); e.ds0(); e('s_barrier')

    def body(fl, nm):
        top = f'L_{nm}top'; last = f'L_{nm}last'
        def pp(n):
            if n in cfg.PP: prof(e, cfg, cfg.PP.index(n))
        e.label(top)
        pp('top')
        if cfg.LPROF:
            e(f's_cmp_eq_u32 {sT}, 8\ns_cbranch_scc1 {top}_p'); e.label(top + '_q')
        for j in range(3): xtok[chain[j][0]] = None
        lp = e.lab('r'); lq = e.lab('r')
        def agl(g, so): return [f'buffer_load_dwordx4 {vr(g+4*j)}, v{vL16}, {WS}, {so} offen offset:{j*1024} sc1' for j in range(2)]
        def chk(g): return f'v_max3_u32 v6, v{g}, v{g+1}, v{g+2}\nv_max3_u32 v6, v6, v{g+3}, v{g+4}\nv_max3_u32 v6, v6, v{g+5}, v{g+6}\nv_max_u32 v6, v6, v{g+7}\nv_cmp_eq_u32 vcc, -1, v6'
        def retry(l, loads, wait, g, code):
            return f'{l}r:\n' + '\n'.join(loads) + f'\ns_waitcnt vmcnt({wait})\n{chk(g)}\ns_cbranch_vccz {l}\ns_add_u32 s28, s28, 1\ns_cmp_lt_u32 s28, {cfg.SPIN}\ns_cbranch_scc1 {l}r\ns_mov_b32 s29, {code}\ns_branch L_abort'
        GD, GS = MBUF[0], XB[NB-1]
        tg = [e.vm(x) for x in agl(GD, 's32') + agl(GS, 's34')]
        for r in range(0, 24, 2): e(f'v_mov_b64 {vr(VA[0]+r,2)}, 0')
        e(f'v_lshl_add_u32 v7, {sW}, 11, v{vL16}')
        e.wvm(tg[1]); e(chk(GD) + f'\ns_cbranch_vccnz {lp}r'); e.label(lp)
        cold = [retry(lp, agl(GD, 's32') + agl(GS, 's34'), 2, GD, 3), retry(lq, agl(GS, 's34'), 0, GS, 6)]
        cl = chk(GS).split('\n')
        pp('ag')
        held = []
        def smf(acc, a, n, drip=False):
            k, i = loc[n]; n0 = len(e.L)
            if k in 'ls':
                while any(x[0] == n for x in dripq): dripq.pop(0)[1]()
                t = xtok.pop(n)
                if t: (e.wds if t[0] == 'ds' else e.wvm)(t[1])
            w = ar(i, 8) if k == 'a' else vr(i, 8) if k == 'v' else vr(XB[bufof[n]], 8)
            e(f'{SMF} {vr(acc)}, {a}, {w}, v{vIDX}')
            if k in 'ls':
                ch = chain[bufof[n]]; p = ch.index(n)
                if cfg.VE and bufof[n] == 3 and n < 60 <= ch[p+1]: held.append(ch[p+1])
                elif p+1 < len(ch): xload(ch[p+1], drip)
                elif bufof[n] < 3 and not cfg.PFL: xload(ch[0], drip)
        A6 = [ACC, ACC+4, ACC+8, ACC+12, VA[0], VA[1]]
        mtok = {}
        def mread(i): mtok[i] = e.ds(f'ds_read_b128 {vr(MBUF[i % 2])}, v{vL16} offset:{(i-2)*1024}')
        seq = [(B, t) for B in range(10) for t in range(6)]
        late = [x for x in seq if x[0] >= 8 and x[1] >= 4] if cfg.VDEF else []
        seq = [x for x in seq if x not in late]
        for j, (B, t) in enumerate(seq):
            if B >= 2 and t == 0: e.wds(mtok[B])
            smf(A6[t], vr(MBUF[B % 2]), 6*B+t)
            if j == 0: e.wvm(tg[3]); e(cl[0]); e(cl[1])
            if j == 1: e(cl[2]); e(cl[3])
            if j == 2:
                e(cl[4] + f'\ns_cbranch_vccnz {lq}r'); e.label(lq)
                e.ds(f'ds_write_b128 v7, {vr(GS)}')
            if j == 3: tw = e.ds(f'ds_write_b128 v7, {vr(GS+4)} offset:1024'); xload(chain[3][0])
            if B == 8 and t == 2: e('s_barrier')
            if j == cfg.BA: pp('q1'); e.wds(tw); e('s_barrier'); pp('q2'); mread(2)
            if t == 5 and 1 <= B < 8: mread(B+2)
        while dripq: dripq.pop(0)[1]()
        def VL(k):
            for _ in range(k):
                if late: B, t = late.pop(0); smf(A6[t], vr(MBUF[B % 2]), 6*B+t)
        pp('qkv')
        Q0, Q1, K0, K1 = ACC, ACC+4, ACC+8, ACC+12
        VMF = MBUF[0]
        DP = 'row_mask:0xf bank_mask:0xf'
        for (a, b) in ((Q0, K0), (Q1, K1)):
            e(f'v_cvt_pk_bf16_f32 v{a}, v{a}, v{a+1}\nv_cvt_pk_bf16_f32 v{a+1}, v{a+2}, v{a+3}\nv_cvt_pk_bf16_f32 v{a+2}, v{b}, v{b+1}\nv_cvt_pk_bf16_f32 v{a+3}, v{b+2}, v{b+3}')
        e(f'{MF} {vr(K0)}, {vr(Q0)}, {vr(SELT)}, 0\nv_mov_b32 v6, {sT}\n{MF} {vr(K1)}, {vr(Q1)}, {vr(SELT)}, 0')
        for t in range(2):
            for r in range(2): e(f'v_cvt_pk_bf16_f32 v{VMF+2*t+r}, v{VA[t]+2*r}, v{VA[t]+2*r+1}')
        e.vm(f'buffer_store_dwordx4 {vr(VMF)}, v{vL16}, {WS}, {sVM} offen sc1')
        e.vm(f'buffer_store_dword v6, off, {WS}, {sFR} sc1')
        if cfg.VE:
            for r in range(0, 4, 2): e(f'v_mov_b64 {vr(XB[3]+r,2)}, {vr(VX+r,2)}')
        pp('a2')
        for r in range(4): e(f'v_cvt_pk_bf16_f32 v{Q0+r}, v{K0+r}, v{K1+r}')
        e(f's_add_u32 s35, {sT}, 2\ns_min_u32 s35, s35, 64')
        e(f'{MF} {vr(K0)}, {vr(KX+4)}, {vr(Q0)}, 0\n{MF} {vr(Q1)}, {vr(KX)}, {vr(Q0)}, 0\n{MF} {vr(K1)}, {vr(Q0)}, {vr(Q0)}, 0')
        e(f's_mov_b64 exec, {sp(mHI)}')
        e.vm(f'buffer_store_dwordx4 {vr(Q0)}, v{vPX}, {WS}, {sMM} offen sc1')
        e(f's_mov_b64 exec, -1\ns_cmp_eq_u32 {sT}, 63\ns_cbranch_scc1 {last}\ns_add_u32 {sKV}, {sKV}, {1<<18}')
        VC = XB[3] if cfg.VE else VX
        pp('a4')
        for r in range(4): e(f'v_mov_b32 v{Q1+r}, v{K0+r} row_shr:8 row_mask:0xf bank_mask:0xc')
        e.ds(f'ds_write_b128 v{vSW}, {vr(Q1)}')
        for r in range(2): e(f'v_mov_b32 v{K1+r}, v{K1+2+r} row_shr:8 row_mask:0xf bank_mask:0xc')
        tw = e.ds(f'ds_write_b64 v{vPW}, {vr(K1,2)} offset:4096')
        pp('a5')
        if cfg.VE:
            for r in range(4, 8, 2): e(f'v_mov_b64 {vr(XB[3]+r,2)}, {vr(VX+r,2)}')
        kv_wait('s35', 4); kv_load(KX, sKV)
        e.wds(tw); pp('a7'); e('s_barrier')
        pp('a8')
        S = ACC; M = VA[0]
        tr = []
        for q in range(4):
            e.ds(f'ds_read_b128 {vr(S+4*q)}, v{vL16} offset:{q*1024}')
            tr.append(e.ds(f'ds_read_b64 {vr(M+2*q,2)}, v{vSR} offset:{4096+q*512}'))
        WA = [VA[0], ACC+8, ACC]
        hk = [f's_add_u32 {sT}, {sT}, 1', f's_add_u32 {sMM}, {sMM}, {1<<18}', f's_add_u32 {sVM}, {sVM}, {1<<18}', f's_mov_b32 s31, {sAGR}', f's_mov_b32 {sAGR}, {sAGW}',
              f's_add_u32 {sAGW}, {sAGW}, {AGS}', f's_cmp_eq_u32 {sAGW}, s97\ns_cselect_b32 {sAGW}, {sAG0}, {sAGW}', 's_add_u32 s31, s31, s96',
              f's_add_u32 s30, s96, {sAGR}', f's_add_u32 s34, {sAGR}, {sAGL}', f's_add_u32 s32, {sAGR}, s99', f's_add_u32 s33, {sKV}, {OFF_VF-OFF_KF}', 's_mov_b32 s28, 0']
        def H(k=2):
            for _ in range(k):
                if hk: e(hk.pop(0))
        if cfg.VE:
            e(f's_add_u32 s33, {sKV}, {OFF_VF-OFF_KF}'); kv_load(VX, 's33')
            if cfg.VE == 1: e.vm(f'v_and_b32 v6, 128, v{vL16}\nbuffer_load_dword v6, v6, {WS}, {sFL} offen sc1')
            H(2)
        else: H(6)
        e.wds(tr[1]); e(f'v_pk_add_f32 {vr(S,2)}, {vr(S,2)}, {vr(S+4,2)}\nv_pk_add_f32 {vr(S+2,2)}, {vr(S+2,2)}, {vr(S+6,2)}\nv_pk_add_f32 {vr(M,2)}, {vr(M,2)}, {vr(M+2,2)}')
        e.wds(tr[3]); e(f'v_pk_add_f32 {vr(S+8,2)}, {vr(S+8,2)}, {vr(S+12,2)}\nv_pk_add_f32 {vr(S+10,2)}, {vr(S+10,2)}, {vr(S+14,2)}\nv_pk_add_f32 {vr(M+4,2)}, {vr(M+4,2)}, {vr(M+6,2)}')
        e(f'v_pk_add_f32 {vr(S,2)}, {vr(S,2)}, {vr(S+8,2)}\nv_pk_add_f32 {vr(S+2,2)}, {vr(S+2,2)}, {vr(S+10,2)}\nv_pk_add_f32 {vr(S+4,2)}, {vr(M,2)}, {vr(M+4,2)}')
        pp('a9')
        MX, TT = S+6, S+7
        def allr(op, v, t):
            H(); e(f'{op} v{v}, v{v}, v{v} row_ror:8 {DP}')
            for sw in ('v_permlane32_swap_b32', 'v_permlane16_swap_b32'):
                e(f'v_mov_b32 v{t}, v{v}'); H(); e(f'{sw} v{v}, v{t}\n{op} v{v}, v{v}, v{t}')
        e(f'v_max3_f32 v{MX}, v{S}, v{S+1}, v{S+2}\nv_max3_f32 v{TT}, v{S+3}, v{S+4}, v{S+5}\nv_max_f32 v{MX}, v{MX}, v{TT}')
        allr('v_max_f32', MX, TT)
        e(f'v_mul_f32 v{MX}, s{sC}, v{MX}')
        for r in (0, 2, 4): e(f'v_pk_fma_f32 {vr(S+r,2)}, {vr(S+r,2)}, {sp(sC)}, {vr(MX,2)} op_sel_hi:[1,1,0] neg_lo:[0,0,1] neg_hi:[0,0,1]')
        for r in range(6): e(f'v_exp_f32 v{S+r}, v{S+r}')
        PX, PM, O = M, M+4, S+8
        e(f'v_cvt_pk_bf16_f32 v{PX}, v{S}, v{S+1}\nv_cvt_pk_bf16_f32 v{PX+1}, v{S+2}, v{S+3}\nv_cvt_pk_bf16_f32 v{PM}, v{S+4}, v{S+5}')
        e(f'v_mov_b32 v{PX+2}, v{PX} row_ror:8 {DP}\nv_mov_b32 v{PX+3}, v{PX+1} row_ror:8 {DP}\nv_mov_b32 v{PM+1}, v{PM} row_ror:8 {DP}')
        pp('sm')
        e(f'v_add_f32 v{S+4}, v{S+4}, v{S+5}')
        e(f'{MF} {vr(O)}, {vr(VC)}, {vr(PX)}, 0\nv_add_f32 v{S}, v{S}, v{S+1}\nv_add_f32 v{S+2}, v{S+2}, v{S+3}')
        e(f'{MF} {vr(O+4)}, {vr(VC+4)}, {vr(PX)}, 0\nv_fma_f32 v{S}, v{S+4}, 0.5, v{S}\nv_add_f32 v{MX}, v{S}, v{S+2}')
        hk[:0] = [f'{MF16} {vr(O)}, {vr(VMF,2)}, {vr(PM,2)}, {vr(O)}', 's_nop 0', f'{MF16} {vr(O+4)}, {vr(VMF+2,2)}, {vr(PM,2)}, {vr(O+4)}', 's_nop 0']
        allr('v_add_f32', MX, TT)
        e(f'v_rcp_f32 v{MX}, v{MX}'); H(20)
        pp('p1')
        for r in range(0, 8, 2): e(f'v_pk_mul_f32 {vr(O+r,2)}, {vr(O+r,2)}, {vr(MX,2)} op_sel_hi:[1,0]')
        for r in (2, 3, 0, 1): e(f'v_cvt_pk_bf16_f32 v{S+r}, v{O+r}, v{O+4+r}')
        for r in range(2): e(f'v_mov_b32 v{S+r}, v{S+2+r} row_shr:8 row_mask:0xf bank_mask:0xc')
        tw = e.ds(f'ds_write_b64 v{vPM}, {vr(S,2)} offset:{L_O}')
        pp('p2')
        if not cfg.VE: kv_load(VX, 's33')
        for n in held: xload(n)
        for r in range(0, 8, 2): e(f'v_mov_b64 {vr(WA[0]+r,2)}, 0')
        e.wds(tw); pp('p4'); e('s_barrier')
        pp('p5')
        OB = MBUF[0]
        to = [e.ds(f'ds_read_b128 {vr(OB+4*k)}, v{vL16} offset:{L_O+k*1024}') for k in range(2)]
        if cfg.VE != 1: e.vm(f'v_and_b32 v6, 128, v{vL16}\nbuffer_load_dword v6, v6, {WS}, {sFL} offen sc1')
        for r in range(0, 16, 2): e(f'v_mov_b64 {vr(WA[2]+r,2)}, 0')
        pp('wo0')
        def flush(c, part):
            a = WA[c % 3]
            if cfg.MS:
                if part == 0:
                    for r in range(4): e(f'v_cvt_pk_bf16_f32 v{a+r}, v{a+2*r}, v{a+2*r+1}')
                if part == 1: e(f'{MF} {vr(a+4)}, {vr(a)}, {vr(SELT)}, 0')
                if part == 2 and c < 2: e(f'v_mov_b64 {vr(a,2)}, 0\nv_mov_b64 {vr(a+2,2)}, 0')
                if part == 4:
                    e(f'v_cvt_pk_bf16_f32 v{a+4}, v{a+4}, v{a+5}\nv_cvt_pk_bf16_f32 v{a+5}, v{a+6}, v{a+7}\nv_and_or_b32 v{a+4}, v{a+4}, -2, {sPAR}')
                    e.vm(f'buffer_store_dwordx2 {vr(a+4,2)}, v{vRS}, {WS}, s{18+c} offen {fl}')
                    if c < 2: e(f'v_mov_b64 {vr(a+4,2)}, 0\nv_mov_b64 {vr(a+6,2)}, 0')
                return
            if part == 0:
                for r in range(2): e(f'v_permlane32_swap_b32 v{a+r}, v{a+4+r}')
            if part == 1:
                for r in range(2, 4): e(f'v_permlane32_swap_b32 v{a+r}, v{a+4+r}')
            if part == 2:
                if cfg.WPK: e(f'v_pk_add_f32 {vr(a,2)}, {vr(a,2)}, {vr(a+4,2)}\nv_pk_add_f32 {vr(a+2,2)}, {vr(a+2,2)}, {vr(a+6,2)}')
                else:
                    for r in range(4): e(f'v_add_f32 v{a+r}, v{a+r}, v{a+4+r}')
                e(f'v_cvt_pk_bf16_f32 v{a+4}, v{a}, v{a+1}\nv_cvt_pk_bf16_f32 v{a+5}, v{a+2}, v{a+3}')
            if part == 3:
                e(f'v_and_or_b32 v{a+4}, v{a+4}, -2, {sPAR}')
                e.vm(f'buffer_store_dwordx2 {vr(a+4,2)}, v{vRS}, {WS}, s{18+c} offen {fl}')
                if c < 2:
                    for r in range(0, 8, 2): e(f'v_mov_b64 {vr(a+r,2)}, 0')
        plan = {}
        for c in range(5):
            for p_ in range(5 if cfg.MS else 4): plan.setdefault(4*c + cfg.FLAG + p_, []).append((c, p_))
        i = 0
        for c in range(5):
            for k in range(2):
                e.wds(to[k])
                for t in range(2):
                    smf(WA[c % 3]+4*t, vr(OB+4*k), 60+4*c+2*k+t)
                    for x in sorted(plan.pop(i, [])): flush(*x)
                    i += 1
        pp('w1')
        SEL, RD, RL = XB[NB-1], XB[NB-1]+4, P+32
        rest = [x for i in sorted(plan) for x in sorted(plan[i])]
        if cfg.MS:
            first = [x for x in rest if x[1] < 2]
            for x in first:
                if x == (4, 0): mk_sel(e, SEL, vL16, RD, mSEL)
                flush(*x)
            rest = [x for x in rest if x not in first]
        for x in rest: flush(*x)
        pp('wo1')
        SEL, RD, RL = XB[NB-1], XB[NB-1]+4, P+32
        nored = e.lab('r'); lp2 = e.lab('r')
        e(f's_cmp_ge_u32 {sU}, 40\ns_cbranch_scc1 {nored}')
        if not cfg.MS: mk_sel(e, SEL, vL16, RD, mSEL)
        if cfg.RACK:
            ea = e.lab('r'); st_ = e.vmdone
            e(f's_cmp_lt_u32 {sU}, {cfg.EARLY}\ns_cbranch_scc1 {ea}\ns_waitcnt vmcnt(0)'); e.label(ea)
        if cfg.RDLY: e(f's_sleep {cfg.RDLY}')
        pp('rs0')
        e.label(lp2)
        toks = [e.vm(f'buffer_load_dwordx4 {vr(RL+4*j)}, v{vL16}, {WS}, {sRSL if j<4 else "s98"} offen offset:{(j%4)*1024} sc1') for j in range(8)]
        tt = sum((((a ^ c) | (b ^ c)) & 1) << (a*4+b*2+c) for a in (0,1) for b in (0,1) for c in (0,1))
        for j in range(8):
            e.wvm(toks[j])
            e(f'{MF} {vr(RD)}, {vr(SEL)}, {vr(RL+4*j)}, {vr(RD) if j else 0}' if cfg.MS else f'{MF} {vr(RD)}, {vr(RL+4*j)}, {vr(SEL)}, {vr(RD) if j else 0}')
            e(f'v_bitop3_b32 v{RL+4*j}, v{RL+4*j}, v{RL+4*j+2}, {sPAR} bitop3:{tt:#x}')
            if j == 2: e(f'v_or3_b32 v{RL}, v{RL}, v{RL+4}, v{RL+8}')
            if j in (4, 6): e(f'v_or3_b32 v{RL}, v{RL}, v{RL+4*j-4}, v{RL+4*j}')
        e(f'v_or_b32 v{RL}, v{RL}, v{RL+28}\nv_and_b32 v{RL}, 1, v{RL}\nv_cmp_ne_u32 vcc, 0, v{RL}\nv_mov_b64 {vr(RL+2,2)}, -1\ns_cbranch_vccnz {lp2}r')
        e(f"""s_mov_b64 exec, {sp(mPUB)}
        v_cvt_pk_bf16_f32 v{RL}, v{RD}, v{RD+1}
        v_cvt_pk_bf16_f32 v{RL+1}, v{RD+2}, v{RD+3}
        v_min_u32 v{RL}, -2, v{RL}
        v_min_u32 v{RL+1}, -2, v{RL+1}
        buffer_store_dwordx2 {vr(RL,2)}, v{vAG}, {WS}, s30 offen {fl}""")
        if cfg.REP:
            rp = e.lab('r')
            e(f's_cmp_lt_u32 {sU}, 8\ns_cbranch_scc1 {rp}r'); e.label(rp)
            cold.append(f'{rp}r:\ns_add_u32 s30, s30, 10240\ns_add_u32 s33, s30, 4096\n' + '\n'.join(f'buffer_store_dwordx2 {vr(RL,2)}, v{vAG}, {WS}, {x} offen offset:{o} {fl}' for x, o in (('s30', 0), ('s30', 2048), ('s33', 0)))
                        + f'\ns_add_u32 s30, s31, 10240\ns_add_u32 s33, s30, 4096\n' + '\n'.join(f'buffer_store_dwordx2 {vr(RL+2,2)}, v{vAG}, {WS}, {x} offen offset:{o} {fl}' for x, o in (('s30', 0), ('s30', 2048), ('s33', 0))) + f'\ns_branch {rp}')
        e(f'buffer_store_dwordx2 {vr(RL+2,2)}, v{vAG}, {WS}, s31 offen {fl}\ns_mov_b64 exec, -1')
        if cfg.AACK: e.vm0()
        j2 = e.lab('r')
        e(f's_branch {j2}'); e.label(nored); pp('rs0'); e('s_waitcnt vmcnt(0)'); e.label(j2)
        if cfg.PFL == 1:
            for j in range(3): xload(chain[j][0])
        flags_read()
        if cfg.VDB:
            for r in range(0, 8, 2): e(f'v_mov_b64 {vr(VX+r,2)}, {vr(VXN+r,2)}')
        e(f's_xor_b32 {sPAR}, {sPAR}, 1\ns_mov_b32 s28, 0')
        pp('rs1')
        prof_flush(e, cfg, len(cfg.PP), sPF)
        e.ds0()
        e('s_barrier')
        if cfg.ADLY: e(f's_sleep {cfg.ADLY}')
        e(f's_branch {top}')
        for t in cold: e(t)
        e.label(lp2 + 'r'); spin_tail(e, cfg, lp2, 5)
        if cfg.LPROF:
            e.label(top + '_p'); e(f's_memtime s[48:49]\ns_memrealtime s[50:51]\ns_branch {top}_q')
        e.label(last)
        if cfg.LPROF:
            e(f's_memtime s[52:53]\ns_memrealtime s[54:55]\ns_waitcnt lgkmcnt(0)\ns_sub_u32 s52, s52, s48\ns_sub_u32 s53, s54, s50\ns_sub_u32 s54, s54, s100\nv_mov_b32 v64, s52\nv_mov_b32 v65, s53\nv_mov_b32 v66, s54\nbuffer_store_dwordx3 v[64:66], off, {WS}, {sPF}')
        e(f's_mov_b64 exec, -1\ns_waitcnt vmcnt(0)\ns_barrier\nv_mov_b32 v6, 64\nbuffer_store_dword v6, off, {WS}, {sFR} sc1\ns_branch L_wb')
    e(f's_add_u32 s34, {sAGR}, {sAGL}\ns_add_u32 s32, {sAGR}, s99\ns_mov_b32 s28, 0')
    two_modes(e, 'R', body)

tLANE, tL16, tDMA, tL4, tPOLL, tL128 = 1, 2, 5, 8, 9, 0
def tok_setup(e):
    e(f'v_and_b32 v{tLANE}, 63, v0\nv_lshlrev_b32 v{tL16}, 4, v{tLANE}\nv_lshlrev_b32 v{tL4}, 2, v{tLANE}')
def x_setup(e, xa):
    e(f"""v_bfe_u32 v10, v{tLANE}, 1, 3
    v_lshrrev_b32 v11, 5, v{tLANE}
    v_xor_b32 v10, v10, v11
    v_lshlrev_b32 v{xa}, 4, v10
    v_and_b32 v10, 7, v{tLANE}
    v_lshl_add_u32 v{xa}, v10, 7, v{xa}
    v_bfe_u32 v10, v{tLANE}, 3, 2
    v_mul_u32_u24 v10, 10240, v10
    v_add_u32 v{xa}, v{xa}, v10""")
    for q in range(1, 4): e(f'v_xor_b32 v{xa+q}, {32*q}, v{xa}')
def piece_setup(e, v, ustride):
    e(f'v_bfe_u32 v10, v{tLANE}, 4, 1\nv_mul_u32_u24 v{v}, {ustride}, v10\nv_lshrrev_b32 v10, 5, v{tLANE}\nv_lshl_add_u32 v{v}, v10, 8, v{v}\nv_and_b32 v10, 15, v{tLANE}\nv_lshl_add_u32 v{v}, v10, 4, v{v}')
def dma_steps(e, sG, sL, n, voff, fl='sc1'):
    def step(j):
        def f():
            if j % 4 == 0:
                if j: e(f's_add_u32 {sL}, {sL}, 4096\ns_add_u32 {sG}, {sG}, 4096')
                e(f's_mov_b32 m0, {sL}')
            e.vm(f'buffer_load_dwordx4 v{voff}, {WS}, {sG} offen offset:{(j%4)*1024} {fl} lds')
        return f
    return [step(j) for j in range(n)]
def xfrag(e, k, xa):
    return lambda r: ('ds', e.ds(f'ds_read_b128 {vr(r)}, v{xa + (k & 3)} offset:{(k>>2)*1024}'))
def poll(e, cfg, load, test, code):
    lp = e.lab('p'); ok = e.lab('p')
    e('s_mov_b32 s28, 0'); e.label(lp)
    e(load + '\ns_waitcnt vmcnt(0)\n' + test + f'\ns_cbranch_scc1 {ok}')
    if cfg.PSLEEP: e(f's_sleep {cfg.PSLEEP}')
    spin_tail(e, cfg, lp, code)
    e.label(ok); e.unknown_vm()
def row_flags_load(sBase): return f'buffer_load_dword v{tPOLL}, v{tL128}, {WS}, {sBase} offen sc1'
def l128_setup(e): e(f'v_and_b32 v{tL128}, 31, v{tLANE}\nv_lshlrev_b32 v{tL128}, 7, v{tL128}')
ROW_TEST = f'v_cmp_eq_u32 vcc, 0, v{tPOLL}\ns_cmp_eq_u32 vcc_lo, 0'
def wave_sum(e, v, t):
    for r in (8, 4, 2, 1): e(f'v_add_f32 v{v}, v{v}, v{v} row_ror:{r} row_mask:0xf bank_mask:0xf')
    xlane(e, 'v_add_f32', v, t)
def mk_order(lead, ratio, l2first=False):
    seq = [0]*lead; n1 = lead; n2 = 0; acc = 1.0 if l2first else 0.0
    while n1 < 64:
        while acc >= 1.0 - 1e-9 and n2 < 64: seq.append(1); n2 += 1; acc -= 1.0
        seq.append(0); n1 += 1; acc += ratio
    seq += [1]*(64-n2)
    return seq
def order_setup(e, seq):
    m = sum(b << i for i, b in enumerate(seq))
    mask64(e, 54, m & (2**64-1)); mask64(e, 56, m >> 64)
    e.pop0 = bin(m & (2**64-1)).count('1')
def order_item(e, sn, sIT):
    e(f"""s_cmp_lt_u32 {sn}, 64
    s_cselect_b64 s[60:61], s[54:55], s[56:57]
    s_cselect_b32 s33, 0, {e.pop0}
    s_bfm_b64 s[34:35], {sn}, 0
    s_and_b64 s[34:35], s[34:35], s[60:61]
    s_bcnt1_i32_b64 s34, s[34:35]
    s_add_u32 s33, s33, s34
    s_sub_u32 s34, {sn}, s33
    s_add_u32 s33, s33, 64
    s_bitcmp1_b64 s[60:61], {sn}
    s_cselect_b32 {sIT}, s33, s34
    s_cmp_ge_u32 {sn}, 128
    s_cselect_b32 {sIT}, {sn}, {sIT}""")

class Red:
    onepass = 0; sINV = 's101'
def row_setup(e, R, sRow):
    L = tLANE
    e(f"""v_bfe_u32 v10, v{L}, 4, 1
    v_lshrrev_b32 v11, 5, v{L}
    v_lshl_add_u32 v10, v10, 1, v11
    v_and_b32 v11, 15, v{L}
    v_lshlrev_b32 v{R.row+1}, 4, v11
    v_lshl_add_u32 v{R.row}, v10, 8, v{R.row+1}
    v_add_u32 v{R.row+1}, 1024, v{R.row+1}
    s_bfe_u32 s33, {sRow}, 0x30001
    v_and_b32 v11, 7, v{L}
    v_xor_b32 v11, s33, v11
    v_lshlrev_b32 v{R.xn+1}, 4, v11
    v_bfe_u32 v11, v{L}, 3, 1
    v_lshl_add_u32 v{R.xn+1}, v11, 10, v{R.xn+1}
    v_lshl_add_u32 v{R.xn}, v10, 11, v{R.xn+1}
    v_add_u32 v{R.xn+1}, 8192, v{R.xn+1}
    v_mov_b32 v10, {OOB:#x}
    v_cmp_gt_u32 vcc, 16, v{L}
    v_cndmask_b32 v{R.row+1}, v10, v{R.row+1}, vcc
    v_cndmask_b32 v{R.xn+1}, v10, v{R.xn+1}, vcc
    s_lshr_b32 {R.sXR}, {sRow}, 3
    s_mul_i32 {R.sXR}, {R.sXR}, 10240
    s_and_b32 s33, {sRow}, 7
    s_lshl_b32 s33, s33, 7
    s_add_u32 {R.sXR}, {R.sXR}, s33""")
def red_setup(e, R, base, nprod):
    R.la, R.lb, R.ga, R.gb, R.lw, R.p0, R.p1, R.res, R.res2, R.ly, R.xn = range(base, base+11)
    R.sel, R.sel2 = base+12, base+16
    R.sM, R.sG, R.sROW, R.sXR, R.sFP, R.sFPme, R.sRS, R.sRS2, R.sSTO, R.sLDO = ['s%d' % i for i in range(70, 80)]
    L = tLANE
    e(f"""s_mul_i32 s33, {sW}, {32*336}
    s_add_u32 s33, s33, {R.L_T}
    v_lshrrev_b32 v10, 3, v{L}
    v_and_b32 v11, 7, v{L}
    v_mul_u32_u24 v{R.la}, 336, v10
    v_lshl_add_u32 v{R.la}, v11, 4, v{R.la}
    v_add_u32 v{R.la}, s33, v{R.la}
    v_mul_u32_u24 v{R.ga}, {RSP_ROW}, v10
    v_lshl_add_u32 v{R.ga}, v11, 4, v{R.ga}
    v_lshrrev_b32 v10, 2, v{L}
    v_and_b32 v11, 3, v{L}
    v_mul_u32_u24 v{R.lb}, 336, v10
    v_lshl_add_u32 v{R.lb}, v11, 4, v{R.lb}
    v_add_u32 v{R.lb}, s33, v{R.lb}
    v_mul_u32_u24 v{R.gb}, {RSP_ROW}, v10
    v_lshl_add_u32 v{R.gb}, v11, 4, v{R.gb}
    v_lshrrev_b32 v10, 4, v{L}
    v_and_b32 v11, 15, v{L}
    v_and_b32 v6, 31, v{L}
    v_mul_u32_u24 v{R.lw}, 336, v6
    v_lshrrev_b32 v6, 5, v{L}
    v_lshl_add_u32 v{R.lw}, v6, 4, v{R.lw}
    v_add_u32 v{R.lw}, s33, v{R.lw}
    v_mul_u32_u24 v{R.p0}, 1280, v10
    v_lshl_add_u32 v{R.p0}, v11, 4, v{R.p0}
    v_mov_b32 v{R.p1}, v{R.p0}
    v_mov_b32 v6, {OOB:#x}
    s_and_b32 s33, {sW}, 1
    s_lshl_b32 s33, s33, 3
    v_add_u32 v7, s33, v10
    v_cmp_gt_u32 vcc, {nprod}, v7
    v_cndmask_b32 v{R.p0}, v6, v{R.p0}, vcc
    v_add_u32 v7, 4, v7
    v_cmp_gt_u32 vcc, {nprod}, v7
    v_cndmask_b32 v{R.p1}, v6, v{R.p1}, vcc
    v_lshrrev_b32 v7, 5, v{L}
    v_and_b32 v10, 1, v10
    v_lshlrev_b32 v{R.res}, 8, v7
    v_lshl_add_u32 v{R.res}, v11, 4, v{R.res}
    v_lshl_add_u32 v{R.res}, v10, 3, v{R.res}
    v_cmp_gt_u32 vcc, 32, v{L}
    v_cndmask_b32 v{R.res2}, v6, v{R.res}, vcc
    s_lshr_b32 s33, {sW}, 1
    s_mul_i32 s34, s33, 3072
    s_add_u32 s34, s34, {R.L_Y}
    v_add_u32 v{R.ly}, s34, v{tL16}
    s_lshl_b32 {R.sROW}, {R.sM}, 1
    s_add_u32 {R.sROW}, {R.sROW}, s33
    s_lshl_b32 {R.sFP}, {R.sG}, 8
    s_add_u32 {R.sFP}, {R.sFP}, {F_PS}
    s_lshl_b32 {R.sFPme}, {R.sM}, 4
    s_lshl_b32 s33, {sW}, 2
    s_add_u32 {R.sFPme}, {R.sFPme}, s33
    s_add_u32 {R.sFPme}, {R.sFPme}, {R.sFP}
    s_mul_i32 {R.sRS}, {R.sG}, {2*RSP_SLOT}
    s_add_u32 {R.sRS}, {R.sRS}, {OFF_RSP}
    s_add_u32 {R.sRS2}, {R.sRS}, {RSP_SLOT}
    s_mul_i32 {R.sSTO}, {R.sM}, 1280
    s_mul_i32 s33, {sW}, 320
    s_add_u32 {R.sSTO}, {R.sSTO}, s33
    s_mul_i32 {R.sLDO}, {R.sROW}, {RSP_ROW}
    s_and_b32 s33, {sW}, 1
    s_mul_i32 s33, s33, {8*1280}
    s_add_u32 {R.sLDO}, {R.sLDO}, s33""")
    e(f's_mov_b32 {R.sINV}, {f2u(1/640):#x}')
    sel_masks(e, 84, lambda l: (l & 15) >> 1); mk_sel(e, R.sel, tL16, 10, 84)
    sel_masks(e, 84, lambda l: ((l & 15) >> 1) - 4); mk_sel(e, R.sel2, tL16, 10, 84)
def group_ids(e, R):
    if R: e(f's_sub_u32 s71, {sGRP}, 5\ns_lshr_b32 s33, {sH}, 4\ns_mul_i32 s33, s33, 3\ns_add_u32 s71, s71, s33\ns_and_b32 s70, {sH}, 15')
    else: e(f's_sub_u32 s71, {sGRP}, 5\ns_lshl_b32 s71, s71, 1\ns_lshr_b32 s33, {sH}, 4\ns_add_u32 s71, s71, s33\ns_and_b32 s70, {sH}, 15')

def res_load(e, R, srd_, sOff, d):
    for T in range(3):
        t = e.vm(f'buffer_load_dwordx2 {vr(d+2*T,2)}, v{R.res2 if T==2 else R.res}, {srd_}, {sOff} offen offset:{T*512} sc1')
    return t

LOCN = [0]
def loc_store(text):
    LOCN[0] += 1; a = f'ls{LOCN[0]}a'; b = f'ls{LOCN[0]}b'
    COLD.append(f'{a}:\n{text} sc1\ns_branch {b}')
    return f's_cmp_eq_u32 {sMODE}, 1\ns_cbranch_scc0 {a}\n{text}\n{b}:'
def row_store(e, R, Q, srd_, soff, fl, image):
    e(f'v_mov_b32 v{Q+6}, v{Q+4}\nv_mov_b32 v{Q+7}, v{Q+5}')
    for r in range(2): e(f'v_permlane16_swap_b32 v{Q+r}, v{Q+2+r}')
    for r in range(2): e(f'v_permlane16_swap_b32 v{Q+4+r}, v{Q+6+r}')
    va = R.xn if image else R.row
    for j in range(2):
        t = f'buffer_store_dwordx4 {vr(Q+4*j)}, v{va+j}, {srd_}, {soff} offen'
        e.vm(loc_store(t) if fl == 'loc' else t + ' ' + fl)

def finish_row(e, R, X, RES, TMP, has_y, xstore, sXNitem, st='s33', Q=None):
    if has_y:
        for p in range(6):
            e(f'v_lshlrev_b32 v{TMP}, 16, v{RES+p}\nv_and_b32 v{TMP+1}, 0xffff0000, v{RES+p}\nv_pk_add_f32 {vr(X+2*p,2)}, {vr(X+2*p,2)}, {vr(TMP,2)}')
            e(f'v_cvt_pk_bf16_f32 v{Q+p}, v{X+2*p}, v{X+2*p+1}')
        RES = Q
    if sXNitem is not None:
        for p in range(6): e(f'v_lshlrev_b32 v{X+2*p}, 16, v{RES+p}\nv_and_b32 v{X+2*p+1}, 0xffff0000, v{RES+p}')
    if xstore: row_store(e, R, Q, xstore[0], xstore[1], xstore[2], False)
    if sXNitem is None: return
    S, T1 = TMP, TMP+1
    if R.onepass:
        S2 = Q+8 if Q is not None else TMP+2; T2 = S2+1
        e(f'v_pk_add_f32 {vr(S,2)}, {vr(X,2)}, {vr(X+2,2)}\nv_pk_mul_f32 {vr(S2,2)}, {vr(X,2)}, {vr(X,2)}')
        for r in range(2, 12, 2):
            if r >= 4: e(f'v_pk_add_f32 {vr(S,2)}, {vr(S,2)}, {vr(X+r,2)}')
            e(f'v_pk_fma_f32 {vr(S2,2)}, {vr(X+r,2)}, {vr(X+r,2)}, {vr(S2,2)}')
        e(f'v_add_f32 v{S}, v{S}, v{T1}\nv_add_f32 v{S2}, v{S2}, v{T2}\ns_add_u32 {st}, {sXNitem}, {R.sXR}')
        for r in (8, 4, 2, 1):
            for v in (S, S2): e(f'v_add_f32 v{v}, v{v}, v{v} row_ror:{r} row_mask:0xf bank_mask:0xf')
            e('s_nop 0')
        for sw in ('v_permlane32_swap_b32', 'v_permlane16_swap_b32'):
            e(f'v_mov_b32 v{T1}, v{S}\nv_mov_b32 v{T2}, v{S2}\ns_nop 0\n{sw} v{S}, v{T1}\n{sw} v{S2}, v{T2}\nv_add_f32 v{S}, v{S}, v{T1}\nv_add_f32 v{S2}, v{S2}, v{T2}')
        e(f"""v_mul_f32 v{S}, {f2u(-1/640):#x}, v{S}
        v_mul_f32 v{T1}, v{S}, v{S}
        v_fma_f32 v{S2}, v{S2}, {R.sINV}, -v{T1}
        v_max_f32 v{S2}, 0, v{S2}
        v_add_f32 v{S2}, {f2u(1e-5):#x}, v{S2}
        v_rsq_f32 v{S2}, v{S2}
        s_nop 0
        v_mul_f32 v{S}, v{S}, v{S2}""")
        for p in range(6):
            e(f'v_pk_fma_f32 {vr(X+2*p,2)}, {vr(X+2*p,2)}, {vr(S2,2)}, {vr(S,2)} op_sel_hi:[1,0,0]\nv_cvt_pk_bf16_f32 v{X+p}, v{X+2*p}, v{X+2*p+1}')
    else:
        e(f'v_pk_add_f32 {vr(S,2)}, {vr(X,2)}, {vr(X+2,2)}')
        for r in range(4, 12, 2): e(f'v_pk_add_f32 {vr(S,2)}, {vr(S,2)}, {vr(X+r,2)}')
        e(f'v_add_f32 v{S}, v{S}, v{T1}')
        wave_sum(e, S, T1)
        e(f'v_mul_f32 v{S}, {f2u(-1/640):#x}, v{S}')
        for r in range(0, 8, 2): e(f'v_pk_add_f32 {vr(X+r,2)}, {vr(X+r,2)}, {vr(S,2)} op_sel_hi:[1,0]')
        e('s_mov_b32 exec_hi, 0')
        for r in range(8, 12, 2): e(f'v_pk_add_f32 {vr(X+r,2)}, {vr(X+r,2)}, {vr(S,2)} op_sel_hi:[1,0]')
        e('s_mov_b32 exec_hi, -1')
        e(f'v_pk_mul_f32 {vr(S,2)}, {vr(X,2)}, {vr(X,2)}')
        for r in range(2, 12, 2): e(f'v_pk_fma_f32 {vr(S,2)}, {vr(X+r,2)}, {vr(X+r,2)}, {vr(S,2)}')
        e(f'v_add_f32 v{S}, v{S}, v{T1}')
        wave_sum(e, S, T1)
        e(f'v_mov_b32 v{T1}, {f2u(1e-5):#x}\nv_fmac_f32 v{T1}, {f2u(1/640):#x}, v{S}\nv_rsq_f32 v{S}, v{T1}\ns_add_u32 {st}, {sXNitem}, {R.sXR}')
        for p in range(6):
            e(f'v_pk_mul_f32 {vr(X+2*p,2)}, {vr(X+2*p,2)}, {vr(S,2)} op_sel_hi:[1,0]\nv_cvt_pk_bf16_f32 v{X+p}, v{X+2*p}, v{X+2*p+1}')
    row_store(e, R, X, WS, st, xstore[2] if xstore else 'sc1', True)

def out_proj(e, R, wfr, NK, OB, oread, ACC, PK, ST, fill, s0=None, stream=None, after=None, budget=24):
    per = NK; cost = {}
    def put(p, c, f): at(fill, p, f); cost[p] = cost.get(p, 0) + c
    for p in fill: cost[p] = 12*len(fill[p])
    def cv(c, h):
        a = ACC + 16*(c % 2) + 8*h
        for r in range(4): e(f'v_cvt_pk_bf16_f32 v{PK+4*h+r}, v{a+2*r}, v{a+2*r+1}')
    def wr(c, h): e.ds(f'ds_write_b128 v{R.lw}, {vr(PK+4*h)} offset:{c*64+h*32}')
    tk = {}
    def rd(j, half): tk[j] = e.ds(f'ds_read_b128 {vr(ST+4*j)}, v{R.la} offset:{j*8*336+half*128}')
    def st(j, half):
        e.wds(tk[j]); e(f's_add_u32 s33, s35, {j*8*RSP_ROW}')
        e.vm(f'buffer_store_dwordx4 {vr(ST+4*j)}, v{R.ga}, {WS}, s33 offen offset:{half*128}')
    otok = dict(oread.tok)
    for k in range(4, NK, 2): put((k-4)//2, 8, lambda k=k: otok.update({k: oread(k), k+1: oread(k+1)}))
    for c in range(4):
        p = (c+1)*per + 2
        put(p, 16, lambda c=c: cv(c, 0)); put(p+1, 16, lambda c=c: wr(c, 0)); put(p+2, 16, lambda c=c: cv(c, 1)); put(p+3, 16, lambda c=c: wr(c, 1))
    for half in range(2):
        base = (2*half+2)*per + 5
        if half == 0 and s0: base = s0
        put(base, 8, lambda half=half: (rd(0, half), rd(1, half))); put(base+1, 8, lambda half=half: (rd(2, half), rd(3, half)))
        gap = max(1, (per-9)//4) if half else max(1, (4*per-base-3)//4)
        for j in range(4): put(base+4+gap*j, 28, lambda j=j, half=half: st(j, half))
    put(NK, 4, lambda: e(f's_add_u32 s35, {R.sSTO}, {R.sRS}'))
    if stream:
        last = spread(e, stream, fill, cost, 1, budget)
        if after: after(last)
    i = 0
    for c in range(5):
        for k in range(NK):
            if c == 0: e.wds(otok[k])
            a = vr(ACC + 16*(c % 2), 16)
            e(f'{MF32} {a}, {wfr(c,k)}, {vr(OB+4*k)}, {a if k else 0}')
            run(fill, i); i += 1
    drain(fill)
def out_tail1(e, R, ACC, PK):
    for h in range(2):
        for r in range(4): e(f'v_cvt_pk_bf16_f32 v{PK+4*h+r}, v{ACC+8*h+2*r}, v{ACC+8*h+2*r+1}')
        e.ds(f'ds_write_b128 v{R.lw}, {vr(PK+4*h)} offset:{256+h*32}')
    return [e.ds(f'ds_read_b128 {vr(PK+4*j)}, v{R.lb} offset:{j*16*336+256}') for j in range(2)]
def out_tail2(e, R, PK, tk):
    for j in range(2):
        e.wds(tk[j]); e(f's_add_u32 s33, s35, {j*16*RSP_ROW}')
        e.vm(f'buffer_store_dwordx4 {vr(PK+4*j)}, v{R.gb}, {WS}, s33 offen offset:256')
    return e.vmn

def publish(e, R, sCnt):
    slow = e.lab('pb'); done = e.lab('pb')
    e(f'v_mov_b32 v10, {sCnt}\ns_cmp_eq_u32 {sMODE}, 1\ns_cbranch_scc0 {slow}')
    e.vm(f'buffer_store_dword v10, off, {WS}, {R.sFPme}')
    e.label(done)
    e.cold.append(f'{slow}:\nbuffer_wbl2 sc1\ns_waitcnt vmcnt(0)\nbuffer_store_dword v10, off, {WS}, {R.sFPme} sc1\ns_branch {done}')
def flush_cold(e):
    for t in e.cold: e(t)
    e.cold.clear()
def grp_load(R): return f'buffer_load_dword v10, v{tL4}, {WS}, {R.sFP} offen sc1'
def grp_wait(e, cfg, R, sCnt, code, tok=None):
    test = f'v_cmp_gt_u32 vcc, {sCnt}, v10\ns_cmp_eq_u64 vcc, 0'
    ok = e.lab('g')
    if tok is not None:
        e.wvm(tok); e(test + f'\ns_cbranch_scc1 {ok}')
        st = e.vmdone
    ps = cfg.PSLEEP; cfg.PSLEEP = 0
    poll(e, cfg, grp_load(R), test, code)
    cfg.PSLEEP = ps
    e.label(ok)
    if tok is not None: e.vmdone = st
    slow = e.lab('gq'); done = e.lab('gq')
    e(f's_cmp_eq_u32 {sMODE}, 1\ns_cbranch_scc0 {slow}'); e.label(done)
    e.cold.append(f'{slow}:\nbuffer_inv sc1\ns_waitcnt vmcnt(0)\ns_branch {done}')
def rs_steps(e, R, LD, toks, sa='s30', sb='s31'):
    e(f's_add_u32 {sa}, {R.sLDO}, {R.sRS}\ns_add_u32 {sb}, {sa}, {4*1280}')
    def one(jj, j): toks[jj, j] = e.vm(f'buffer_load_dwordx4 {vr(LD+20*jj+4*j)}, v{R.p1 if jj else R.p0}, {WS}, {sb if jj else sa} offen offset:{j*256} sc1')
    return [(lambda jj=jj, j=j: one(jj, j)) for jj in range(2) for j in range(5)]
def rs_loads(e, R, LD):
    e(f's_add_u32 s30, {R.sLDO}, {R.sRS}\ns_add_u32 s31, s30, {4*1280}')
    return {(jj, j): e.vm(f'buffer_load_dwordx4 {vr(LD+20*jj+4*j)}, v{R.p1 if jj else R.p0}, {WS}, {"s31" if jj else "s30"} offen offset:{j*256} sc1') for jj in range(2) for j in range(5)}
def rs_sum(e, R, toks, LD, Y):
    for jj in range(2):
        for j in range(5):
            e.wvm(toks[jj,j]); a = vr(Y+4*(j>>1))
            first = (jj == 0 and j % 2 == 0)
            e(f'{MF} {a}, {vr(R.sel2 if j & 1 else R.sel)}, {vr(LD+20*jj+4*j)}, {0 if first else a}')
    if R.single:
        slow = e.lab('cs'); done = e.lab('cs')
        e(f'v_mov_b32 v10, {R.sCNT}\ns_cmp_eq_u32 {sMODE}, 1\ns_cbranch_scc0 {slow}')
        e.vm(f'buffer_store_dword v10, off, {WS}, {R.sFPme} offset:2048')
        e.label(done)
        e.cold.append(f'{slow}:\nbuffer_store_dword v10, off, {WS}, {R.sFPme} offset:2048 sc1\ns_branch {done}')
    ev = e.lab('d')
    e(f's_bitcmp1_b32 {sW}, 0\ns_cbranch_scc0 {ev}')
    for T in range(3): e(f'ds_write_b128 v{R.ly}, {vr(Y+4*T)} offset:{T*1024}')
    e.label(ev)
    if not R.single: swap_rs(e, R)
def slot_free(e, cfg, R, fill, p0, p1, code):
    if not R.single: return
    k = {}
    ld = f'buffer_load_dword v10, v{tL4}, {WS}, {R.sFP} offen offset:2048 sc1'
    test = f'v_add_u32 v10, 1, v10\nv_cmp_gt_u32 vcc, {R.sCNT}, v10'
    def chk():
        lp = e.lab('sf'); ok = e.lab('sf')
        e.wvm(k['t']); e(test + f'\ns_mov_b32 s28, 0\ns_cbranch_vccnz {lp}'); e.label(ok)
        e.cold.append(f'{lp}:\n{ld}\ns_waitcnt vmcnt(0)\n{test}\ns_cbranch_vccz {ok}\ns_add_u32 s28, s28, 1\ns_cmp_lt_u32 s28, {cfg.SPIN}\ns_cbranch_scc1 {lp}\ns_mov_b32 s29, {code}\ns_branch L_abort')
    at(fill, p0, lambda: k.update(t=e.vm(ld))); at(fill, p1, chk)
def decide(e, vD, t, mid):
    e('s_barrier')
    tk = e.ds(f'ds_read_b128 {vr(t)}, v{vD}')
    r = mid()
    e.wds(tk)
    e(f'v_and_b32 v{t}, v{t}, v{t+1}\nv_and_b32 v{t+2}, v{t+2}, v{t+3}\nv_and_b32 v{t}, v{t}, v{t+2}\nv_readfirstlane_b32 s30, v{t}\ns_cmp_eq_u32 s30, 1')
    return r
def gate(flag, vd, sit):
    return f"""
    s_cselect_b32 {flag}, 1, 0
    s_cmp_ge_u32 {sit}, 128
    s_cselect_b32 {flag}, 0, {flag}
    s_cmp_eq_u32 {flag}, 1
    s_cselect_b32 s33, 0, {OOB:#x}
    v_or_b32 v{vd}, s33, v{tL16}"""
def reduce_gather(e, R, LD, Y):
    toks = [e.ds(f'ds_read_b128 {vr(LD+4*q)}, v{R.ly} offset:{q*1024}') for q in range(3)]
    for q in range(3):
        e.wds(toks[q])
        for r in (0, 2): e(f'v_pk_add_f32 {vr(Y+4*q+r,2)}, {vr(Y+4*q+r,2)}, {vr(LD+4*q+r,2)}')
def swap_rs(e, R):
    e(f's_mov_b32 s33, {R.sRS}\ns_mov_b32 {R.sRS}, {R.sRS2}\ns_mov_b32 {R.sRS2}, s33')

def role_P(e, cfg, nm):
    isV = nm == 'V'
    which = {'K':0, 'V':1, 'Q':2}[nm]
    WV = 96; XB = [16+4*i for i in range(6)]; ACC = 48; PK = 64; vXA, vX0, vPO = 72, 76, 80
    sN, sIT, sIT2, sBUF, sPRE, sFA, sFB, sFV, sOB, sG, sL, sPF, sIT3 = ['s%d' % i for i in range(62, 75)]
    e.label(f'L_role{nm}')
    tok_setup(e)
    wl = WL(e, tLANE, 0, 4096*cfg.NSL, 24, 40, cfg.NSL)
    e(f's_lshl_b32 s33, {sH}, 8'); sq = wl.src(16, 8192, 's33', False)
    srd(e, 12, {'K':P_WK, 'V':P_WV, 'Q':P_WQ}[nm])
    wl.cols32('s[12:15]', sq, 10, lambda k: ('v', WV+4*k), 18, isV, first=lambda: arrive(e))
    x_setup(e, vX0); piece_setup(e, vPO, 1024)
    sync_start(e, cfg)
    l128_setup(e); pf_base(e, sPF); order_setup(e, mk_order(cfg.A, cfg.PRAT, True))
    def flag_line(sit, d): e(f's_lshl_b32 {d}, {sit}, 12\ns_add_u32 {d}, {d}, {F_XN}')
    def dma_setup(sit):
        e(f's_mul_i32 {sL}, {sW}, 10240\ns_mul_i32 {sG}, {sit}, {ITEM}\ns_add_u32 {sG}, {sG}, {sL}\ns_add_u32 {sG}, {sG}, {OFF_XN}\ns_add_u32 {sL}, {sL}, {sBUF}')
    def fetch(sit, code):
        flag_line(sit, 's31'); poll(e, cfg, row_flags_load('s31'), ROW_TEST, code)
        dma_setup(sit)
        for f in dma_steps(e, sG, sL, 10, tL16): f()
    e(f"""s_lshl_b32 {sFB}, {sH}, 11
    s_lshl_b32 s33, {sW}, 9
    s_add_u32 {sFB}, {sFB}, s33
    s_lshl_b32 {sOB}, {sFB}, 2
    s_add_u32 {sOB}, {sOB}, {dict(K=OFF_KF, V=OFF_VF, Q=OFF_QF)[nm]}
    s_add_u32 {sFB}, {sFB}, {F_P3 + which*128}
    s_mov_b32 {sFA}, {sFB}
    s_mov_b32 {sFV}, 0
    s_mov_b32 {sN}, 0
    s_mov_b32 {sIT}, 0
    s_mov_b32 {sIT2}, 1
    s_mov_b32 {sBUF}, 0""")
    fetch(sIT, 10)
    flag_line(sIT2, 's31'); e(row_flags_load('s31'))
    e.vm0()
    top = f'L_{nm}top'; e.label(top)
    prof(e, cfg, 0)
    for q in range(4): e(f'v_add_u32 v{vXA+q}, {sBUF}, v{vX0+q}')
    e(f's_waitcnt vmcnt({4 if cfg.PROF else 3})\ns_barrier')
    xs = Stream(e, XB, [xfrag(e, k, vXA) for k in range(40)]); xs.prime()
    e(f"""{ROW_TEST}
    s_cselect_b32 {sPRE}, 1, 0
    s_cmp_ge_u32 {sN}, 127
    s_cselect_b32 {sPRE}, 0, {sPRE}
    s_cmp_eq_u32 {sPRE}, 1
    s_cselect_b32 s33, 0, {OOB:#x}
    v_or_b32 v{tDMA}, s33, v{tL16}
    s_xor_b32 {sBUF}, {sBUF}, {ITEM}""")
    dma_setup(sIT2)
    prof(e, cfg, 1)
    fill = {}
    for j, f in enumerate(dma_steps(e, sG, sL, 10, tDMA)): at(fill, 2*j, f)
    r = Rec(); r.pop0 = e.pop0
    r(f's_add_u32 s32, {sN}, 2'); order_item(r, 's32', sIT3)
    def whole(rec): return rec.chunks(e, 1000)[0]
    at(fill, cfg.PPOLL-2, whole(r))
    at(fill, cfg.PPOLL, lambda: (flag_line(sIT3, 's31'), e(row_flags_load('s31'))))
    def mid():
        prof(e, cfg, 2)
        e('s_waitcnt vmcnt(11)')
        prof(e, cfg, 3); prof_flush(e, cfg, 4, sPF)
        e(f'v_mov_b32 v10, {sFV}\nbuffer_store_dword v10, off, {WS}, {sFA} sc1')
    at(fill, cfg.PMID, mid); assert cfg.PPOLL < cfg.PMID
    at(fill, 30, lambda: e(f's_lshl_b32 s34, {sIT}, 18\ns_add_u32 s34, s34, {sOB}\ns_lshr_b32 {sFA}, {sIT}, 6\ns_lshl_b32 {sFA}, {sFA}, 2'))
    at(fill, 31, lambda: e(f's_add_u32 {sFA}, {sFA}, {sFB}\ns_and_b32 {sFV}, {sIT}, 63\ns_add_u32 {sFV}, {sFV}, 1\ns_add_u32 {sN}, {sN}, 1'))
    at(fill, 32, lambda: e(f's_mov_b32 {sIT}, {sIT2}\ns_mov_b32 {sIT2}, {sIT3}'))
    a = vr(ACC, 16)
    for k in range(40):
        x = xs.get(k); w = vr(WV+4*k)
        e(f'{MF32} {a}, {x if isV else w}, {w if isV else x}, {a if k else 0}')
        xs.issue(); run(fill, k)
    for f in range(2):
        src = [4*f, 4*f+2, 8+4*f, 10+4*f] if isV else [8*f+2*r for r in range(4)]
        for r_ in range(4): e(f'v_cvt_pk_bf16_f32 v{PK+4*f+r_}, v{ACC+src[r_]}, v{ACC+src[r_]+1}')
        e(f'buffer_store_dwordx4 {vr(PK+4*f)}, v{vPO}, {WS}, s34 offen offset:{f*512} sc1')
    e(f's_cmp_eq_u32 {sPRE}, 1\ns_cbranch_scc1 {top}')
    e(f's_waitcnt vmcnt(0)\nv_mov_b32 v10, {sFV}\nbuffer_store_dword v10, off, {WS}, {sFA} sc1')
    e(f's_cmp_ge_u32 {sN}, 128\ns_cbranch_scc1 L_end')
    fetch(sIT, 11)
    flag_line(sIT2, 's31'); e(row_flags_load('s31'))
    e.vm0()
    e(f's_branch {top}')
    e.unknown()

def ring_slot(sc, d, t):
    return f's_mul_hi_u32 {t}, {sc}, 0x55555556\ns_mul_i32 {t}, {t}, 3\ns_sub_u32 {d}, {sc}, {t}\ns_lshl_b32 {t}, {sGRP}, 2\ns_add_u32 {d}, {d}, {t}\n'
def wname(d): return ar(d[1]) if d[0] == 'a' else vr(d[1])
def w80(i): return ('a', 4*i) if i < 64 else ('v', 192+4*(i-64))

def role_A(e, cfg):
    R = Red(); R.L_T = 65536; L_O = 49152; R.L_Y = L_O; L_M = 65536 + 4*32*336
    sN, sIT, sIT2, sCNT, sPRE, sG, sL, sPF = ['s%d' % i for i in range(62, 70)]
    sC = 98; sMP, sRF, sHD, sML = 's96', 's97', 's12', 's13'
    wo = lambda c, k: w80(16*c+k)
    e.label('L_roleA')
    tok_setup(e)
    wl = WL(e, tLANE, 0, 4096*cfg.NSL, 24, 40, cfg.NSL)
    srd(e, 16, P_WO); srd(e, 20, P_X)
    e(f's_mul_i32 s62, s70, {256*1280}')
    wl.rows32('s[16:19]', 's62', 8, wo, 16, first=lambda: arrive(e))
    sync_start(e, cfg)
    R.row = 3; R.single = cfg.SINGLE; R.sCNT = sCNT
    red_setup(e, R, 16, 16); row_setup(e, R, R.sROW); order_setup(e, mk_order(cfg.D, cfg.RAT))
    pf_base(e, sPF)
    vQ, vKV, vKM, vOW, vVM, vMD = 36, 37, 38, 39, 12, 13
    mreg = [80, 82, 84, 86, 88, 90, 92, 94]
    e(f"""s_lshr_b32 s32, {sW}, 1
    s_lshl_b32 {sHD}, {R.sM}, 1
    s_add_u32 {sHD}, {sHD}, s32
    s_lshl_b32 s33, s32, 13
    v_add_u32 v{vKV}, s33, v{tL16}
    s_and_b32 s34, {sW}, 1
    s_lshl_b32 s35, s34, 10
    v_add_u32 v{vQ}, s35, v{vKV}
    s_lshl_b32 s35, s34, 13
    s_lshr_b32 s33, s33, 1
    s_add_u32 s35, s35, s33
    v_add_u32 v{vOW}, s35, v{tL16}
    s_mul_i32 s33, s32, 6144
    s_add_u32 s33, s33, {L_M}
    v_add_u32 v{vVM}, s33, v{tL16}
    v_lshrrev_b32 v10, 4, v{tLANE}
    v_and_b32 v11, 7, v{tLANE}
    v_lshlrev_b32 v{vKM}, 7, v10
    v_lshl_add_u32 v{vKM}, v11, 4, v{vKM}
    v_add_u32 v{vKM}, s33, v{vKM}
    s_mov_b32 {sML}, s33
    s_lshl_b32 s34, s34, 4
    v_and_b32 v11, 15, v{tLANE}
    v_add_u32 v11, s34, v11
    v_lshlrev_b32 v10, 2, v10
    v_sub_u32 v11, v11, v10
    s_mov_b32 s{sC}, {f2u(CSC):#x}
    s_mov_b32 s{sC+1}, {f2u(CSC):#x}
    s_mov_b32 {sN}, s71
    s_mov_b32 {sCNT}, 0
    s_mov_b32 {sMP}, 0""")
    dummy_addr(e, sRF)
    for kt in range(2):
        for r in range(4): e(f'v_cmp_le_i32 {sp(mreg[4*kt+r])}, {16*kt+r}, v11')
    PLOAD = f's_lshl_b32 s31, {sHD}, 11\ns_add_u32 s31, s31, {F_P3}\nv_bfe_u32 v{tPOLL}, v{tLANE}, 1, 4\nv_lshlrev_b32 v{tPOLL}, 7, v{tPOLL}\nv_and_or_b32 v{tPOLL}, v{tL4}, 4, v{tPOLL}\nbuffer_load_dword v{tPOLL}, v{tPOLL}, {WS}, s31 offen sc1'
    def ptest(sit):
        return (f's_and_b32 s30, {sit}, 63\nv_cmp_ge_u32 vcc, s30, v{tPOLL}\ns_lshr_b32 s30, {sit}, 6\ns_lshl_b32 s30, 0x15151515, s30\n'
                f's_and_b32 s31, vcc_lo, s30\ns_cmp_eq_u32 s31, 0')
    def mload(sit): return f's_lshr_b32 s31, {sit}, 6\ns_lshl_b32 s31, s31, 5\ns_add_u32 s31, s31, {sHD}\ns_lshl_b32 s31, s31, 7\ns_add_u32 s31, s31, {F_R}\nbuffer_load_dword v14, off, {WS}, s31 sc1'
    def mtest(sit): return f's_and_b32 s30, {sit}, 63\nv_cmp_ge_u32 vcc, s30, v14\ns_cmp_eq_u64 vcc, 0'
    def base(sit, off): return f's_lshl_b32 {sG}, {sit}, 18\ns_lshl_b32 {sL}, {sHD}, 13\ns_add_u32 {sG}, {sG}, {sL}\ns_add_u32 {sG}, {sG}, {off}\n'
    def mdma(sit, voff):
        return [lambda: e(base(sit, OFF_MM) + f's_mov_b32 {sL}, {sML}')] + dma_steps(e, sG, sL, 6, voff, cfg.AMF)
    def dma(sit, voff):
        out = [lambda: e(base(sit, OFF_KF) + f's_and_b32 {sL}, {sL}, 8192')]
        for x in range(3):
            if x: out.append(lambda: e(f's_add_u32 {sG}, {sG}, {32*MB-4096}\ns_add_u32 {sL}, {sL}, {16384-4096}'))
            out += dma_steps(e, sG, sL, 8, voff, cfg.ADF if x < 2 else cfg.AMF)
        return out
    def ROWF():
        t = f'buffer_store_dword v11, off, {WS}, {sRF}'
        return 'v_mov_b32 v11, s100\n' + (loc_store(t) if cfg.LOC else t + ' sc1')
    QF, KM, KB, S, VM, VF = 40, 56, 72, 112, 124, 140
    LD, O = 72, 40
    OB, PK, ST, ACC = 40, 104, 112, 128
    Y2, Y, RES, TMP = 160, 172, 184, 190
    L_D = L_M + 12288
    e(f'v_add_u32 v{R.ly}, {L_D+64-L_O}, v{R.ly}\ns_lshl_b32 s33, {sW}, 2\ns_add_u32 s33, s33, {L_D}\nv_mov_b32 v{vMD}, s33\nv_mov_b32 v15, {L_D}')
    sITA, sIT3, sPEND = 's14', 's15', 's19'
    piece_setup(e, 0, 8192)
    def att(h):
        def H(n):
            if n in h: h[n]()
        tq = [e.ds(f'ds_read_b128 {vr(QF+4*k)}, v{vQ} offset:{32768+k*2048}') for k in range(4)]
        tk = [e.ds(f'ds_read_b128 {vr(KB+4*j)}, v{vKV} offset:{j*1024}') for j in range(8)]
        H('start')
        for k in range(4):
            for t in range(2):
                e.wds(tk[2*k+t]); a = vr(S+4*t)
                e(f'{MF} {a}, {vr(KB+8*k+4*t)}, {vr(QF+4*k)}, {a if k else 0}')
                e.ds(f'ds_read_b128 {vr(VF+4*(2*k+t))}, v{vKV} offset:{16384+(2*k+t)*1024}')
        H('mid')
        MX, TT, SM = 6, 7, TMP
        e(f'v_mov_b32 v7, {NEG:#x}')
        for j in range(8): e(f'v_cndmask_b32 v{S+j}, v7, v{S+j}, {sp(mreg[j])}')
        e(f'v_max3_f32 v{MX}, v{S}, v{S+1}, v{S+2}\nv_max3_f32 v{MX}, v{MX}, v{S+3}, v{S+4}\nv_max3_f32 v{MX}, v{MX}, v{S+5}, v{S+6}\nv_max_f32 v{MX}, v{MX}, v{S+7}')
        H('mm')
        tkm = [e.ds(f'ds_read_b128 {vr(KM+4*k)}, v{vKM} offset:{4096+k*512}') for k in range(4)]
        tvm = [e.ds(f'ds_read_b128 {vr(VM+4*k)}, v{vVM} offset:{k*1024}') for k in range(4)]
        H('early')
        for k in range(4):
            e.wds(tkm[k]); e(f'{MF} {vr(S+8)}, {vr(KM+4*k)}, {vr(QF+4*k)}, {vr(S+8) if k else 0}')
        H('p1')
        e(f'v_max3_f32 v{MX}, v{MX}, v{S+8}, v{S+9}\nv_max3_f32 v{MX}, v{MX}, v{S+10}, v{S+11}')
        xlane(e, 'v_max_f32', MX, TT)
        e(f'v_mul_f32 v{MX}, s{sC}, v{MX}')
        for r in range(0, 12, 2): e(f'v_pk_fma_f32 {vr(S+r,2)}, {vr(S+r,2)}, {sp(sC)}, {vr(MX,2)} op_sel_hi:[1,1,0] neg_lo:[0,0,1] neg_hi:[0,0,1]')
        for r in range(12): e(f'v_exp_f32 v{S+r}, v{S+r}')
        e(f'v_pk_add_f32 {vr(SM,2)}, {vr(S+8,2)}, {vr(S+10,2)}\nv_pk_fma_f32 {vr(SM,2)}, {vr(SM,2)}, 0.5, {vr(S,2)} op_sel_hi:[1,0,1]')
        for r in range(2, 8, 2): e(f'v_pk_add_f32 {vr(SM,2)}, {vr(SM,2)}, {vr(S+r,2)}')
        e(f'v_add_f32 v{SM}, v{SM}, v{SM+1}')
        xlane(e, 'v_add_f32', SM, TT)
        e(f'v_rcp_f32 v{SM}, v{SM}')
        H('p2a')
        for r in range(0, 12, 2): e(f'v_pk_mul_f32 {vr(S+r,2)}, {vr(S+r,2)}, {vr(SM,2)} op_sel_hi:[1,0]')
        PX, PM = S, S+4
        for r in range(6): e(f'v_cvt_pk_bf16_f32 v{PX+r}, v{S+2*r}, v{S+2*r+1}')
        H('p2')
        e.wds(tvm[3])
        def oc(f, hh):
            for r in (2*hh, 2*hh+1): e(f'v_cvt_pk_bf16_f32 v{VF+8*f+r}, v{O+8*f+r}, v{O+8*f+4+r}')
        def ow(f): e.ds(f'ds_write_b128 v{vOW}, {vr(VF+8*f)} offset:{L_O+f*1024}')
        q = [x for f in range(4) for x in ((oc, f, 0), (oc, f, 1), (ow, f))]
        for f in range(4):
            for t in (2*f, 2*f+1): e(f'{MF} {vr(O+4*t)}, {vr(VF+4*t)}, {vr(PX)}, 0')
            H('drip')
            for t in (2*f, 2*f+1): e(f'{MF16} {vr(O+4*t)}, {vr(VM+2*t,2)}, {vr(PM,2)}, {vr(O+4*t)}')
            H('drip')
            if f >= 2:
                for _ in range(3): x = q.pop(0); x[0](*x[1:])
        for x in q:
            x[0](*x[1:])
            if x[0] is ow: H('drip')
    def odd(f, track=True):
        l = e.lab('A_'); n0 = (e.vmn, e.vmdone)
        e(f's_bitcmp1_b32 {sW}, 0\ns_cbranch_scc0 {l}'); f(); e.label(l)
        e.vmn, e.vmdone = n0
    def blocking_att(code):
        def f():
            h1 = e.lab('A_'); h2 = e.lab('A_')
            e(f's_cmp_eq_u32 {sPRE}, 1\ns_cbranch_scc1 {h1}')
            poll(e, cfg, PLOAD, ptest(sITA), code)
            for x in dma(sITA, tL16): x()
            e.vm0(); e.label(h1)
        odd(f)
        e('s_barrier')
        def g():
            h2 = e.lab('A_')
            e(f's_cmp_eq_u32 {sMP}, 1\ns_cbranch_scc1 {h2}')
            poll(e, cfg, mload(sITA), mtest(sITA), code+1)
            for x in mdma(sITA, tL16): x()
            e.vm0(); e.label(h2)
        att({'mm': lambda: (odd(g), e('s_barrier')), 'p1': lambda: odd(lambda: e(PLOAD))})
        e.vm0()
        e.ds0(); e(f's_barrier\ns_mov_b32 {sPEND}, 0')
    def resl():
        l1 = e.lab('A_'); l2 = e.lab('A_')
        e(f's_and_b32 s33, {sIT}, 63\ns_lshl_b32 s33, s33, 5\ns_add_u32 s33, s33, {R.sROW}\ns_mul_i32 s33, s33, 1280\ns_cmp_lt_u32 {sIT}, 64\ns_cbranch_scc1 {l1}\ns_add_u32 s33, s33, {OFF_X2}')
        n0 = e.vmn; res_load(e, R, WS, 's33', RES); e.vmn = n0
        e(f's_branch {l2}'); e.label(l1)
        res_load(e, R, 's[20:23]', 's33', RES); e.label(l2)
    def fin_addr():
        e(ring_slot(sCNT, 's17', 's16') + f's_mov_b32 s100, {sCNT}\ns_lshl_b32 s16, s17, 5\ns_add_u32 s16, s16, {R.sROW}\ns_lshl_b32 {sRF}, s16, 7\ns_add_u32 {sRF}, {sRF}, {F_XN1}\ns_mul_i32 s16, s16, 1280\ns_add_u32 s16, s16, {OFF_X1}\ns_mul_i32 s17, s17, {ITEM}\ns_add_u32 s17, s17, {OFF_XN1}')
    RING_LD = f'buffer_load_dword v11, v{tL4}, {WS}, {R.sFP} offen offset:{2048+3*256} sc1'
    def ring_wait(tok):
        lp = e.lab('rw'); ok = e.lab('rw')
        test = f'v_add_u32 v11, 3, v11\nv_cmp_gt_u32 vcc, {sCNT}, v11'
        e.wvm(tok); e(test + f'\ns_mov_b32 s28, 0\ns_cbranch_vccnz {lp}'); e.label(ok)
        e.cold.append(f'{lp}:\n{RING_LD}\ns_waitcnt vmcnt(0)\n{test}\ns_cbranch_vccz {ok}\ns_add_u32 s28, s28, 1\ns_cmp_lt_u32 s28, {cfg.SPIN}\ns_cbranch_scc1 {lp}\ns_mov_b32 s29, 28\ns_branch L_abort')
    def RFL():
        if not cfg.ARL: return
        l = e.lab('A_'); e(f's_bitcmp1_b32 {sW}, 0\ns_cbranch_scc1 {l}\ns_cmp_eq_u32 {sPEND}, 1\ns_cbranch_scc0 {l}\n' + ROWF()); e.label(l)
    def fin(em):
        reduce_gather(em, R, Y2, Y)
        finish_row(em, R, Y, RES, TMP, True, (WS, 's16', 'loc' if cfg.LOC else 'sc1'), 's17', 's18', Y2)
    e(f'v_mov_b32 v11, 1\nds_write_b32 v{vMD}, v11\nds_write_b32 v{vMD}, v11 offset:16\ns_mov_b32 {sPRE}, 0')
    if cfg.DRY:
        order_item(e, sN, sIT3)
        e(f's_sub_u32 {sN}, {sN}, {cfg.NGA}\ns_mov_b32 {sITA}, 128\ns_mov_b32 {sPRE}, 1\ns_mov_b32 {sMP}, 1')
    else:
        order_item(e, sN, sITA)
        e(f's_add_u32 s32, {sN}, {cfg.NGA}'); order_item(e, 's32', sIT3)
    e('s_branch L_Ablock')
    top, join = 'L_Atop', 'L_Ajoin'
    e.label(top); e.unknown()
    prof(e, cfg, 0)
    def oread(k): return e.ds(f'ds_read_b128 {vr(OB+4*k)}, v0 offset:{L_O+k*512}')
    oread.tok = {k: oread(k) for k in range(4)}
    e(f's_mov_b32 {sIT}, {sITA}\ns_mov_b32 {sITA}, {sIT3}\ns_add_u32 {sN}, {sN}, {cfg.NGA}\ns_add_u32 {sCNT}, {sCNT}, 1')
    e(f's_bitcmp1_b32 {sW}, 0\ns_cbranch_scc1 L_Ab2\ns_cmp_eq_u32 {sPEND}, 1\ns_cbranch_scc1 L_Ab1')
    st0 = (e.vmn, e.vmdone, e.lgn, e.lgdone)
    def back(kind):
        fill = {}; tm = {}; r = None; aft = None
        at(fill, 32, lambda: prof(e, cfg, 1))
        at(fill, 9, lambda: (e(f's_add_u32 s32, {sN}, {cfg.NGA}'), order_item(e, 's32', sIT3)))
        if kind == 1:
            at(fill, 1, lambda: e('s_waitcnt vmcnt(0)'))
            r = Rec(); fin(r)
            def aft(last):
                p = min(last + cfg.ARD, 79)
                if not cfg.ARL: at(fill, p, lambda: (e.wvm(r.tok['last']), e.vm(ROWF())))
            at(fill, cfg.ARES, resl)
        if kind == 0: at(fill, 7, resl)
        if kind == 2:
            e(ptest(sITA) + gate(sPRE, tDMA, sITA))
            q = dma(sITA, tDMA)
            for j, f in enumerate(q): at(fill, int(cfg.AB1+cfg.ABS*j), f)
            p = int(cfg.AB1+cfg.ABS*len(q))
            at(fill, p-cfg.AML, lambda: tm.update(m=e.vm(mload(sITA))))
            at(fill, p, lambda: (e.wvm(tm['m']), e(mtest(sITA) + gate(sMP, 14, sITA))))
            q = mdma(sITA, 14)
            for j, f in enumerate(q): at(fill, int(p+1+cfg.ABS*j), f)
            p = int(p+1+cfg.ABS*len(q))
            at(fill, p, lambda: tm.update(t=e.vm(PLOAD)))
            at(fill, p+1, lambda: (e(f's_and_b32 s30, {sPRE}, {sMP}\nv_mov_b32 v11, s30'), e.ds(f'ds_write_b32 v{vMD}, v11')))
        slot_free(e, cfg, R, fill, cfg.ASF, (cfg.AS0 or 37)+2, 27)
        out_proj(e, R, lambda c,k: wname(wo(c,k)), 16, OB, oread, ACC, PK, ST, fill, cfg.AS0, r, aft, cfg.ABUD)
        if kind == 2: e.wvm(tm['t'])
    for k_ in range(3):
        if k_: e.label(f'L_Ab{k_}'); e.vmn, e.vmdone, e.lgn, e.lgdone = st0
        back(k_)
        if k_ < 2: e(f's_branch {join}')
    e.label(join)
    e.vmdone = e.vmn - 1
    prof(e, cfg, 2)
    tt = decide(e, 15, 40, lambda: out_tail1(e, R, ACC, PK))
    e(f'v_xor_b32 v15, 16, v15\nv_xor_b32 v{vMD}, 16, v{vMD}')
    seq = e.lab('A_')
    e(f's_cbranch_scc0 {seq}')
    if cfg.CRIT & 1: e(f's_cmp_lt_u32 {sIT}, 64\ns_cbranch_scc1 {seq}')
    st = (e.vmn, e.vmdone, e.lgn, e.lgdone)
    prof(e, cfg, 3)
    k = {}
    att({'start': lambda: k.update(ts=out_tail2(e, R, PK, tt)),
         cfg.AH[0]: lambda: (e.wvm(k['ts']), publish(e, R, sCNT), RFL(), fin_addr()),
         cfg.AH[1]: lambda: k.update(r=e.vm(RING_LD), g=e.vm(grp_load(R))),
         'p2': lambda: (prof(e, cfg, 4), ring_wait(k['r']), grp_wait(e, cfg, R, sCNT, 23, k['g']), prof(e, cfg, 5), k.update(t={}), k.update(q=rs_steps(e, R, LD, k['t']))),
         'drip': lambda: k['q'].pop(0)()})
    assert not k['q']
    prof(e, cfg, 6)
    rs_sum(e, R, k['t'], LD, Y)
    e.ds0(); e(f's_barrier\ns_mov_b32 {sPEND}, 1')
    prof(e, cfg, 7); prof_flush(e, cfg, 8, sPF)
    e(f's_branch {top}')
    e.label(seq); e.vmn, e.vmdone, e.lgn, e.lgdone = st
    for i in (3, 4): prof(e, cfg, i)
    e.wvm(out_tail2(e, R, PK, tt)); publish(e, R, sCNT); RFL(); fin_addr()
    if cfg.GDLY: e(f's_sleep {cfg.GDLY}')
    tr_ = e.vm(RING_LD)
    grp_wait(e, cfg, R, sCNT, 25); ring_wait(tr_)
    for i in (5, 6): prof(e, cfg, i)
    t_ = rs_loads(e, R, LD)
    rs_sum(e, R, t_, LD, Y)
    e.ds0()
    skip = e.lab('A_')
    e(f's_barrier\ns_bitcmp1_b32 {sW}, 0\ns_cbranch_scc1 {skip}')
    e.vm0(); fin(e); e.vm0(); e(ROWF())
    e.label(skip)
    prof(e, cfg, 7); prof_flush(e, cfg, 8, sPF)
    e(f's_cmp_ge_u32 {sITA}, 128\ns_cbranch_scc1 L_wb')
    e.label('L_Ablock'); e.unknown()
    blocking_att(26)
    e(f's_branch {top}')
    flush_cold(e); e.unknown()

def role_F(e, cfg):
    NGF = 6 - cfg.NGA
    R = Red(); R.L_T = 65536; L_H = 40960; R.L_Y = 49152
    sN, sIT, sIT2, sCNT, sPRE, sG, sL, sPF = ['s%d' % i for i in range(62, 70)]
    sNL = 's80'
    w1 = lambda k: w80(k)
    w2 = lambda c, k: w80(40+8*c+k)
    e.label('L_roleF')
    tok_setup(e)
    srd(e, 12, P_W1); srd(e, 16, P_W2); srd(e, 96, P_OUT)
    now = e.lab('f'); now2 = e.lab('f')
    e(f's_cmp_lt_u32 s70, 14\ns_cbranch_scc1 {now}')
    e.vm0(); arrive(e); e(f's_branch {now2}')
    e.label(now)
    wl = WL(e, tLANE, 0, 4096*cfg.NSL, 24, 40, cfg.NSL)
    e(f's_lshl_b32 s33, s70, 8'); s1 = wl.src(16, 3456, 's33', False)
    wl.cols32('s[12:15]', s1, 10, w1, 18, False, first=lambda: arrive(e))
    e(f's_mul_i32 s62, s70, {128*1280}')
    wl.rows32('s[16:19]', 's62', 4, w2, 16)
    e.label(now2)
    sync_start(e, cfg)
    R.row = 96; R.single = cfg.SINGLE; R.sCNT = sCNT
    red_setup(e, R, 100, 14); row_setup(e, R, R.sROW); order_setup(e, mk_order(cfg.D, cfg.RAT))
    pf_base(e, sPF)
    e(f's_sub_u32 {sN}, {R.sG}, {cfg.NGA}')
    vHW, vD, vDW, vXA = 16, 17, 18, 20
    x_setup(e, vXA); l128_setup(e)
    L_D = 57344
    sRF, sITA, sPEND = 's82', 's14', 's19'
    e(f's_mov_b32 {sNL}, {f2u(-math.log2(math.e)):#x}\ns_mov_b32 s81, {sNL}\ns_mov_b32 {sCNT}, 0\ns_lshl_b32 s33, {sW}, 11\nv_add_u32 v{vHW}, s33, v{tL16}')
    e(f's_lshl_b32 s33, {sW}, 2\ns_add_u32 s33, s33, {L_D}\nv_mov_b32 v{vDW}, s33\nv_mov_b32 v{vD}, {L_D}')
    XB = [40+4*i for i in range(8)]; FA, HF, LD = 72, 88, 120
    OB, PK, ST, ACC = 40, 72, 80, 120
    Y2, Y, RES, TMP = 160, 172, 184, 190
    ROWFLAG = f'v_mov_b32 v11, 1\nbuffer_store_dword v11, off, {WS}, {sRF} sc1'
    def xpoll(d): return f's_add_u32 s83, {sCNT}, {d}\n' + ring_slot('s83', 's31', 's30') + f's_lshl_b32 s31, s31, 12\ns_add_u32 s31, s31, {F_XN1}\n' + row_flags_load('s31')
    XTEST = f'v_cmp_gt_u32 vcc, s83, v{tPOLL}\ns_cmp_eq_u32 vcc_lo, 0'
    def dma(sit, voff):
        return [lambda: e(f's_add_u32 s30, {sCNT}, 1\n' + ring_slot('s30', sG, sL) + f's_lshr_b32 {sL}, {sW}, 1\ns_mul_i32 {sL}, {sL}, 20480\ns_mul_i32 {sG}, {sG}, {ITEM}\ns_add_u32 {sG}, {sG}, {sL}\ns_add_u32 {sG}, {sG}, {OFF_XN1}')] + dma_steps(e, sG, sL, 20, voff)
    def odd(f):
        l = e.lab('f'); n0 = (e.vmn, e.vmdone)
        e(f's_bitcmp1_b32 {sW}, 0\ns_cbranch_scc0 {l}'); f(); e.label(l)
        e.vmn, e.vmdone = n0
    def resl():
        e(ring_slot(sCNT, 's30', 's31') + f's_lshl_b32 s30, s30, 5\ns_add_u32 s30, s30, {R.sROW}\ns_mul_i32 s30, s30, 1280\ns_add_u32 s30, s30, {OFF_X1}')
        res_load(e, R, WS, 's30', RES)
        e(f"""s_and_b32 s17, {sIT}, 63
        s_cmp_ge_u32 {sIT}, 128
        s_cselect_b32 s17, 64, s17
        s_lshl_b32 s16, s17, 5
        s_add_u32 s16, s16, {R.sROW}
        s_lshl_b32 {sRF}, s16, 7
        s_add_u32 {sRF}, {sRF}, {F_XN+64*4096}
        s_cmp_ge_u32 {sIT}, 128
        s_cselect_b32 {sRF}, s84, {sRF}
        s_mul_i32 s16, s16, 1280
        s_add_u32 s15, s16, {OFF_X2}
        s_mul_i32 s17, s17, {ITEM}
        s_add_u32 s17, s17, {OFF_XN+64*ITEM}
        s_bfe_u32 s13, {sIT}, 0x10006""")
    def fin(em, layer):
        reduce_gather(em, R, Y2, Y)
        if layer == 0: finish_row(em, R, Y, RES, TMP, True, (WS, 's15', 'sc1'), 's17', 's18', Y2)
        else: finish_row(em, R, Y, RES, TMP, True, ('s[96:99]', 's16', ''), None, None, Y2)
    def fin_now():
        skip = e.lab('f'); last = e.lab('f')
        e(f's_bitcmp1_b32 {sW}, 0\ns_cbranch_scc1 {skip}\ns_waitcnt vmcnt(0)\ns_cmp_eq_u32 s13, 1\ns_cbranch_scc1 {last}')
        fin(e, 0); e.vm0(); e(ROWFLAG + f'\ns_branch {skip}')
        e.label(last); fin(e, 1)
        e.label(skip)
    def front(h):
        xs = Stream(e, XB, [xfrag(e, k, vXA) for k in range(40)]); xs.prime()
        if 'start' in h: h['start']()
        a = vr(FA, 16)
        for k in range(40):
            e(f'{MF32} {a}, {wname(w1(k))}, {xs.get(k)}, {a if k else 0}')
            xs.issue()
            if 'drip' in h: h['drip']()
            if k in h: h[k]()
            if k == 2: e(f's_add_u32 s32, {sN}, {NGF}'); order_item(e, 's32', sIT2)
            if k == 39: tp = e.vm(xpoll(2))
        T = 40
        for r in range(0, 16, 2): e(f'v_pk_mul_f32 {vr(T+r,2)}, {vr(FA+r,2)}, s[80:81]')
        for r in range(16): e(f'v_exp_f32 v{T+r}, v{T+r}')
        for r in range(0, 16, 2): e(f'v_pk_add_f32 {vr(T+r,2)}, {vr(T+r,2)}, 1.0 op_sel_hi:[1,0]')
        for r in range(16): e(f'v_rcp_f32 v{T+r}, v{T+r}')
        for r in range(0, 16, 2): e(f'v_pk_mul_f32 {vr(FA+r,2)}, {vr(FA+r,2)}, {vr(T+r,2)}')
        for u in range(2):
            for r in range(4): e(f'v_cvt_pk_bf16_f32 v{HF+4*u+r}, v{FA+8*u+2*r}, v{FA+8*u+2*r+1}')
            e.ds(f'ds_write_b128 v{vHW}, {vr(HF+4*u)} offset:{L_H+u*1024}')
        if 'end' in h: h['end']()
        odd(lambda: (e.wvm(tp), e(XTEST + gate(sPRE, tDMA, sIT2) + f'\nv_mov_b32 v11, {sPRE}\nds_write_b32 v{vDW}, v11')))
        e.ds0(); e('s_barrier')
    order_item(e, sN, sITA); dummy_addr(e, 's84')
    e(f'v_mov_b32 v11, 1\nds_write_b32 v{vDW}, v11\nds_write_b32 v{vDW}, v11 offset:16\ns_mov_b32 {sPRE}, 0')
    if cfg.DRY: e(f's_sub_u32 {sN}, {sN}, {NGF}\ns_mov_b32 {sITA}, 128\ns_mov_b32 {sPRE}, 1')
    top, join, rtop = 'L_Ftop', 'L_Fjoin', 'L_Frtop'
    e(f's_cmp_lt_u32 {R.sM}, 14\ns_cbranch_scc1 L_Fblock')
    e.label(rtop)
    e(f's_mov_b32 {sIT}, {sITA}\ns_add_u32 {sCNT}, {sCNT}, 1')
    publish(e, R, sCNT)
    grp_wait(e, cfg, R, sCNT, 33)
    resl(); t_ = rs_loads(e, R, LD)
    rs_sum(e, R, t_, LD, Y)
    e.ds0(); e('s_barrier'); fin_now()
    e(f's_barrier\ns_add_u32 {sN}, {sN}, {NGF}'); order_item(e, sN, sITA)
    e(f's_cmp_lt_u32 {sN}, 128\ns_cbranch_scc1 {rtop}\ns_endpgm')
    e.label(top); e.unknown()
    prof(e, cfg, 0)
    def oread(k): return e.ds(f'ds_read_b128 {vr(OB+4*k)}, v{tL16} offset:{L_H+k*1024}')
    oread.tok = {k: oread(k) for k in range(4)}
    e(f's_mov_b32 {sIT}, {sITA}\ns_mov_b32 {sITA}, {sIT2}\ns_add_u32 {sN}, {sN}, {NGF}\ns_add_u32 {sCNT}, {sCNT}, 1')
    def RFL():
        l = e.lab('f'); e(f's_cmp_eq_u32 {sPEND}, 1\ns_cbranch_scc0 {l}\n' + ROWFLAG); e.label(l)
    e(f's_cmp_eq_u32 {sPEND}, 1\ns_cbranch_scc1 L_Fb1\ns_cmp_eq_u32 {sPEND}, 2\ns_cbranch_scc1 L_Fb2\ns_bitcmp1_b32 {sW}, 0\ns_cbranch_scc1 L_Fb3')
    st0 = (e.vmn, e.vmdone, e.lgn, e.lgdone)
    def back(kind):
        fill = {}; tm = {}; r = None
        if kind == 3:
            q = dma(sITA, tDMA)
            for j, f in enumerate(q): at(fill, int(cfg.FD0+cfg.FDS*j), f)
            at(fill, int(cfg.FD0+cfg.FDS*len(q)), lambda: tm.update(t=e.vmn))
        elif kind:
            at(fill, 0, lambda: e('s_waitcnt vmcnt(0)'))
            r = Rec(cfg.FSC); fin(r, kind-1)
        slot_free(e, cfg, R, fill, cfg.FSF, 23, 35)
        out_proj(e, R, lambda c,k: wname(w2(c,k)), 8, OB, oread, ACC, PK, ST, fill, None, r, None, cfg.FBUD)
        if kind == 3: e.wvm(tm['t'])
    for k_ in range(4):
        if k_: e.label(f'L_Fb{k_}'); e.vmn, e.vmdone, e.lgn, e.lgdone = st0
        back(k_)
        if k_ < 3: e(f's_branch {join}')
    e.label(join)
    e.vmdone = e.vmn - 1
    prof(e, cfg, 1)
    PKT = 24
    tt = decide(e, vD, 40, lambda: out_tail1(e, R, ACC, PKT))
    e(f'v_xor_b32 v{vD}, 16, v{vD}\nv_xor_b32 v{vDW}, 16, v{vDW}')
    seq = e.lab('f')
    e(f's_cbranch_scc0 {seq}')
    if cfg.CRIT & 2: e(f's_cmp_lt_u32 {sIT}, 64\ns_cbranch_scc1 {seq}')
    st = (e.vmn, e.vmdone, e.lgn, e.lgdone)
    prof(e, cfg, 2)
    k = {}
    front({'start': lambda: k.update(ts=out_tail2(e, R, PKT, tt)),
           cfg.FH[0]: lambda: (e.wvm(k['ts']), publish(e, R, sCNT), RFL(), resl()), cfg.FH[1]: lambda: k.update(g=e.vm(grp_load(R))),
           cfg.FH[2]: lambda: (prof(e, cfg, 3), grp_wait(e, cfg, R, sCNT, 31, k['g']), prof(e, cfg, 4), k.update(t={}), k.update(q=rs_steps(e, R, LD, k['t'], 's34', 's35'))),
           'drip': lambda: k.get('q') and k['q'].pop(0)(),
           'end': lambda: ([f() for f in k['q']], prof(e, cfg, 5), rs_sum(e, R, k['t'], LD, Y))})
    e(f's_add_u32 {sPEND}, s13, 1\ns_bitcmp1_b32 {sW}, 0\ns_cselect_b32 {sPEND}, 0, {sPEND}')
    prof(e, cfg, 6); prof_flush(e, cfg, 7, sPF)
    e(f's_branch {top}')
    e.label(seq); e.vmn, e.vmdone, e.lgn, e.lgdone = st
    prof(e, cfg, 2)
    e.wvm(out_tail2(e, R, PKT, tt)); publish(e, R, sCNT); RFL()
    if cfg.GDLY: e(f's_sleep {cfg.GDLY}')
    prof(e, cfg, 3)
    grp_wait(e, cfg, R, sCNT, 34)
    prof(e, cfg, 4)
    resl(); t_ = rs_loads(e, R, LD)
    rs_sum(e, R, t_, LD, Y)
    e.ds0(); e('s_barrier')
    prof(e, cfg, 5)
    fin_now()
    prof(e, cfg, 6); prof_flush(e, cfg, 7, sPF)
    e(f's_cmp_ge_u32 {sITA}, 128\ns_cbranch_scc1 L_end')
    e.label('L_Fblock'); e.unknown()
    def fetch():
        got = e.lab('f')
        e(f's_cmp_eq_u32 {sPRE}, 1\ns_cbranch_scc1 {got}')
        poll(e, cfg, xpoll(1), XTEST, 32)
        for f in dma(sITA, tL16): f()
        e.vm0(); e.label(got)
    odd(fetch)
    e('s_barrier')
    front({}); e(f's_mov_b32 {sPEND}, 0\ns_branch {top}')
    flush_cold(e); e.unknown()

def role_LN(e, cfg):
    R = Red(); R.L_T = 0; R.L_Y = 0; R.row = 96
    e.label('L_roleLN')
    tok_setup(e)
    e.vm0(); arrive(e)
    e('s_mov_b32 s70, 0\ns_mov_b32 s71, 0')
    red_setup(e, R, 100, 14)
    srd(e, 20, P_X)
    e(f's_lshl_b32 s62, {sH}, 2\ns_add_u32 s62, s62, {sW}\ns_and_b32 s34, s62, 31\ns_mul_i32 s30, s62, 1280')
    row_setup(e, R, 's34')
    for k in range(16):
        res_load(e, R, 's[20:23]', 's30', 128+6*k); e(f's_add_u32 s30, s30, {128*1280}')
    sync_start(e, cfg)
    e(f's_lshr_b32 s31, s62, 5\ns_mul_i32 s31, s31, {ITEM}\ns_add_u32 s31, s31, {OFF_XN}\ns_lshl_b32 s32, s62, 7\ns_add_u32 s32, s32, {F_XN}\nv_mov_b32 v11, 1')
    prev = None
    for k in range(16):
        finish_row(e, R, 40+16*(k & 1), 128+6*k, 52+16*(k & 1), False, None, 's31')
        e(f's_add_u32 s31, s31, {4*ITEM}')
        if k:
            e.wvm(prev); e.vm(f'buffer_store_dword v11, off, {WS}, s32 sc1'); e(f's_add_u32 s32, s32, {4*4096}')
            prev = e.vmn - 1
        else: prev = e.vmn
    e.vm0(); e(f'buffer_store_dword v11, off, {WS}, s32 sc1\ns_branch L_roleR')
    e.unknown()

def build(**kw):
    cfg = C()
    cfg.D = 14; cfg.A = 26; cfg.NGA = 3; cfg.KVF = 'sc1'
    cfg.CH = ['S0 S20 S41','S2 S27 S48','S4 S34 S55','L9 L13 L17 L21 L25 L29 L33 L37 L42 L46 L50 L54 L58 L60 L64 L68 L72 L75 L78']
    cfg.PP = ['top','ag','qkv','sm','wo0','wo1','rs0','rs1']; cfg.SPAD = 256; cfg.SHARE = 0; cfg.REP = 1; cfg.MS = 1; cfg.VE = 0; cfg.BA = 7; cfg.EARLY = 0; cfg.WB = 0; cfg.WSF = ''; cfg.LPROF = 0; cfg.DRIP = 0; cfg.VDEF = 0; cfg.CRIT = 0; cfg.LOC = 1; cfg.STF = 'sc1'; cfg.NOMM = 0; cfg.NOFL = 0; cfg.PFL = 0; cfg.MMF = 'sc1'; cfg.PMID = 23; cfg.PPOLL = 19; cfg.RAT = 1.0; cfg.PRAT = 1.0; cfg.DRY = 1; cfg.KLATE = 0; cfg.VDB = 0; cfg.FRL = 2; cfg.WPK = 1; cfg.FLAG = 6; cfg.RACK = 1; cfg.RDLY = 0; cfg.AACK = 0; cfg.ADLY = 0
    cfg.SPIN = 1 << 19; cfg.PROF = 0; cfg.FORCE = 0; cfg.PSLEEP = 1
    cfg.RFREE = 0; cfg.NOSTREAM = 0; cfg.NOKV = 0; cfg.ONLYR = 0; cfg.CPF = 0; cfg.NSL = 3; cfg.RNSL = 3; cfg.PAIR = 1; cfg.ADF = 'sc1'; cfg.AMF = 'sc1 nt'; cfg.FH = [9, 21, 28]; cfg.FD0 = 0; cfg.FDS = 1; cfg.FSC = True; cfg.FCH = 6; cfg.AP0 = 40; cfg.AP1 = 84; cfg.ARF = 62; cfg.ONEP = 1; cfg.ARD = 18; cfg.ABUD = 24; cfg.FBUD = 32; cfg.GDLY = 3; cfg.SINGLE = 1; cfg.ASF = 20; cfg.FSF = 8; cfg.AH = ['mm', 'p1']; cfg.AB1 = 0; cfg.AML = 22; cfg.ARES = 26; cfg.ARL = 0; cfg.ABS = 1.4; cfg.AD1 = 8; cfg.AS0 = 48; cfg.AM0 = 80; cfg.AM1 = 118; cfg.NOPRE = 0; cfg.ADMA0 = 10; cfg.ADMAS = 2
    for k, v in kw.items(): setattr(cfg, k, v)
    assert cfg.PAIR and cfg.NGA == 3 and cfg.SINGLE
    e = E(); e.cold = COLD; COLD.clear(); Red.onepass = cfg.ONEP; WL.PROF = cfg.PROF; WL.WSF = cfg.WSF
    e(f"""s_cmp_ge_u32 s2, 256
    s_cbranch_scc1 L_end
    s_load_dwordx16 s[36:51], s[0:1], 0
    s_load_dwordx8 s[52:59], s[0:1], 64
    s_load_dwordx2 s[60:61], s[0:1], 96
    s_getreg_b32 s3, hwreg(HW_REG_XCC_ID, 0, 4)
    {'s_memrealtime s[100:101]' if cfg.PROF or cfg.LPROF else ''}
    v_lshrrev_b32 v1, 6, v0""")
    if cfg.CPF:
        e('s_getpc_b64 s[30:31]'); e.label('L_pc')
        e('v_lshlrev_b32 v2, 7, v0\ns_mov_b32 s32, L_codeend-L_pc-4')
        for j in range(4):
            e(f'v_min_u32 v3, s32, v2\nglobal_load_dword v{252+j}, v3, s[30:31]\nv_add_u32 v2, 32768, v2')
    e(f's_waitcnt lgkmcnt(0)\nv_readfirstlane_b32 {sW}, v1')
    srd(e, 4, P_WS); srd(e, 8, P_DBG)
    e(f"""s_cmp_ge_u32 s2, {OFF_AG >> 12}
    s_cselect_b32 s30, -1, 0
    v_mov_b32 v4, s30
    v_mov_b32 v5, s30
    v_mov_b32 v6, s30
    v_mov_b32 v7, s30
    v_lshlrev_b32 v2, 4, v0
    s_lshl_b32 s31, s2, 12
    s_and_b32 s3, s3, 7
    buffer_store_dwordx4 v[4:7], v2, {WS}, s31 offen sc1
    v_mov_b64 v[8:9], 0
    v_mov_b64 v[10:11], 0
    s_add_u32 s31, s31, {MB}
    buffer_store_dwordx4 v[8:11], v2, {WS}, s31 offen sc1
    s_mov_b32 {sGRP}, s3
    s_lshr_b32 {sH}, s2, 3
    s_mov_b32 {sMODE}, 0
L_dispatch:
    s_cmp_eq_u32 {sGRP}, 0
    s_cbranch_scc1 L_roleR
    s_cmp_eq_u32 {sGRP}, 1
    s_cbranch_scc1 L_roleLN""")
    if cfg.ONLYR: e.vm0(); arrive(e); e('s_endpgm')
    e(f"""s_cmp_eq_u32 {sGRP}, 2
    s_cbranch_scc1 L_roleK
    s_cmp_eq_u32 {sGRP}, 3
    s_cbranch_scc1 L_roleV
    s_cmp_eq_u32 {sGRP}, 4
    s_cbranch_scc1 L_roleQ""")
    group_ids(e, cfg.PAIR)
    e(f"""s_cmp_lt_u32 s71, {cfg.NGA}
    s_cbranch_scc1 L_roleA
    s_branch L_roleF
L_rank:
    v_and_b32 v1, 63, v0
    v_lshlrev_b32 v1, 2, v1
    buffer_load_dword v2, v1, {DBG}, 0 offen sc1
    s_mov_b32 {sH}, 0
    s_mov_b32 s31, 0
    s_waitcnt vmcnt(0)""")
    for b in range(4):
        e(f'v_bfe_u32 v{4+b}, v2, {8*b}, 3\nv_add_u32 v3, {b}, v1\nv_cmp_gt_u32 s[32:33], s2, v3\nv_cmp_eq_u32 vcc, s3, v{4+b}\ns_and_b64 vcc, vcc, s[32:33]\ns_bcnt1_i32_b64 s30, vcc\ns_add_u32 {sH}, {sH}, s30')
    for x in range(8):
        e('s_mov_b32 s34, 0')
        for b in range(4): e(f'v_cmp_eq_u32 vcc, {x}, v{4+b}\ns_bcnt1_i32_b64 s30, vcc\ns_add_u32 s34, s34, s30')
        e('s_xor_b32 s34, s34, 32\ns_or_b32 s31, s31, s34')
    if cfg.FORCE == 2: e('s_mov_b32 s31, 1')
    e(f"""s_mov_b32 {sMODE}, 1
    s_cmp_eq_u32 s31, 0
    s_cbranch_scc1 L_dispatch
    s_mov_b32 {sMODE}, 2
    s_lshr_b32 {sGRP}, s2, 5
    s_and_b32 {sH}, s2, 31
    s_branch L_dispatch
L_abort:
    s_lshl_b32 s30, {sGRP}, 16
    s_lshl_b32 s31, {sH}, 8
    s_or_b32 s29, s29, s30
    s_or_b32 s29, s29, s31
    v_mov_b32 v1, s29
    s_lshl_b32 s30, {sGRP}, 2
    s_add_u32 s30, s30, {F_ABORT}
    buffer_store_dword v1, off, {WS}, s30
L_end:
    s_endpgm
L_wb:""")
    if cfg.WB: e(f's_and_b32 s30, {sH}, 15\ns_or_b32 s30, s30, {sW}\ns_cmp_lg_u32 s30, 0\ns_cbranch_scc1 L_end\ns_waitcnt vmcnt(0)\nbuffer_wbl2 sc1\ns_waitcnt vmcnt(0)')
    e('s_endpgm')
    role_R(e, cfg); role_LN(e, cfg); role_F(e, cfg)
    for nm in 'KVQ': role_P(e, cfg, nm)
    role_A(e, cfg)
    e.label('L_codeend'); e('s_endpgm')
    head = open('cdna_kernels/'+NAME[:-7]+'.s.ref').read().split('; Override')[0] if cfg.__dict__.get('HEAD', 1) else ''
    return head + f"""; @launch grid=(256,1,1) block=(256,1,1) lds=163840
.amdgcn_target "amdgcn-amd-amdhsa--gfx950"
.text
.globl {NAME}
.p2align 8
.type {NAME},@function
{NAME}:
""" + e.text() + f""".section .rodata,"a"
.p2align 6
.amdhsa_kernel {NAME}
  .amdhsa_next_free_vgpr 512
  .amdhsa_next_free_sgpr 102
  .amdhsa_accum_offset 256
  .amdhsa_group_segment_fixed_size 0
  .amdhsa_kernarg_size 104
  .amdhsa_user_sgpr_count 2
  .amdhsa_user_sgpr_kernarg_segment_ptr 1
  .amdhsa_system_sgpr_workgroup_id_x 1
.end_amdhsa_kernel
"""

if __name__ == '__main__':
    kw = {}
    out = 'cdna_kernels/'+NAME[:-7]+'.s'
    for a in sys.argv[1:]:
        k, v = a.split('=', 1)
        if k == 'out': out = v
        else:
            try: kw[k] = eval(v)
            except Exception: kw[k] = v
    t = build(**kw)
    open(out, 'w').write(t)
    print(out, len(t), 'bytes', t.count('\n'), 'lines')
```

```python
import sys, struct, math
sys.path.insert(0, 'gen')
from emit import *

NAME = 'interleave_layers__memory_aug_recurrent_mem_tr__dense_activation_silu__prompt_kernel'
MB = 1 << 20
class C: pass
COLD = []
def f2u(x): return struct.unpack('<I', struct.pack('<f', x))[0]

F_P3, F_R, F_PS, F_XN, F_XN1, F_ABORT, F_DUMMY = 0xC0000, 16384, 8192, 1*MB, 1*MB+512*1024, 0xF000, 0xC000
OFF_AG, OFF_RSR = 0xD0000, 0x20000
AGS = 16384
OFF_XN, OFF_XN1, OFF_X1, OFF_X2, OFF_WSR, OFF_RSP = 3*MB, 9*MB, 15*MB, 21*MB, 24*MB, 34*MB
OFF_KF, OFF_VF, OFF_QF, OFF_MM, OFF_PROF = 64*MB, 96*MB, 128*MB, 160*MB, 200*MB
ITEM = 40960
RSP_ROW = 16*1280
RSP_SLOT = 32*RSP_ROW
WS='s[4:7]'; DBG='s[8:11]'
P_X,P_MEM,P_WQ,P_WK,P_WV,P_WO,P_W1,P_W2,P_OUT,P_DBG,P_WS = 0,1,2,3,4,5,8,9,10,11,12
SZ = {P_X:2048*1280, P_MEM:8*1280, P_WQ:640*8192, P_WK:640*8192, P_WV:640*8192, P_WO:4096*1280,
      P_W1:640*3456, P_W2:1728*1280, P_OUT:2048*1280, P_DBG:256, P_WS:256*MB}
sH, sW, sMODE, sGRP = 's24','s25','s26','s27'
MF = 'v_mfma_f32_16x16x32_bf16'
MF16 = 'v_mfma_f32_16x16x16_bf16'
SMF = 'v_smfmac_f32_16x16x64_bf16'
MF32 = 'v_mfma_f32_32x32x16_bf16'
CSC = (128 ** -0.5) * math.log2(math.e)
OOB = 0x40000000
NEG = 0xf149f2ca

def srd(e, base, p):
    e(f's_mov_b32 s{base}, s{36+2*p}\ns_mov_b32 s{base+1}, s{37+2*p}\ns_mov_b32 s{base+2}, {SZ[p]}\ns_mov_b32 s{base+3}, 0x20000')
def mask64(e, s, val):
    e(f's_mov_b32 s{s}, {val & 0xffffffff:#x}\ns_mov_b32 s{s+1}, {val >> 32:#x}')
def lanemask(fn): return sum(1 << l for l in range(64) if fn(l))
def sp(s): return f's[{s}:{s+1}]'

def spin_tail(e, cfg, loop, code, cnt='s28'):
    e(f's_add_u32 {cnt}, {cnt}, 1\ns_cmp_lt_u32 {cnt}, {cfg.SPIN}\ns_cbranch_scc1 {loop}\ns_mov_b32 s29, {code}\ns_branch L_abort')

def arrive(e):
    l = e.lab('ar')
    e(f's_barrier\ns_cmp_lg_u32 {sW}, 0\ns_cbranch_scc1 {l}\ns_or_b32 s33, s3, 0x80\nv_mov_b32 v7, s33\ns_mov_b64 exec, 1\nbuffer_store_byte v7, off, {DBG}, s2 sc1\ns_mov_b64 exec, -1')
    e.label(l)

STD = ((8, 16), list(range(8)))
class WL:
    PROF = 0; WSF = ''; NOPROC = 0; LF = ''
    def __init__(s, e, lane, lbase, piece, land, tmp, nsl=3):
        s.e=e; s.lane=lane; s.lbase=lbase; s.piece=piece; s.land=land; s.tmp=tmp; s.nsl=nsl; s.nland=2
    def f(s, row): return (row & 15)*256 + (row >> 4)*s.piece
    def src(s, v, stride, sbase, gather):
        e = s.e; L = s.lane
        e(f'v_lshrrev_b32 v{v}, 4, v{L}\ns_lshl_b32 s30, {sW}, 4\nv_add_u32 v{v}, s30, v{v}\nv_mul_u32_u24 v{v}, {stride}, v{v}')
        if gather: e(f'v_bfe_u32 v{s.tmp}, v{L}, 2, 2\nv_mul_u32_u24 v{s.tmp}, 320, v{s.tmp}\nv_add_u32 v{v}, v{v}, v{s.tmp}\nv_and_b32 v{s.tmp}, 3, v{L}')
        else: e(f'v_and_b32 v{s.tmp}, 15, v{L}')
        e(f'v_lshl_add_u32 v{v}, v{s.tmp}, 4, v{v}\nv_add_u32 v{v}, {sbase}, v{v}')
        return (v, stride)
    def rows(s, v, mapping):
        e = s.e; L = s.lane; g, offs = mapping
        e(f"""v_bfe_u32 v{v}, v{L}, 4, 1
        v_mul_u32_u24 v{v}, {s.f(g[0])}, v{v}
        v_bfe_u32 v{v+1}, v{L}, 5, 1
        v_mul_u32_u24 v{v+1}, {s.f(g[1])}, v{v+1}
        v_add_u32 v{v}, v{v}, v{v+1}
        v_and_b32 v{v+1}, 15, v{L}
        v_lshl_add_u32 v{v}, v{v+1}, 2, v{v}
        s_lshl_b32 s30, {sW}, 6
        s_add_u32 s30, s30, {s.lbase}
        v_add_u32 v{v}, s30, v{v}
        v_add_u32 v{v+1}, {2*s.piece}, v{v}""")
        return (v, offs)
    def run(s, slabs, first=None, hook=None):
        e = s.e
        e(f's_mov_b32 s31, 0x05040100\ns_mov_b32 s32, 0x07060302\ns_mul_i32 s34, {sW}, {s.piece}\ns_add_u32 s34, s34, {s.lbase}')
        tok = {}
        def issue(p):
            sr, (v, stride), so, _, _ = slabs[p]
            for j in range(4):
                e(f's_add_u32 m0, s34, {(p % s.nsl)*4096 + j*1024}\ns_mov_b32 s30, {so + 4*j*stride}')
                tok[p] = e.vm(f'buffer_load_dwordx4 v{v}, {sr}, s30 offen {WL.LF} lds')
        for p in range(min(s.nsl-1, len(slabs))): issue(p)
        for p in range(len(slabs)):
            e.wvm(tok[p])
            if WL.PROF and p % (len(slabs)//5) == 0: e(f's_memrealtime s[{80+2*(p//(len(slabs)//5))}:{81+2*(p//(len(slabs)//5))}]')
            if p == 0 and first: first()
            else: e('s_barrier')
            if p + s.nsl - 1 < len(slabs): issue(p + s.nsl - 1)
            if WL.NOPROC == 1: continue
            v, offs = slabs[p][3]
            rt = {}
            def rd(c):
                for jj in range(4):
                    o = [(s.f(offs[2*jj+x]) + (p % s.nsl)*4096)//256 for x in range(2)]
                    assert max(o) < 256
                    rt[c] = e.ds(f'ds_read2st64_b32 {vr(s.land+8*(c % s.nland)+2*jj,2)}, v{v+c} offset0:{o[0]} offset1:{o[1]}')
            for c in range(s.nland): rd(c)
            if hook and p in hook: hook[p]()
            for c in range(2):
                if c not in rt: rd(c)
                e.wds(rt[c]); b = s.land + 8*(c % s.nland)
                for t in range(2):
                    d = slabs[p][4][c][t]
                    o = d[1] if d[0] == 'v' else s.tmp + 4*t
                    for jj in range(4): e(f'v_perm_b32 v{o+jj}, v{b+2*jj+1}, v{b+2*jj}, s{31+t}')
                for t in range(2):
                    d = slabs[p][4][c][t]; o = s.tmp + 4*t
                    if d[0] == 'a':
                        for jj in range(4 if WL.NOPROC != 3 else 0): e(f'v_accvgpr_write_b32 a{d[1]+jj}, v{o+jj}')
                    elif d[0] == 'lds': e.ds(f'ds_write_b128 v{d[1]}, {vr(o)} offset:{d[2]}')
                    elif d[0] == 'ws' and WL.NOPROC != 2:
                        e(f's_add_u32 s33, {d[2]}, {d[3]}')
                        e.vm(f'buffer_store_dwordx4 {vr(o)}, v{d[1]}, {WS}, s33 offen {WL.WSF}')
        e.vm0(); e.ds0(); e('s_barrier')
    def lanes32(s, v, vtype, rowbytes, wavebytes):
        e = s.e; L = s.lane
        if vtype: e(f'v_and_b32 v{v}, 15, v{L}\nv_bfe_u32 v{v+1}, v{L}, 4, 1\nv_lshl_add_u32 v{v}, v{v}, 1, v{v+1}')
        else: e(f'v_and_b32 v{v}, 19, v{L}\nv_bfe_u32 v{v+1}, v{L}, 2, 1\nv_lshl_add_u32 v{v}, v{v+1}, 3, v{v}\nv_bfe_u32 v{v+1}, v{L}, 3, 1\nv_lshl_add_u32 v{v}, v{v+1}, 2, v{v}')
        e(f"""v_and_b32 v{v+1}, 1, v{v}
        v_mul_u32_u24 v{v+1}, 0x0202, v{v+1}
        v_mul_u32_u24 v{v+1}, 0x10001, v{v+1}
        v_add_u32 v{v+1}, 0x05040100, v{v+1}
        v_lshrrev_b32 v{v}, 1, v{v}
        v_lshlrev_b32 v{v}, 2, v{v}
        v_lshrrev_b32 v{s.tmp}, 5, v{L}
        v_mul_u32_u24 v{s.tmp}, {8*rowbytes}, v{s.tmp}
        v_add_u32 v{v}, v{v}, v{s.tmp}
        s_mul_i32 s30, {sW}, {wavebytes}
        v_add_u32 v{v}, s30, v{v}""")
    def frags32(s, jobs, vsel):
        e = s.e; rt = {}
        def rd(k):
            va, o = jobs[k][0]()
            for jj in range(4): rt[k] = e.ds(f'ds_read2st64_b32 {vr(s.land+8*(k%2)+2*jj,2)}, v{va} offset0:{o[2*jj]} offset1:{o[2*jj+1]}')
        rd(0); rd(1)
        for k in range(len(jobs)):
            e.wds(rt[k]); b = s.land + 8*(k % 2); d = jobs[k][1]
            o = d[1] if d[0] == 'v' else s.tmp
            for jj in range(4): e(f'v_perm_b32 v{o+jj}, v{b+2*jj+1}, v{b+2*jj}, v{vsel}')
            if k + 2 < len(jobs): rd(k + 2)
            if d[0] == 'a':
                for jj in range(4): e(f'v_accvgpr_write_b32 a{d[1]+jj}, v{o+jj}')
    def cols32(s, sr, src, nslab, dst, va, vtype, first=None):
        e = s.e; v, stride = src
        s.lanes32(va, vtype, 256, 64)
        e(f's_mul_i32 s34, {sW}, {s.piece}')
        tok = {}
        def issue(p):
            for j in range(4):
                e(f's_add_u32 m0, s34, {(p % s.nsl)*4096 + j*1024}\ns_mov_b32 s30, {(64*p + 4*j)*stride}')
                tok[p] = e.vm(f'buffer_load_dwordx4 v{v}, {sr}, s30 offen lds')
        for p in range(s.nsl-1): issue(p)
        for p in range(nslab):
            e.wvm(tok[p])
            if p == 0 and first: first()
            else: e('s_barrier')
            if p + s.nsl - 1 < nslab: issue(p + s.nsl - 1)
            s.frags32([((lambda q=q: (va, [(q*s.piece + (p % s.nsl)*4096)//256 + j for j in range(8)])), dst(4*p+q)) for q in range(4)], va+1)
        e.vm0(); e.ds0(); e('s_barrier')
    def rows32(s, sr, sbase, nk, dst, va, first=None):
        e = s.e; L = s.lane
        s.lanes32(va, False, 1280, 320)
        e(f'v_lshlrev_b32 v{va+2}, 4, v{L}\ns_mul_i32 s34, {sW}, 10240\ns_add_u32 s35, s34, {sbase}')
        tok = {}
        def issue(p):
            for j in range(10):
                if j % 4 == 0: e(f's_add_u32 m0, s34, {(p % 3)*40960 + j*1024}\ns_add_u32 s30, s35, {p*40960 + j*1024}')
                tok[p] = e.vm(f'buffer_load_dwordx4 v{va+2}, {sr}, s30 offen offset:{(j%4)*1024} lds')
        for p in range(2): issue(p)
        for p in range(nk):
            e.wvm(tok[p])
            if p == 0 and first: first()
            else: e('s_barrier')
            if p + 2 < nk: issue(p + 2)
            def addr(c, q):
                if q == 0: e(f'v_add_u32 v{va+3}, {(p % 3)*40960 + c*64}, v{va}')
                return (va+3, [80*q + 5*j for j in range(8)])
            s.frags32([((lambda c=c, q=q: addr(c, q)), dst(c, 2*p+q)) for c in range(5) for q in range(2)], va+1)
        e.vm0(); e.ds0(); e('s_barrier')

def sync_start(e, cfg, a=12):
    lp = e.lab('sy'); ok = e.lab('sy'); done = e.lab('sy')
    e(f's_mov_b32 s28, 0\nv_and_b32 v{a}, 63, v0\nv_lshlrev_b32 v{a}, 2, v{a}\ns_mov_b32 s30, 0x80808080')
    e.label(lp)
    e(f'buffer_load_dword v{a+1}, v{a}, {DBG}, 0 offen sc1\ns_waitcnt vmcnt(0)\nv_and_b32 v{a+2}, s30, v{a+1}\nv_cmp_ne_u32 vcc, s30, v{a+2}\ns_cbranch_vccz {ok}\ns_sleep 2')
    spin_tail(e, cfg, lp, 1)
    e.label(ok)
    e(f's_cmp_lg_u32 {sMODE}, 0\ns_cbranch_scc1 {done}\nv_mov_b32 v{a+3}, 0')
    for b in range(4): e(f'v_bfe_u32 v{a+2}, v{a+1}, {8*b}, 3\nv_lshlrev_b32 v{a+2}, v{a+2}, 1\nv_or_b32 v{a+3}, v{a+3}, v{a+2}')
    e(f'v_mov_b32 v{a+2}, v{a+3} quad_perm:[1,0,3,2] row_mask:0xf bank_mask:0xf\nv_or_b32 v{a+3}, v{a+3}, v{a+2}\nv_cmp_ne_u32 vcc, 0xff, v{a+3}')
    if cfg.FORCE: e('s_branch L_rank')
    e(f's_cbranch_vccnz L_rank\ns_mov_b32 {sMODE}, 1')
    e.label(done)
    if cfg.PROF:
        pf_base(e, 's32')
        e(f's_memrealtime s[30:31]\ns_add_u32 s32, s32, {127*64}\ns_waitcnt lgkmcnt(0)\nv_mov_b32 v{a}, s100\nv_mov_b32 v{a+1}, s30\nbuffer_store_dwordx2 {vr(a,2)}, off, {WS}, s32\ns_waitcnt vmcnt(0)')
        for i in range(5): e(f'v_mov_b32 v{a}, s{80+2*i}\nbuffer_store_dword v{a}, off, {WS}, s32 offset:{8+4*i}')
        e('s_waitcnt vmcnt(0)')
    e.unknown()

def two_modes(e, name, body):
    e(f's_cmp_eq_u32 {sMODE}, 1\ns_cbranch_scc0 L_{name}_slow')
    body('', name + 'f'); e.unknown()
    e.label(f'L_{name}_slow')
    body('sc1', name + 's'); e.unknown()

class Stream:
    def __init__(s, e, bufs, loads, n=4):
        s.e=e; s.bufs=bufs; s.loads=loads; s.next=0; s.tok={}; s.n=n
    def issue(s):
        if s.next < len(s.loads):
            k=s.next; s.tok[k]=s.loads[k](s.bufs[k % len(s.bufs)]); s.next+=1
    def prime(s, n=None):
        for _ in range(len(s.bufs) if n is None else n): s.issue()
    def get(s, k):
        t = s.tok[k]
        if t is not None: (s.e.wds if t[0]=='ds' else s.e.wvm)(t[1])
        return vr(s.bufs[k % len(s.bufs)], s.n)

def xlane(e, op, v, t):
    for sw in ('v_permlane32_swap_b32', 'v_permlane16_swap_b32'):
        e(f'v_mov_b32 v{t}, v{v}\n{sw} v{v}, v{t}\n{op} v{v}, v{v}, v{t}')
def mk_sel(e, d, lane16, t, smask):
    e(f'v_and_b32 v{t}, 16, v{lane16}\nv_mov_b32 v{d}, 0x3f80\nv_lshlrev_b32 v{t}, v{t}, v{d}')
    for jj in range(4): e(f'v_cndmask_b32 v{d+jj}, 0, v{t}, {sp(smask+2*jj)}')
def sel_masks(e, smask, fn):
    for jj in range(4): mask64(e, smask+2*jj, lanemask(lambda l: fn(l) == jj))

EVON = [0]
def ev(stage, sit, idx):
    if not EVON[0]: return ''
    return (f'\ns_memrealtime s[46:47]\ns_lshl_b32 s48, {sit}, 5\ns_add_u32 s48, s48, {idx}\ns_lshl_b32 s48, s48, 2\ns_add_u32 s48, s48, {OFF_PROF + 16*MB + stage*32768}\n'
            f's_waitcnt lgkmcnt(0)\nv_mov_b32 v{EVREG[0]}, s46\nbuffer_store_dword v{EVREG[0]}, off, {WS}, s48')
EVREG = [7]
def dummy_addr(e, d):
    e(f's_lshl_b32 {d}, {sGRP}, 5\ns_add_u32 {d}, {d}, {sH}\ns_lshl_b32 {d}, {d}, 2\ns_add_u32 {d}, {d}, {sW}\ns_lshl_b32 {d}, {d}, 2\ns_add_u32 {d}, {d}, {F_DUMMY}')
def pf_base(e, s):
    e(f's_lshl_b32 {s}, {sGRP}, 5\ns_add_u32 {s}, {s}, {sH}\ns_lshl_b32 {s}, {s}, 2\ns_add_u32 {s}, {s}, {sW}\ns_lshl_b32 {s}, {s}, 13\ns_add_u32 {s}, {s}, {OFF_PROF}')
def prof(e, cfg, idx):
    if cfg.PROF: e(f's_memtime s[{36+2*idx}:{37+2*idx}]')
def prof_flush(e, cfg, n, sbase, va=6, vd=7):
    if not cfg.PROF: return
    e('s_memrealtime s[58:59]\ns_waitcnt lgkmcnt(0)'); e.lgdone = e.lgn
    for i in range(n): e(f'v_writelane_b32 v{vd}, s{36+2*i}, {i}')
    e(f'v_writelane_b32 v{vd}, s58, 15\nv_mbcnt_lo_u32_b32 v{va}, -1, 0\nv_lshlrev_b32 v{va}, 2, v{va}\ns_mov_b64 exec, 0xffff')
    e.vm(f'buffer_store_dword v{vd}, v{va}, {WS}, {sbase} offen')
    e(f's_mov_b64 exec, -1\ns_add_u32 {sbase}, {sbase}, 64')

def unpk(line):
    import re
    m = re.match(r'v_pk_(add|mul|fma)_f32 (.*)', line)
    if not m: return [line]
    body = m.group(2); hi = None
    if ' op_sel_hi:' in body:
        body, h = body.split(' op_sel_hi:'); hi = eval(h.split()[0])
    ops = [int(re.match(r'v\[(\d+):', o.strip()).group(1)) for o in body.split(',')]
    hi = hi or [1]*(len(ops)-1)
    return [f'v_{m.group(1)}_f32 ' + ', '.join(f'v{r + (k if (i == 0 or hi[i-1]) else 0)}' for i, r in enumerate(ops)) for k in (0, 1)]
class Rec:
    def __init__(s, scalar=True): s.ops = []; s.n = 0; s.scalar = scalar
    def __call__(s, t):
        for l in t.split('\n'):
            if l.strip():
                for x in (unpk(l.strip()) if s.scalar else [l.strip()]): s.ops.append(('i', x))
    def vm(s, t): s.n += 1; s.ops.append(('vm', t, s.n)); return s.n
    def ds(s, t): s.n += 1; s.ops.append(('ds', t, s.n)); return s.n
    def wds(s, k): s.ops.append(('wds', k))
    def wvm(s, k): s.ops.append(('wvm', k))
    def chunks(s, e, size=2):
        m = {}; s.tok = m
        def play(ops):
            def f():
                for o in ops:
                    if o[0] == 'i': e(o[1])
                    elif o[0] == 'vm': m[o[2]] = e.vm(o[1]); m['last'] = m[o[2]]
                    elif o[0] == 'ds': m[o[2]] = e.ds(o[1])
                    elif o[0] == 'wds': e.wds(m[o[1]])
                    else: e.wvm(m[o[1]])
            return f
        out = []; cur = []; atomic = False
        for o in s.ops:
            if o[0] == 'i' and o[1].startswith('s_mov_b32 exec_hi, 0'): atomic = True
            cur.append(o)
            if o[0] == 'i' and o[1].startswith('s_mov_b32 exec_hi, -1'): atomic = False
            dep = o[0] == 'i' and ('row_ror' in o[1] or 'permlane' in o[1] or o[1].startswith('v_mov_b32') or o[1].startswith('v_rsq'))
            if not atomic and (len(cur) >= size or dep or o[0] == 'vm'): out.append(play(cur)); cur = []
        if cur: out.append(play(cur))
        return out

def op_cost(o, prev):
    if o[0] == 'vm': return 22 if 'store' in o[1] else 8
    if o[0] == 'ds': return 16 if 'write_b128' in o[1] else 4
    if o[0] != 'i': return 4
    t = o[1]
    c = 8 if ('permlane' in t or t.split()[0] in TRANS) else 4
    if not Red.onepass and prev and ('row_ror' in t or 'permlane' in t) and prev[0] == 'i' and prev[1].startswith('v_') and 'permlane' not in prev[1]: c += 8
    return c
def spread(e, rec, fill, cost, p0, budget):
    m = {}; rec.tok = m
    def play(ops):
        def f():
            for o in ops:
                if o[0] == 'i': e(o[1])
                elif o[0] == 'vm': m[o[2]] = e.vm(o[1]); m['last'] = m[o[2]]
                elif o[0] == 'ds': m[o[2]] = e.ds(o[1])
                elif o[0] == 'wds': e.wds(m[o[1]])
                else: e.wvm(m[o[1]])
        return f
    p = p0; cur = []; used = cost.get(p, 0); atomic = False
    for o in rec.ops:
        c = op_cost(o, cur[-1] if cur else None)
        while not atomic and used + c > budget and (cur or used):
            if cur: at(fill, p, play(cur))
            cur = []; p += 1; used = cost.get(p, 0); c = op_cost(o, None)
        if o[0] == 'wds' and len(m) == 0 and cur and cur[-1][0] == 'ds':
            at(fill, p, play(cur)); cur = []; p += 4; used = cost.get(p, 0)
        if o[0] == 'i' and o[1].startswith('s_mov_b32 exec_hi, 0'): atomic = True
        cur.append(o); used += c
        if o[0] == 'i' and o[1].startswith('s_mov_b32 exec_hi, -1'): atomic = False
    at(fill, p, play(cur))
    return p

def run(fill, i):
    for f in fill.pop(i, []): f()
def drain(fill):
    for i in sorted(fill):
        for f in fill[i]: f()
    fill.clear()
def at(fill, i, f): fill.setdefault(i, []).append(f)

def role_R(e, cfg):
    vL16, vIDX, vW, vSW, vSR, vPW, vPX, vPM, vRS, vAG = 0, 1, 2, 3, 4, 5, 8, 9, 10, 11
    SELT, KX, VX, P, WV = 12, 16, 24, 32, 96
    VXN = VX
    if cfg.VDB: VXN = 96; WV = 104
    NB = 4
    XB = [P+8*i for i in range(NB)]; MBUF = [P+32, P+36]; ACC = P+48; VA = [P+40, P+44]
    L_O, L_W = 6144, 8192; sVM = 's23'
    SROW = 176; SWV = 8*SROW; NLMAX = 19; mVAL = 94
    cls = ['r']*80
    top2 = cfg.CH[2].startswith('!'); cfg.CH = [c.lstrip('!') for c in cfg.CH]; NWR = 2 if top2 else 3
    chain = [[int(x[1:]) for x in c.split()] for c in cfg.CH]
    for c in cfg.CH:
        for x in c.split(): assert cls[int(x[1:])] == 'r'; cls[int(x[1:])] = x[0].lower()
    loc = {}; nr=nl=ns=0; ext = []
    for n in range(80):
        if cls[n]=='r': loc[n] = ('a',8*nr) if nr < 32 else ('v', WV+8*(nr-32)); nr+=1
        elif cls[n]=='l': loc[n]=('l',nl); nl+=1; ext.append(n)
        else: loc[n]=('s',ns); ns+=1; ext.append(n)
    assert nr <= (51 if cfg.VDB else 52) and nl <= NLMAX, (nr, nl, ns)
    bufof = {n: j for j in range(NB) for n in chain[j]}

    NS = ns
    sT, sPAR, sAGR, sAGW, sAG0, sWSR, sRSS, sRSL, sU, sMM, sKV, sN, sFL, sFR, sPF, sAGL = ['s%d' % i for i in range(62, 78)]
    sC = 78; mLO, mM, mHI, mSEL = 80, 82, 92, 84
    e.label('L_roleR')
    e('v_and_b32 v1, 63, v0')
    wl = WL(e, 1, L_W, NLMAX*2048, 16, 32, cfg.RNSL)
    HOLD = 40; NH = 2*cfg.RNSL
    if cfg.RNSL == 4: wl.land, wl.tmp, wl.nland, HOLD = 14, 22, 1, 30
    e(f's_lshl_b32 s33, {sH}, 8'); sq = wl.src(8, 8192, 's33', False)
    e(f's_mul_i32 s33, {sH}, {128*1280}'); so = wl.src(9, 1280, 's33', False)
    rq = wl.rows(10, ((1, 16), [0,2,8,10,4,6,12,14]) if cfg.MS else ((2, 1), [0,4,16,20,8,12,24,28])); ro = wl.rows(12, ((4, 16), [0,1,8,9,2,3,10,11]))
    srd(e,12,P_WQ); srd(e,16,P_WK); srd(e,20,P_WV); srd(e,96,P_WO)
    e(f"""v_lshlrev_b32 v6, 4, v1
    s_mul_i32 s33, {sW}, {NLMAX*2048}
    s_add_u32 s33, s33, {L_W}
    v_add_u32 v{vW}, s33, v6
    s_lshl_b32 {sWSR}, {sGRP}, 5
    s_add_u32 {sWSR}, {sWSR}, {sH}
    s_lshr_b32 {sWSR}, {sWSR}, {cfg.SHARE}
    s_lshl_b32 {sWSR}, {sWSR}, 2
    s_add_u32 {sWSR}, {sWSR}, {sW}
    s_mul_i32 {sWSR}, {sWSR}, {NS*2048}
    s_add_u32 {sWSR}, {sWSR}, {OFF_WSR}""")
    def dst(n, c):
        k, i = loc[n]
        if k in 'av': return (k, i+4*c)
        if k == 'l': return ('lds', vW, i*2048+c*1024) if i >= NH else ('v', HOLD+8*i+4*c)
        return ('ws', 6, sWSR, i*2048+c*1024)
    slabs = []
    for B in range(10):
        for x, sr in enumerate(('s[12:15]', 's[16:19]', 's[20:23]')):
            slabs.append((sr, sq, B*64*8192, rq, [(dst(6*B+2*x, c), dst(6*B+2*x+1, c)) for c in range(2)]))
    for k in range(2):
        for c5 in range(5): slabs.append(('s[96:99]', so, k*64*1280 + c5*256, ro, [(dst(60+4*c5+2*k, c), dst(61+4*c5+2*k, c)) for c in range(2)]))
    def warm():
        e(f's_getpc_b64 s[84:85]'); e.label('L_Rpc')
        e(f's_add_u32 s84, s84, L_Rsetup-L_Rpc\ns_addc_u32 s85, s85, 0\nv_lshlrev_b32 v7, 6, v0\nv_min_u32 v7, L_R_slow-L_Rsetup, v7')
        e.vm('global_load_dword v3, v7, s[84:85]')
        e(f's_mul_i32 s33, {sGRP}, {40*8192}\ns_mul_i32 s35, {sH}, 10240\ns_add_u32 s33, s33, s35\ns_add_u32 s33, s33, {OFF_RSR}\nv_min_u32 v7, 79, v0\nv_lshlrev_b32 v7, 7, v7')
        e.vm(f'buffer_load_dword v4, v7, {WS}, s33 offen sc1')
    wl.run(slabs, first=lambda: arrive(e), hook={30: warm} if cfg.WARM else None)
    e.label('L_Rsetup')
    for i in range(2*NH): e.ds(f'ds_write_b128 v{vW}, {vr(HOLD+4*i)} offset:{i*1024}')
    e.ds0()
    sync_start(e, cfg)
    srd(e,12,P_MEM)
    e(f's_lshl_b32 {sAGL}, {sW}, 11\ns_add_u32 {sAGL}, {sAGL}, 2048')
    AGM = f"""    v_bfe_u32 v34, v6, 3, 1
    v_lshl_add_u32 v35, v36, 1, v33
    v_lshlrev_b32 v{vAG}, 7, v34
    v_lshl_add_u32 v{vAG}, v35, 4, v{vAG}
    v_lshl_add_u32 v{vAG}, v37, 3, v{vAG}
    s_lshl_b32 s33, {sW}, 3
    s_sub_u32 {sU}, {sH}, s33
    s_and_b32 {sU}, {sU}, 31
    s_lshl_b32 s33, {sW}, 5
    s_add_u32 {sU}, {sU}, s33
    v_mul_u32_u24 v39, 1280, v35
    v_lshl_add_u32 v39, v34, 4, v39
    v_lshl_add_u32 v39, v37, 1, v39
    s_lshl_b32 s33, {sU}, 5
    buffer_load_ushort v40, v39, s[12:15], s33 offen
    buffer_load_ushort v41, v39, s[12:15], s33 offen offset:8
    buffer_load_ushort v42, v39, s[12:15], s33 offen offset:4
    buffer_load_ushort v43, v39, s[12:15], s33 offen offset:12
""" if cfg.MS else f"""    v_lshlrev_b32 v{vAG}, 7, v33
    v_lshl_add_u32 v{vAG}, v38, 6, v{vAG}
    v_lshl_add_u32 v{vAG}, v36, 4, v{vAG}
    v_lshl_add_u32 v{vAG}, v37, 3, v{vAG}
    s_lshl_b32 s33, {sW}, 3
    s_sub_u32 {sU}, {sH}, s33
    s_and_b32 {sU}, {sU}, 31
    s_lshl_b32 s33, {sW}, 5
    s_add_u32 {sU}, {sU}, s33
    v_lshl_add_u32 v39, v38, 2, v36
    v_mul_u32_u24 v39, 1280, v39
    v_lshl_add_u32 v39, v33, 5, v39
    v_lshl_add_u32 v39, v37, 2, v39
    s_lshr_b32 s33, {sU}, 1
    s_lshl_b32 s33, s33, 6
    s_and_b32 s34, {sU}, 1
    s_lshl_b32 s34, s34, 1
    s_add_u32 s33, s33, s34
    buffer_load_ushort v40, v39, s[12:15], s33 offen
    buffer_load_ushort v41, v39, s[12:15], s33 offen offset:16
    buffer_load_ushort v42, v39, s[12:15], s33 offen offset:8
    buffer_load_ushort v43, v39, s[12:15], s33 offen offset:24
"""
    mask64(e, mLO, lanemask(lambda l: (l & 15) < 8))
    mPUB = mM if cfg.MS else mLO
    mask64(e, mHI, lanemask(lambda l: (l & 15) >= 8))
    mask64(e, mM, lanemask(lambda l: l < 32))
    e(f"""v_and_b32 v6, 63, v0
    v_lshlrev_b32 v{vL16}, 4, v6
    v_lshrrev_b32 v7, 4, v6
    v_and_b32 v32, 7, v6
    v_mov_b32 v33, 0x4444
    v_mov_b32 v34, 0xeeee
    v_cndmask_b32 v{vIDX}, v34, v33, {sp(mLO)}
    v_lshlrev_b32 v{vPX}, 7, v7
    v_lshl_add_u32 v{vPX}, v32, 4, v{vPX}
    v_and_b32 v33, 1, v7
    v_and_b32 v34, 8, v6
    v_add_u32 v{vPM}, v34, v{vPX}
    v_lshl_add_u32 v{vPM}, {sW}, 9, v{vPM}
    v_lshl_add_u32 v{vSW}, {sW}, 10, v{vL16}
    v_lshrrev_b32 v{vPW}, 1, v{vSW}
    v_or_b32 v{vSR}, 32, v6
    v_lshlrev_b32 v{vSR}, 3, v{vSR}
    v_and_b32 v36, 3, v6
    v_bfe_u32 v37, v6, 2, 1
    v_lshrrev_b32 v38, 5, v6
    v_lshlrev_b32 v{vRS}, 13, v38
    v_and_b32 v39, 31, v6
    v_lshl_add_u32 v{vRS}, v39, 3, v{vRS}
{AGM}
    s_mul_i32 s33, {sGRP}, {40*8192}
    s_add_u32 s33, s33, {OFF_RSR}
    s_mul_i32 {sRSS}, {sW}, {2*8192}
    s_lshl_b32 s34, {sH}, 8
    s_add_u32 {sRSS}, {sRSS}, s34
    s_add_u32 {sRSS}, {sRSS}, s33
    s_lshl_b32 {sRSL}, {sU}, 13
    s_add_u32 {sRSL}, {sRSL}, s33
    s_lshl_b32 {sKV}, {sGRP}, 24
    s_lshl_b32 s33, {sH}, 13
    s_add_u32 {sKV}, {sKV}, s33
    s_add_u32 {sMM}, {sKV}, {OFF_MM}
    s_lshl_b32 s33, {sW}, 11
    s_add_u32 {sKV}, {sKV}, s33
    s_add_u32 {sKV}, {sKV}, {OFF_KF}
    s_lshl_b32 {sFL}, {sH}, 11
    s_lshl_b32 s33, {sW}, 9
    s_add_u32 {sFL}, {sFL}, s33
    s_lshl_b32 s33, {sGRP}, 2
    s_add_u32 {sFL}, {sFL}, s33
    s_add_u32 {sFL}, {sFL}, {F_P3}
    s_lshl_b32 {sFR}, {sGRP}, 5
    s_add_u32 {sFR}, {sFR}, {sH}
    s_lshl_b32 {sFR}, {sFR}, 7
    s_add_u32 {sFR}, {sFR}, {F_R}
    s_lshl_b32 s33, {sW}, 2
    s_add_u32 {sFR}, {sFR}, s33
    s_mov_b32 s{sC}, {f2u(CSC):#x}
    s_mov_b32 s{sC+1}, {f2u(CSC):#x}
    s_mov_b32 {sT}, 0
    s_mov_b32 {sPAR}, 1
    s_lshl_b32 {sAG0}, {sGRP}, 16
    s_add_u32 {sAG0}, {sAG0}, {OFF_AG}
    s_mov_b32 {sAGR}, {sAG0}
    s_add_u32 {sAGW}, {sAG0}, {AGS}
    s_mov_b32 {sN}, 0
    s_waitcnt vmcnt(0) lgkmcnt(0)
    v_lshl_or_b32 v40, v42, 16, v40
    v_lshl_or_b32 v41, v43, 16, v41
    v_min_u32 v40, -2, v40
    v_min_u32 v41, -2, v41""")
    pf_base(e, sPF)
    for i in range(6): e(f's_add_u32 s{12+i}, {sWSR}, {i*4096}')
    e(f's_lshl_b32 s33, {sW}, 10\ns_add_u32 {sVM}, {sMM}, s33\ns_lshr_b32 s33, s33, 1\ns_add_u32 {sMM}, {sMM}, s33\ns_add_u32 {sMM}, {sMM}, 4096\ns_lshl_b32 s96, {sU}, 8\ns_add_u32 s97, {sAG0}, {3*AGS}\ns_lshl_b32 s99, {sW}, 11\ns_add_u32 s99, s99, 8192\ns_cmp_eq_u32 {sW}, 0\ns_cselect_b32 s99, 0, s99\ns_mul_i32 s99, s99, {cfg.REP}\ns_add_u32 s98, {sRSL}, 4096')
    for c in range(5): e(f's_add_u32 s{18+c}, {sRSS}, {c*65536}')
    sel_masks(e, mSEL, lambda l: (2*((l & 15) >> 3) + ((l & 3) >> 1)) if ((l >> 2) & 1) == ((l >> 4) & 1) else -1)
    mk_sel(e, SELT, vL16, 7, mSEL)
    sel_masks(e, mSEL, lambda l: (l & 15) >> 1)
    sk = e.lab('r')
    e(f's_cmp_ge_u32 {sU}, 40\ns_cbranch_scc1 {sk}\ns_lshl_b32 s33, {sU}, 8\ns_add_u32 s33, s33, {sAGR}\ns_mov_b64 exec, {sp(mPUB)}\nbuffer_store_dwordx2 v[40:41], v{vAG}, {WS}, s33 offen sc1\ns_cmp_ge_u32 {sU}, 8\ns_cbranch_scc1 {sk}')
    for r_ in range(3): e(f's_add_u32 s35, s33, {10240+2048*r_}\nbuffer_store_dwordx2 v[40:41], v{vAG}, {WS}, s35 offen sc1')
    e.label(sk); e('s_mov_b64 exec, -1')

    def flags_read():
        e(f'v_readlane_b32 {sN}, v6, 0\nv_readlane_b32 s29, v6, 8\ns_min_u32 {sN}, {sN}, s29')
    def kv_wait(need, code):
        if cfg.RFREE: return
        lp = e.lab('r'); ok = e.lab('r')
        e(f's_cmp_ge_u32 {sN}, {need}\ns_cbranch_scc1 {ok}\ns_mov_b32 s28, 0'); e.label(lp)
        e(f'v_and_b32 v6, 128, v{vL16}\nbuffer_load_dword v6, v6, {WS}, {sFL} offen sc1\ns_waitcnt vmcnt(0)')
        flags_read()
        e(f's_cmp_ge_u32 {sN}, {need}\ns_cbranch_scc1 {ok}')
        spin_tail(e, cfg, lp, code)
        e.label(ok)
    def kv_load(base, s):
        if cfg.NOKV: return
        for t in range(2): e.vm(f'buffer_load_dwordx4 {vr(base+4*t)}, v{vL16}, {WS}, {s} offen offset:{t*1024} {cfg.KVF}')
    xtok = {}; dripq = []
    def xload(n, drip=False):
        k, i = loc[n]; r = XB[bufof[n]]
        def one(c):
            if k == 'l': xtok[n] = ('ds', e.ds(f'ds_read_b128 {vr(r+4*c)}, v{vW} offset:{i*2048+c*1024}'))
            elif cfg.NOSTREAM: xtok[n] = None
            else: xtok[n] = ('vm', e.vm(f'buffer_load_dwordx4 {vr(r+4*c)}, v{vL16}, {WS}, s{12+i//2} offen offset:{(i%2)*2048+c*1024} {cfg.STF}'))
        for c in range(2):
            if drip and k == 'l': dripq.insert(c, (n, lambda c=c: one(c)))
            elif drip: dripq.append((n, lambda c=c: one(c)))
            else: one(c)
    e('s_mov_b32 s35, 1'); kv_wait('s35', 2)
    kv_load(KX, sKV); e(f's_add_u32 s33, {sKV}, {OFF_VF-OFF_KF}'); kv_load(VX, 's33')
    for j in range(NWR): xload(chain[j][0])
    e.vm0(); e.ds0(); e('s_barrier')

    def body(fl, nm):
        top = f'L_{nm}top'; last = f'L_{nm}last'
        def pp(n):
            if n in cfg.PP: prof(e, cfg, cfg.PP.index(n))
        e.label(top)
        pp('top')
        if cfg.LPROF:
            e(f's_cmp_eq_u32 {sT}, 8\ns_cbranch_scc1 {top}_p'); e.label(top + '_q')
        for j in range(NWR): xtok[chain[j][0]] = None
        lp = e.lab('r'); lq = e.lab('r')
        def agl(g, so): return [f'buffer_load_dwordx4 {vr(g+4*j)}, v{vL16}, {WS}, {so} offen offset:{j*1024} sc1' for j in range(2)]
        def chk(g): return f'v_max3_u32 v6, v{g}, v{g+1}, v{g+2}\nv_max3_u32 v6, v6, v{g+3}, v{g+4}\nv_max3_u32 v6, v6, v{g+5}, v{g+6}\nv_max_u32 v6, v6, v{g+7}\nv_cmp_eq_u32 vcc, -1, v6'
        def retry(l, loads, wait, g, code):
            return f'{l}r:\n' + '\n'.join(loads) + f'\ns_waitcnt vmcnt({wait})\n{chk(g)}\ns_cbranch_vccz {l}\ns_add_u32 s28, s28, 1\ns_cmp_lt_u32 s28, {cfg.SPIN}\ns_cbranch_scc1 {l}r\ns_mov_b32 s29, {code}\ns_branch L_abort'
        GD, GS = MBUF[0], XB[NB-1]
        tg = [e.vm(x) for x in agl(GD, 's32') + agl(GS, 's34')]
        if top2: xload(chain[2][0])
        for r in range(0, 24, 2): e(f'v_mov_b64 {vr(VA[0]+r,2)}, 0')
        e(f'v_lshl_add_u32 v7, {sW}, 11, v{vL16}')
        e.wvm(tg[1]); e(chk(GD) + f'\ns_cbranch_vccnz {lp}r'); e.label(lp)
        cold = [retry(lp, agl(GD, 's32') + agl(GS, 's34'), 0 if top2 else 2, GD, 3), retry(lq, agl(GS, 's34'), 0, GS, 6)]
        cl = chk(GS).split('\n')
        pp('ag')
        held = []
        def smf(acc, a, n, drip=False):
            k, i = loc[n]; n0 = len(e.L)
            if k in 'ls':
                while any(x[0] == n for x in dripq): dripq.pop(0)[1]()
                t = xtok.pop(n)
                if t: (e.wds if t[0] == 'ds' else e.wvm)(t[1])
            w = ar(i, 8) if k == 'a' else vr(i, 8) if k == 'v' else vr(XB[bufof[n]], 8)
            e(f'{SMF} {vr(acc)}, {a}, {w}, v{vIDX}')
            if k in 'ls':
                ch = chain[bufof[n]]; p = ch.index(n)
                if cfg.VE and bufof[n] == 3 and n < 60 <= ch[p+1]: held.append(ch[p+1])
                elif p+1 < len(ch): xload(ch[p+1], drip)
                elif bufof[n] < NWR: xload(ch[0], drip)
        A6 = [ACC, ACC+4, ACC+8, ACC+12, VA[0], VA[1]]
        mtok = {}
        def mread(i): mtok[i] = e.ds(f'ds_read_b128 {vr(MBUF[i % 2])}, v{vL16} offset:{(i-2)*1024}')
        seq = [(B, t) for B in range(10) for t in range(6)]
        late = [x for x in seq if x[0] >= 8 and x[1] >= 4] if cfg.VDEF else []
        seq = [x for x in seq if x not in late]
        for j, (B, t) in enumerate(seq):
            if B >= 2 and t == 0: e.wds(mtok[B])
            smf(A6[t], vr(MBUF[B % 2]), 6*B+t)
            if j == 0: e.wvm(tg[3]); e(cl[0]); e(cl[1])
            if j == 1: e(cl[2]); e(cl[3])
            if j == 2:
                e(cl[4] + f'\ns_cbranch_vccnz {lq}r'); e.label(lq)
                e.ds(f'ds_write_b128 v7, {vr(GS)}')
            if j == 3: tw = e.ds(f'ds_write_b128 v7, {vr(GS+4)} offset:1024'); xload(chain[3][0])
            if B == 8 and t == 2:
                if cfg.SFL: e.ds0(); e(f's_min_u32 s42, s42, s43\ns_max_u32 {sN}, {sN}, s42')
                e('s_barrier')
            if j == cfg.BA: pp('q1'); e.wds(tw); e('s_barrier'); pp('q2'); mread(2)
            if t == 5 and 1 <= B < 8: mread(B+2)
            if t == 5: pp('b%d' % B)
        while dripq: dripq.pop(0)[1]()
        def VL(k):
            for _ in range(k):
                if late: B, t = late.pop(0); smf(A6[t], vr(MBUF[B % 2]), 6*B+t)
        pp('qkv')
        if cfg.EV: e(f's_lshl_b32 s45, {sGRP}, 6\ns_add_u32 s45, s45, {sT}' + ev(0, 's45', sH))
        if cfg.KLATE: tfl = e.vm(f'v_and_b32 v6, 128, v{vL16}\nbuffer_load_dword v6, v6, {WS}, {sFL} offen sc1')
        Q0, Q1, K0, K1 = ACC, ACC+4, ACC+8, ACC+12
        VMF = MBUF[0]
        DP = 'row_mask:0xf bank_mask:0xf'
        for (a, b) in ((Q0, K0), (Q1, K1)):
            e(f'v_cvt_pk_bf16_f32 v{a}, v{a}, v{a+1}\nv_cvt_pk_bf16_f32 v{a+1}, v{a+2}, v{a+3}\nv_cvt_pk_bf16_f32 v{a+2}, v{b}, v{b+1}\nv_cvt_pk_bf16_f32 v{a+3}, v{b+2}, v{b+3}')
        e(f'{MF} {vr(K0)}, {vr(Q0)}, {vr(SELT)}, 0\nv_mov_b32 v7, {sT}\n{MF} {vr(K1)}, {vr(Q1)}, {vr(SELT)}, 0')
        for t in range(2):
            for r in range(2): e(f'v_cvt_pk_bf16_f32 v{VMF+2*t+r}, v{VA[t]+2*r}, v{VA[t]+2*r+1}')
        if not cfg.NOMM & 1: e.vm(f'buffer_store_dwordx4 {vr(VMF)}, v{vL16}, {WS}, {sVM} offen {cfg.MMF}')
        if cfg.FRP < 0 and not cfg.SFR: e.vm(f'buffer_store_dword v7, off, {WS}, {sFR} sc1')
        if cfg.VE:
            for r in range(0, 4, 2): e(f'v_mov_b64 {vr(XB[3]+r,2)}, {vr(VX+r,2)}')
        pp('a2')
        for r in range(4): e(f'v_cvt_pk_bf16_f32 v{Q0+r}, v{K0+r}, v{K1+r}')
        e(f's_add_u32 s35, {sT}, 2\ns_min_u32 s35, s35, 64')
        e(f'{MF} {vr(K0)}, {vr(KX+4)}, {vr(Q0)}, 0\n{MF} {vr(Q1)}, {vr(KX)}, {vr(Q0)}, 0\n{MF} {vr(K1)}, {vr(Q0)}, {vr(Q0)}, 0')
        e(f's_mov_b64 exec, {sp(mHI)}')
        tmm = e.vm(f'buffer_store_dwordx4 {vr(Q0)}, v{vPX}, {WS}, {sMM} offen {cfg.MMF}')
        e(f's_mov_b64 exec, -1\ns_cmp_eq_u32 {sT}, 63\ns_cbranch_scc1 {last}\ns_add_u32 {sKV}, {sKV}, {1<<18}')
        VC = XB[3] if cfg.VE else VX
        pp('a4')
        for r in range(4): e(f'v_mov_b32 v{Q1+r}, v{K0+r} row_shr:8 row_mask:0xf bank_mask:0xc')
        e.ds(f'ds_write_b128 v{vSW}, {vr(Q1)}')
        for r in range(2): e(f'v_mov_b32 v{K1+r}, v{K1+2+r} row_shr:8 row_mask:0xf bank_mask:0xc')
        tw = e.ds(f'ds_write_b64 v{vPW}, {vr(K1,2)} offset:4096')
        pp('a5')
        if cfg.VE:
            for r in range(4, 8, 2): e(f'v_mov_b64 {vr(XB[3]+r,2)}, {vr(VX+r,2)}')
        if not cfg.KLATE: kv_wait('s35', 4); kv_load(KX, sKV)
        e.wds(tw); pp('a7'); e('s_barrier')
        pp('a8')
        S = ACC; M = VA[0]
        tr = []
        for q in range(4):
            e.ds(f'ds_read_b128 {vr(S+4*q)}, v{vL16} offset:{q*1024}')
            tr.append(e.ds(f'ds_read_b64 {vr(M+2*q,2)}, v{vSR} offset:{4096+q*512}'))
        WA = [VA[0], ACC+8, ACC]
        hk = [f's_add_u32 {sT}, {sT}, 1', f's_add_u32 {sMM}, {sMM}, {1<<18}', f's_add_u32 {sVM}, {sVM}, {1<<18}', f's_mov_b32 s31, {sAGR}', f's_mov_b32 {sAGR}, {sAGW}',
              f's_add_u32 {sAGW}, {sAGW}, {AGS}', f's_cmp_eq_u32 {sAGW}, s97\ns_cselect_b32 {sAGW}, {sAG0}, {sAGW}', 's_add_u32 s31, s31, s96',
              f's_add_u32 s30, s96, {sAGR}', f's_add_u32 s34, {sAGR}, {sAGL}', f's_add_u32 s32, {sAGR}, s99', f's_add_u32 s33, {sKV}, {OFF_VF-OFF_KF}', 's_mov_b32 s28, 0']
        def H(k=2):
            for _ in range(k):
                if hk: e(hk.pop(0))
        if cfg.VE:
            e(f's_add_u32 s33, {sKV}, {OFF_VF-OFF_KF}'); kv_load(VX, 's33')
            if cfg.VE == 1: e.vm(f'v_and_b32 v6, 128, v{vL16}\nbuffer_load_dword v6, v6, {WS}, {sFL} offen sc1')
            H(2)
        else: H(6)
        e.wds(tr[1]); e(f'v_pk_add_f32 {vr(S,2)}, {vr(S,2)}, {vr(S+4,2)}\nv_pk_add_f32 {vr(S+2,2)}, {vr(S+2,2)}, {vr(S+6,2)}\nv_pk_add_f32 {vr(M,2)}, {vr(M,2)}, {vr(M+2,2)}')
        e.wds(tr[3]); e(f'v_pk_add_f32 {vr(S+8,2)}, {vr(S+8,2)}, {vr(S+12,2)}\nv_pk_add_f32 {vr(S+10,2)}, {vr(S+10,2)}, {vr(S+14,2)}\nv_pk_add_f32 {vr(M+4,2)}, {vr(M+4,2)}, {vr(M+6,2)}')
        e(f'v_pk_add_f32 {vr(S,2)}, {vr(S,2)}, {vr(S+8,2)}\nv_pk_add_f32 {vr(S+2,2)}, {vr(S+2,2)}, {vr(S+10,2)}\nv_pk_add_f32 {vr(S+4,2)}, {vr(M,2)}, {vr(M+4,2)}')
        pp('a9')
        MX, TT = S+6, S+7
        def allr(op, v, t):
            H(); e(f'{op} v{v}, v{v}, v{v} row_ror:8 {DP}')
            for sw in ('v_permlane32_swap_b32', 'v_permlane16_swap_b32'):
                e(f'v_mov_b32 v{t}, v{v}'); H(); e(f'{sw} v{v}, v{t}\n{op} v{v}, v{v}, v{t}')
        e(f'v_max3_f32 v{MX}, v{S}, v{S+1}, v{S+2}\nv_max3_f32 v{TT}, v{S+3}, v{S+4}, v{S+5}\nv_max_f32 v{MX}, v{MX}, v{TT}')
        allr('v_max_f32', MX, TT)
        e(f'v_mul_f32 v{MX}, s{sC}, v{MX}')
        for r in (0, 2, 4): e(f'v_pk_fma_f32 {vr(S+r,2)}, {vr(S+r,2)}, {sp(sC)}, {vr(MX,2)} op_sel_hi:[1,1,0] neg_lo:[0,0,1] neg_hi:[0,0,1]')
        for r in range(6): e(f'v_exp_f32 v{S+r}, v{S+r}')
        PX, PM, O = M, M+4, S+8
        e(f'v_cvt_pk_bf16_f32 v{PX}, v{S}, v{S+1}\nv_cvt_pk_bf16_f32 v{PX+1}, v{S+2}, v{S+3}\nv_cvt_pk_bf16_f32 v{PM}, v{S+4}, v{S+5}')
        e(f'v_mov_b32 v{PX+2}, v{PX} row_ror:8 {DP}\nv_mov_b32 v{PX+3}, v{PX+1} row_ror:8 {DP}\nv_mov_b32 v{PM+1}, v{PM} row_ror:8 {DP}')
        pp('sm')
        def klate(): e.wvm(tfl); flags_read(); kv_wait('s35', 4); e('s_mov_b32 s28, 0'); kv_load(KX, sKV)
        if cfg.KLATE == 1: klate()
        e(f'v_add_f32 v{S+4}, v{S+4}, v{S+5}')
        e(f'{MF} {vr(O)}, {vr(VC)}, {vr(PX)}, 0\nv_add_f32 v{S}, v{S}, v{S+1}\nv_add_f32 v{S+2}, v{S+2}, v{S+3}')
        e(f'{MF} {vr(O+4)}, {vr(VC+4)}, {vr(PX)}, 0\nv_fma_f32 v{S}, v{S+4}, 0.5, v{S}\nv_add_f32 v{MX}, v{S}, v{S+2}')
        hk[:0] = [f'{MF16} {vr(O)}, {vr(VMF,2)}, {vr(PM,2)}, {vr(O)}', 's_nop 0', f'{MF16} {vr(O+4)}, {vr(VMF+2,2)}, {vr(PM,2)}, {vr(O+4)}', 's_nop 0']
        allr('v_add_f32', MX, TT)
        e(f'v_rcp_f32 v{MX}, v{MX}'); H(20)
        pp('p1')
        for r in range(0, 8, 2): e(f'v_pk_mul_f32 {vr(O+r,2)}, {vr(O+r,2)}, {vr(MX,2)} op_sel_hi:[1,0]')
        for r in (2, 3, 0, 1): e(f'v_cvt_pk_bf16_f32 v{S+r}, v{O+r}, v{O+4+r}')
        for r in range(2): e(f'v_mov_b32 v{S+r}, v{S+2+r} row_shr:8 row_mask:0xf bank_mask:0xc')
        tw = e.ds(f'ds_write_b64 v{vPM}, {vr(S,2)} offset:{L_O}')
        pp('p2')
        if cfg.KLATE == 2: klate()
        if not cfg.VE: kv_load(VX, 's33')
        for n in held: xload(n)
        for r in range(0, 8, 2): e(f'v_mov_b64 {vr(WA[0]+r,2)}, 0')
        e.wds(tw); pp('p4'); e('s_barrier')
        pp('p5')
        OB = MBUF[0]
        to = [e.ds(f'ds_read_b128 {vr(OB+4*k)}, v{vL16} offset:{L_O+k*1024}') for k in range(2)]
        if cfg.VE != 1 and not cfg.NOFL and not cfg.KLATE and not cfg.SFL: e.vm(f'v_and_b32 v6, 128, v{vL16}\nbuffer_load_dword v6, v6, {WS}, {sFL} offen sc1')
        for r in range(0, 16, 2): e(f'v_mov_b64 {vr(WA[2]+r,2)}, 0')
        pp('wo0')
        def flush(c, part):
            a = WA[c % 3]
            if cfg.MS:
                if part == 0:
                    for r in range(4): e(f'v_cvt_pk_bf16_f32 v{a+r}, v{a+2*r}, v{a+2*r+1}')
                if part == 1: e(f'{MF} {vr(a+4)}, {vr(a)}, {vr(SELT)}, 0')
                if part == 2 and c < 2: e(f'v_mov_b64 {vr(a,2)}, 0\nv_mov_b64 {vr(a+2,2)}, 0')
                if part == 4:
                    e(f'v_cvt_pk_bf16_f32 v{a+4}, v{a+4}, v{a+5}\nv_cvt_pk_bf16_f32 v{a+5}, v{a+6}, v{a+7}\nv_and_or_b32 v{a+4}, v{a+4}, -2, {sPAR}')
                    e.vm(f'buffer_store_dwordx2 {vr(a+4,2)}, v{vRS}, {WS}, s{18+c} offen {fl}')
                    if c < 2: e(f'v_mov_b64 {vr(a+4,2)}, 0\nv_mov_b64 {vr(a+6,2)}, 0')
                return
            if part == 0:
                for r in range(2): e(f'v_permlane32_swap_b32 v{a+r}, v{a+4+r}')
            if part == 1:
                for r in range(2, 4): e(f'v_permlane32_swap_b32 v{a+r}, v{a+4+r}')
            if part == 2:
                if cfg.WPK: e(f'v_pk_add_f32 {vr(a,2)}, {vr(a,2)}, {vr(a+4,2)}\nv_pk_add_f32 {vr(a+2,2)}, {vr(a+2,2)}, {vr(a+6,2)}')
                else:
                    for r in range(4): e(f'v_add_f32 v{a+r}, v{a+r}, v{a+4+r}')
                e(f'v_cvt_pk_bf16_f32 v{a+4}, v{a}, v{a+1}\nv_cvt_pk_bf16_f32 v{a+5}, v{a+2}, v{a+3}')
            if part == 3:
                e(f'v_and_or_b32 v{a+4}, v{a+4}, -2, {sPAR}')
                e.vm(f'buffer_store_dwordx2 {vr(a+4,2)}, v{vRS}, {WS}, s{18+c} offen {fl}')
                if c < 2:
                    for r in range(0, 8, 2): e(f'v_mov_b64 {vr(a+r,2)}, 0')
        plan = {}
        for c in range(5):
            for p_ in range(5 if cfg.MS else 4): plan.setdefault(4*c + cfg.FLAG + p_, []).append((c, p_))
        i = 0
        for c in range(5):
            for k in range(2):
                e.wds(to[k])
                for t in range(2):
                    smf(WA[c % 3]+4*t, vr(OB+4*k), 60+4*c+2*k+t)
                    if i == cfg.FRP: e.wvm(tmm); e.vm(f'v_mov_b32 v7, {sT}\nbuffer_store_dword v7, off, {WS}, {sFR} sc1')
                    for x in sorted(plan.pop(i, [])): flush(*x)
                    i += 1
        pp('w1')
        SEL, RD, RL = XB[NB-1], XB[NB-1]+4, P+32
        rest = [x for i in sorted(plan) for x in sorted(plan[i])]
        if cfg.MS:
            first = [x for x in rest if x[1] < 2]
            for x in first:
                if x == (4, 0): mk_sel(e, SEL, vL16, RD, mSEL)
                flush(*x)
            rest = [x for x in rest if x not in first]
        for x in rest: flush(*x)
        pp('wo1')
        SEL, RD, RL = XB[NB-1], XB[NB-1]+4, P+32
        nored = e.lab('r'); lp2 = e.lab('r')
        e(f's_cmp_ge_u32 {sU}, 40\ns_cbranch_scc1 {nored}')
        if not cfg.MS: mk_sel(e, SEL, vL16, RD, mSEL)
        if cfg.RACK:
            ea = e.lab('r'); st_ = e.vmdone
            e(f's_cmp_lt_u32 {sU}, {cfg.EARLY}\ns_cbranch_scc1 {ea}\ns_waitcnt vmcnt(0)'); e.label(ea)
        SAT = f's_atomic_add s44, s[60:61], {sFR}' if cfg.SFR else ''
        SLD = f's_load_dword s42, s[60:61], {sFL} glc\ns_load_dword s43, s[60:61], s41 glc' if cfg.SFL else ''
        e(SAT)
        if cfg.RDLY: e(f's_sleep {cfg.RDLY}')
        pp('rs0')
        e.label(lp2)
        toks = [e.vm(f'buffer_load_dwordx4 {vr(RL+4*j)}, v{vL16}, {WS}, {sRSL if j<4 else "s98"} offen offset:{(j%4)*1024} sc1') for j in range(8)]
        tt = sum((((a ^ c) | (b ^ c)) & 1) << (a*4+b*2+c) for a in (0,1) for b in (0,1) for c in (0,1))
        for j in range(8):
            e.wvm(toks[j])
            e(f'{MF} {vr(RD)}, {vr(SEL)}, {vr(RL+4*j)}, {vr(RD) if j else 0}' if cfg.MS else f'{MF} {vr(RD)}, {vr(RL+4*j)}, {vr(SEL)}, {vr(RD) if j else 0}')
            e(f'v_bitop3_b32 v{RL+4*j}, v{RL+4*j}, v{RL+4*j+2}, {sPAR} bitop3:{tt:#x}')
            if j == 2: e(f'v_or3_b32 v{RL}, v{RL}, v{RL+4}, v{RL+8}')
            if j in (4, 6): e(f'v_or3_b32 v{RL}, v{RL}, v{RL+4*j-4}, v{RL+4*j}')
        e(f'v_or_b32 v{RL}, v{RL}, v{RL+28}\nv_and_b32 v{RL}, 1, v{RL}\nv_cmp_ne_u32 vcc, 0, v{RL}\nv_mov_b64 {vr(RL+2,2)}, -1\ns_cbranch_vccnz {lp2}r')
        e(f"""s_mov_b64 exec, {sp(mPUB)}
        v_cvt_pk_bf16_f32 v{RL}, v{RD}, v{RD+1}
        v_cvt_pk_bf16_f32 v{RL+1}, v{RD+2}, v{RD+3}
        v_min_u32 v{RL}, -2, v{RL}
        v_min_u32 v{RL+1}, -2, v{RL+1}
        buffer_store_dwordx2 {vr(RL,2)}, v{vAG}, {WS}, s30 offen {fl}""")
        if cfg.REP:
            rp = e.lab('r')
            e(f's_cmp_lt_u32 {sU}, 8\ns_cbranch_scc1 {rp}r'); e.label(rp)
            cold.append(f'{rp}r:\ns_add_u32 s30, s30, 10240\ns_add_u32 s33, s30, 4096\n' + '\n'.join(f'buffer_store_dwordx2 {vr(RL,2)}, v{vAG}, {WS}, {x} offen offset:{o} {fl}' for x, o in (('s30', 0), ('s30', 2048), ('s33', 0)))
                        + f'\ns_add_u32 s30, s31, 10240\ns_add_u32 s33, s30, 4096\n' + '\n'.join(f'buffer_store_dwordx2 {vr(RL+2,2)}, v{vAG}, {WS}, {x} offen offset:{o} {fl}' for x, o in (('s30', 0), ('s30', 2048), ('s33', 0))) + f'\ns_branch {rp}')
        e(f'buffer_store_dwordx2 {vr(RL+2,2)}, v{vAG}, {WS}, s31 offen {fl}\ns_mov_b64 exec, -1')
        if cfg.AACK: e.vm0()
        j2 = e.lab('r')
        e(f's_branch {j2}'); e.label(nored); pp('rs0'); e('s_waitcnt vmcnt(0)'); e(SAT); e.label(j2)
        if cfg.SFL == 1: e(SLD)
        if cfg.PFL == 1:
            for j in range(3): xload(chain[j][0])
        if not cfg.KLATE and not cfg.SFL: flags_read()
        if cfg.VDB:
            for r in range(0, 8, 2): e(f'v_mov_b64 {vr(VX+r,2)}, {vr(VXN+r,2)}')
        e(f's_xor_b32 {sPAR}, {sPAR}, 1\ns_mov_b32 s28, 0')
        pp('rs1')
        prof_flush(e, cfg, len(cfg.PP), sPF)
        e('s_barrier')
        if cfg.SFL == 2: e(SLD)
        if cfg.ADLY: e(f's_sleep {cfg.ADLY}')
        e(f's_branch {top}')
        for t in cold: e(t)
        e.label(lp2 + 'r'); spin_tail(e, cfg, lp2, 5)
        if cfg.LPROF:
            e.label(top + '_p'); e(f's_memtime s[48:49]\ns_memrealtime s[50:51]\ns_branch {top}_q')
        e.label(last)
        if cfg.LPROF:
            e(f's_memtime s[52:53]\ns_memrealtime s[54:55]\ns_waitcnt lgkmcnt(0)\ns_sub_u32 s52, s52, s48\ns_sub_u32 s53, s54, s50\ns_sub_u32 s54, s54, s100\nv_mov_b32 v64, s52\nv_mov_b32 v65, s53\nv_mov_b32 v66, s54\nbuffer_store_dwordx3 v[64:66], off, {WS}, {sPF}')
        e(f's_mov_b64 exec, -1\ns_waitcnt vmcnt(0) lgkmcnt(0)\nv_mov_b32 v6, 64\nbuffer_store_dword v6, off, {WS}, {sFR} sc1\ns_branch L_wb')
    e(f's_add_u32 s34, {sAGR}, {sAGL}\ns_add_u32 s32, {sAGR}, s99\ns_mov_b32 s28, 0\ns_mov_b32 s44, 1\ns_add_u32 s41, {sFL}, 128\ns_mov_b32 s42, 0\ns_mov_b32 s43, 0')
    e(f's_cmp_eq_u32 {sMODE}, 1\ns_cbranch_scc0 L_R_slow')
    if cfg.SPEC:
        e(f's_cmp_eq_u32 {sGRP}, 1\ns_cbranch_scc1 L_R_one')
        cfg.SFR, cfg.SFL = 1, 0
    body('', 'Rf'); e.unknown()
    e.label('L_R_slow')
    body('sc1', 'Rs'); e.unknown()
    if cfg.SPEC:
        e.label('L_R_one'); cfg.SFR, cfg.SFL = 0, cfg.SPEC
        body('', 'Rg'); e.unknown()

tLANE, tL16, tDMA, tL4, tPOLL, tL128 = 1, 2, 5, 8, 9, 0
def tok_setup(e):
    e(f'v_and_b32 v{tLANE}, 63, v0\nv_lshlrev_b32 v{tL16}, 4, v{tLANE}\nv_lshlrev_b32 v{tL4}, 2, v{tLANE}')
def x_setup(e, xa):
    e(f"""v_bfe_u32 v10, v{tLANE}, 1, 3
    v_lshrrev_b32 v11, 5, v{tLANE}
    v_xor_b32 v10, v10, v11
    v_lshlrev_b32 v{xa}, 4, v10
    v_and_b32 v10, 7, v{tLANE}
    v_lshl_add_u32 v{xa}, v10, 7, v{xa}
    v_bfe_u32 v10, v{tLANE}, 3, 2
    v_mul_u32_u24 v10, 10240, v10
    v_add_u32 v{xa}, v{xa}, v10""")
    for q in range(1, 4): e(f'v_xor_b32 v{xa+q}, {32*q}, v{xa}')
def piece_setup(e, v, ustride):
    e(f'v_bfe_u32 v10, v{tLANE}, 4, 1\nv_mul_u32_u24 v{v}, {ustride}, v10\nv_lshrrev_b32 v10, 5, v{tLANE}\nv_lshl_add_u32 v{v}, v10, 8, v{v}\nv_and_b32 v10, 15, v{tLANE}\nv_lshl_add_u32 v{v}, v10, 4, v{v}')
def dma_steps(e, sG, sL, n, voff, fl='sc1'):
    def step(j):
        def f():
            if j % 4 == 0:
                if j: e(f's_add_u32 {sL}, {sL}, 4096\ns_add_u32 {sG}, {sG}, 4096')
                e(f's_mov_b32 m0, {sL}')
            e.vm(f'buffer_load_dwordx4 v{voff}, {WS}, {sG} offen offset:{(j%4)*1024} {fl} lds')
        return f
    return [step(j) for j in range(n)]
def xfrag(e, k, xa):
    return lambda r: ('ds', e.ds(f'ds_read_b128 {vr(r)}, v{xa + (k & 3)} offset:{(k>>2)*1024}'))
def poll(e, cfg, load, test, code):
    lp = e.lab('p'); ok = e.lab('p')
    e('s_mov_b32 s28, 0'); e.label(lp)
    e(load + '\ns_waitcnt vmcnt(0)\n' + test + f'\ns_cbranch_scc1 {ok}')
    if cfg.PSLEEP: e(f's_sleep {cfg.PSLEEP}')
    spin_tail(e, cfg, lp, code)
    e.label(ok); e.unknown_vm()
def row_flags_load(sBase): return f'buffer_load_dword v{tPOLL}, v{tL128}, {WS}, {sBase} offen sc1'
def l128_setup(e): e(f'v_and_b32 v{tL128}, 31, v{tLANE}\nv_lshlrev_b32 v{tL128}, 7, v{tL128}')
ROW_TEST = f'v_cmp_eq_u32 vcc, 0, v{tPOLL}\ns_cmp_eq_u32 vcc_lo, 0'
def wave_sum(e, v, t):
    for r in (8, 4, 2, 1): e(f'v_add_f32 v{v}, v{v}, v{v} row_ror:{r} row_mask:0xf bank_mask:0xf')
    xlane(e, 'v_add_f32', v, t)
def mk_order(lead, ratio, l2first=False):
    seq = [0]*lead; n1 = lead; n2 = 0; acc = 1.0 if l2first else 0.0
    while n1 < 64:
        while acc >= 1.0 - 1e-9 and n2 < 64: seq.append(1); n2 += 1; acc -= 1.0
        seq.append(0); n1 += 1; acc += ratio
    seq += [1]*(64-n2)
    return seq
def order_setup(e, seq):
    m = sum(b << i for i, b in enumerate(seq))
    mask64(e, 54, m & (2**64-1)); mask64(e, 56, m >> 64)
    e.pop0 = bin(m & (2**64-1)).count('1')
def order_item(e, sn, sIT):
    e(f"""s_cmp_lt_u32 {sn}, 64
    s_cselect_b64 s[60:61], s[54:55], s[56:57]
    s_cselect_b32 s33, 0, {e.pop0}
    s_bfm_b64 s[34:35], {sn}, 0
    s_and_b64 s[34:35], s[34:35], s[60:61]
    s_bcnt1_i32_b64 s34, s[34:35]
    s_add_u32 s33, s33, s34
    s_sub_u32 s34, {sn}, s33
    s_add_u32 s33, s33, 64
    s_bitcmp1_b64 s[60:61], {sn}
    s_cselect_b32 {sIT}, s33, s34
    s_cmp_ge_u32 {sn}, 128
    s_cselect_b32 {sIT}, {sn}, {sIT}""")

class Red:
    onepass = 0; sINV = 's101'
def row_setup(e, R, sRow):
    L = tLANE
    e(f"""v_bfe_u32 v10, v{L}, 4, 1
    v_lshrrev_b32 v11, 5, v{L}
    v_lshl_add_u32 v10, v10, 1, v11
    v_and_b32 v11, 15, v{L}
    v_lshlrev_b32 v{R.row+1}, 4, v11
    v_lshl_add_u32 v{R.row}, v10, 8, v{R.row+1}
    v_add_u32 v{R.row+1}, 1024, v{R.row+1}
    s_bfe_u32 s33, {sRow}, 0x30001
    v_and_b32 v11, 7, v{L}
    v_xor_b32 v11, s33, v11
    v_lshlrev_b32 v{R.xn+1}, 4, v11
    v_bfe_u32 v11, v{L}, 3, 1
    v_lshl_add_u32 v{R.xn+1}, v11, 10, v{R.xn+1}
    v_lshl_add_u32 v{R.xn}, v10, 11, v{R.xn+1}
    v_add_u32 v{R.xn+1}, 8192, v{R.xn+1}
    v_mov_b32 v10, {OOB:#x}
    v_cmp_gt_u32 vcc, 16, v{L}
    v_cndmask_b32 v{R.row+1}, v10, v{R.row+1}, vcc
    v_cndmask_b32 v{R.xn+1}, v10, v{R.xn+1}, vcc
    s_lshr_b32 {R.sXR}, {sRow}, 3
    s_mul_i32 {R.sXR}, {R.sXR}, 10240
    s_and_b32 s33, {sRow}, 7
    s_lshl_b32 s33, s33, 7
    s_add_u32 {R.sXR}, {R.sXR}, s33""")
def red_setup(e, R, base, nprod):
    R.la, R.lb, R.ga, R.gb, R.lw, R.p0, R.p1, R.res, R.res2, R.ly, R.xn = range(base, base+11)
    R.sel, R.sel2 = base+12, base+16
    R.sM, R.sG, R.sROW, R.sXR, R.sFP, R.sFPme, R.sRS, R.sRS2, R.sSTO, R.sLDO = ['s%d' % i for i in range(70, 80)]
    L = tLANE
    e(f"""s_mul_i32 s33, {sW}, {32*336}
    s_add_u32 s33, s33, {R.L_T}
    v_lshrrev_b32 v10, 3, v{L}
    v_and_b32 v11, 7, v{L}
    v_mul_u32_u24 v{R.la}, 336, v10
    v_lshl_add_u32 v{R.la}, v11, 4, v{R.la}
    v_add_u32 v{R.la}, s33, v{R.la}
    v_mul_u32_u24 v{R.ga}, {RSP_ROW}, v10
    v_lshl_add_u32 v{R.ga}, v11, 4, v{R.ga}
    v_lshrrev_b32 v10, 2, v{L}
    v_and_b32 v11, 3, v{L}
    v_mul_u32_u24 v{R.lb}, 336, v10
    v_lshl_add_u32 v{R.lb}, v11, 4, v{R.lb}
    v_add_u32 v{R.lb}, s33, v{R.lb}
    v_mul_u32_u24 v{R.gb}, {RSP_ROW}, v10
    v_lshl_add_u32 v{R.gb}, v11, 4, v{R.gb}
    v_lshrrev_b32 v10, 4, v{L}
    v_and_b32 v11, 15, v{L}
    v_and_b32 v6, 31, v{L}
    v_mul_u32_u24 v{R.lw}, 336, v6
    v_lshrrev_b32 v6, 5, v{L}
    v_lshl_add_u32 v{R.lw}, v6, 4, v{R.lw}
    v_add_u32 v{R.lw}, s33, v{R.lw}
    v_mul_u32_u24 v{R.p0}, 1280, v10
    v_lshl_add_u32 v{R.p0}, v11, 4, v{R.p0}
    v_mov_b32 v{R.p1}, v{R.p0}
    v_mov_b32 v6, {OOB:#x}
    s_and_b32 s33, {sW}, 1
    s_lshl_b32 s33, s33, 3
    v_add_u32 v7, s33, v10
    v_cmp_gt_u32 vcc, {nprod}, v7
    v_cndmask_b32 v{R.p0}, v6, v{R.p0}, vcc
    v_add_u32 v7, 4, v7
    v_cmp_gt_u32 vcc, {nprod}, v7
    v_cndmask_b32 v{R.p1}, v6, v{R.p1}, vcc
    v_lshrrev_b32 v7, 5, v{L}
    v_and_b32 v10, 1, v10
    v_lshlrev_b32 v{R.res}, 8, v7
    v_lshl_add_u32 v{R.res}, v11, 4, v{R.res}
    v_lshl_add_u32 v{R.res}, v10, 3, v{R.res}
    v_cmp_gt_u32 vcc, 32, v{L}
    v_cndmask_b32 v{R.res2}, v6, v{R.res}, vcc
    s_lshr_b32 s33, {sW}, 1
    s_mul_i32 s34, s33, 3072
    s_add_u32 s34, s34, {R.L_Y}
    v_add_u32 v{R.ly}, s34, v{tL16}
    s_lshl_b32 {R.sROW}, {R.sM}, 1
    s_add_u32 {R.sROW}, {R.sROW}, s33
    s_lshl_b32 {R.sFP}, {R.sG}, 8
    s_add_u32 {R.sFP}, {R.sFP}, {F_PS}
    s_lshl_b32 {R.sFPme}, {R.sM}, 4
    s_lshl_b32 s33, {sW}, 2
    s_add_u32 {R.sFPme}, {R.sFPme}, s33
    s_add_u32 {R.sFPme}, {R.sFPme}, {R.sFP}
    s_mul_i32 {R.sRS}, {R.sG}, {2*RSP_SLOT}
    s_add_u32 {R.sRS}, {R.sRS}, {OFF_RSP}
    s_add_u32 {R.sRS2}, {R.sRS}, {RSP_SLOT}
    s_mul_i32 {R.sSTO}, {R.sM}, 1280
    s_mul_i32 s33, {sW}, 320
    s_add_u32 {R.sSTO}, {R.sSTO}, s33
    s_mul_i32 {R.sLDO}, {R.sROW}, {RSP_ROW}
    s_and_b32 s33, {sW}, 1
    s_mul_i32 s33, s33, {8*1280}
    s_add_u32 {R.sLDO}, {R.sLDO}, s33""")
    e(f's_mov_b32 {R.sINV}, {f2u(1/640):#x}')
    sel_masks(e, 84, lambda l: (l & 15) >> 1); mk_sel(e, R.sel, tL16, 10, 84)
    sel_masks(e, 84, lambda l: ((l & 15) >> 1) - 4); mk_sel(e, R.sel2, tL16, 10, 84)
def group_ids(e, R):
    if R: e(f's_sub_u32 s71, {sGRP}, 5\ns_lshr_b32 s33, {sH}, 4\ns_mul_i32 s33, s33, 3\ns_add_u32 s71, s71, s33\ns_and_b32 s70, {sH}, 15')
    else: e(f's_sub_u32 s71, {sGRP}, 5\ns_lshl_b32 s71, s71, 1\ns_lshr_b32 s33, {sH}, 4\ns_add_u32 s71, s71, s33\ns_and_b32 s70, {sH}, 15')

def res_load(e, R, srd_, sOff, d):
    for T in range(3):
        t = e.vm(f'buffer_load_dwordx2 {vr(d+2*T,2)}, v{R.res2 if T==2 else R.res}, {srd_}, {sOff} offen offset:{T*512} sc1')
    return t

LOCN = [0]
def loc_store(text):
    LOCN[0] += 1; a = f'ls{LOCN[0]}a'; b = f'ls{LOCN[0]}b'
    COLD.append(f'{a}:\n{text} sc1\ns_branch {b}')
    return f's_cmp_eq_u32 {sMODE}, 1\ns_cbranch_scc0 {a}\n{text}\n{b}:'
def row_store(e, R, Q, srd_, soff, fl, image):
    e(f'v_mov_b32 v{Q+6}, v{Q+4}\nv_mov_b32 v{Q+7}, v{Q+5}')
    for r in range(2): e(f'v_permlane16_swap_b32 v{Q+r}, v{Q+2+r}')
    for r in range(2): e(f'v_permlane16_swap_b32 v{Q+4+r}, v{Q+6+r}')
    va = R.xn if image else R.row
    for j in range(2):
        t = f'buffer_store_dwordx4 {vr(Q+4*j)}, v{va+j}, {srd_}, {soff} offen'
        e.vm(loc_store(t) if fl == 'loc' else t + ' ' + fl)

def finish_row(e, R, X, RES, TMP, has_y, xstore, sXNitem, st='s33', Q=None):
    if has_y:
        for p in range(6):
            e(f'v_lshlrev_b32 v{TMP}, 16, v{RES+p}\nv_and_b32 v{TMP+1}, 0xffff0000, v{RES+p}\nv_pk_add_f32 {vr(X+2*p,2)}, {vr(X+2*p,2)}, {vr(TMP,2)}')
            e(f'v_cvt_pk_bf16_f32 v{Q+p}, v{X+2*p}, v{X+2*p+1}')
        RES = Q
    if sXNitem is not None:
        for p in range(6): e(f'v_lshlrev_b32 v{X+2*p}, 16, v{RES+p}\nv_and_b32 v{X+2*p+1}, 0xffff0000, v{RES+p}')
    if xstore: row_store(e, R, Q, xstore[0], xstore[1], xstore[2], False)
    if sXNitem is None: return
    S, T1 = TMP, TMP+1
    if R.onepass:
        S2 = Q+8 if Q is not None else TMP+2; T2 = S2+1
        e(f'v_pk_add_f32 {vr(S,2)}, {vr(X,2)}, {vr(X+2,2)}\nv_pk_mul_f32 {vr(S2,2)}, {vr(X,2)}, {vr(X,2)}')
        for r in range(2, 12, 2):
            if r >= 4: e(f'v_pk_add_f32 {vr(S,2)}, {vr(S,2)}, {vr(X+r,2)}')
            e(f'v_pk_fma_f32 {vr(S2,2)}, {vr(X+r,2)}, {vr(X+r,2)}, {vr(S2,2)}')
        e(f'v_add_f32 v{S}, v{S}, v{T1}\nv_add_f32 v{S2}, v{S2}, v{T2}\ns_add_u32 {st}, {sXNitem}, {R.sXR}')
        for r in (8, 4, 2, 1):
            for v in (S, S2): e(f'v_add_f32 v{v}, v{v}, v{v} row_ror:{r} row_mask:0xf bank_mask:0xf')
            e('s_nop 0')
        for sw in ('v_permlane32_swap_b32', 'v_permlane16_swap_b32'):
            e(f'v_mov_b32 v{T1}, v{S}\nv_mov_b32 v{T2}, v{S2}\ns_nop 0\n{sw} v{S}, v{T1}\n{sw} v{S2}, v{T2}\nv_add_f32 v{S}, v{S}, v{T1}\nv_add_f32 v{S2}, v{S2}, v{T2}')
        e(f"""v_mul_f32 v{S}, {f2u(-1/640):#x}, v{S}
        v_mul_f32 v{T1}, v{S}, v{S}
        v_fma_f32 v{S2}, v{S2}, {R.sINV}, -v{T1}
        v_max_f32 v{S2}, 0, v{S2}
        v_add_f32 v{S2}, {f2u(1e-5):#x}, v{S2}
        v_rsq_f32 v{S2}, v{S2}
        s_nop 0
        v_mul_f32 v{S}, v{S}, v{S2}""")
        for p in range(6):
            e(f'v_pk_fma_f32 {vr(X+2*p,2)}, {vr(X+2*p,2)}, {vr(S2,2)}, {vr(S,2)} op_sel_hi:[1,0,0]\nv_cvt_pk_bf16_f32 v{X+p}, v{X+2*p}, v{X+2*p+1}')
    else:
        e(f'v_pk_add_f32 {vr(S,2)}, {vr(X,2)}, {vr(X+2,2)}')
        for r in range(4, 12, 2): e(f'v_pk_add_f32 {vr(S,2)}, {vr(S,2)}, {vr(X+r,2)}')
        e(f'v_add_f32 v{S}, v{S}, v{T1}')
        wave_sum(e, S, T1)
        e(f'v_mul_f32 v{S}, {f2u(-1/640):#x}, v{S}')
        for r in range(0, 8, 2): e(f'v_pk_add_f32 {vr(X+r,2)}, {vr(X+r,2)}, {vr(S,2)} op_sel_hi:[1,0]')
        e('s_mov_b32 exec_hi, 0')
        for r in range(8, 12, 2): e(f'v_pk_add_f32 {vr(X+r,2)}, {vr(X+r,2)}, {vr(S,2)} op_sel_hi:[1,0]')
        e('s_mov_b32 exec_hi, -1')
        e(f'v_pk_mul_f32 {vr(S,2)}, {vr(X,2)}, {vr(X,2)}')
        for r in range(2, 12, 2): e(f'v_pk_fma_f32 {vr(S,2)}, {vr(X+r,2)}, {vr(X+r,2)}, {vr(S,2)}')
        e(f'v_add_f32 v{S}, v{S}, v{T1}')
        wave_sum(e, S, T1)
        e(f'v_mov_b32 v{T1}, {f2u(1e-5):#x}\nv_fmac_f32 v{T1}, {f2u(1/640):#x}, v{S}\nv_rsq_f32 v{S}, v{T1}\ns_add_u32 {st}, {sXNitem}, {R.sXR}')
        for p in range(6):
            e(f'v_pk_mul_f32 {vr(X+2*p,2)}, {vr(X+2*p,2)}, {vr(S,2)} op_sel_hi:[1,0]\nv_cvt_pk_bf16_f32 v{X+p}, v{X+2*p}, v{X+2*p+1}')
    row_store(e, R, X, WS, st, xstore[2] if xstore else 'sc1', True)

def out_proj(e, R, wfr, NK, OB, oread, ACC, PK, ST, fill, s0=None, stream=None, after=None, budget=24, p0=1, f0=None):
    per = NK; cost = {}
    def put(p, c, f): at(fill, p, f); cost[p] = cost.get(p, 0) + c
    for p in fill: cost[p] = 12*len(fill[p])
    def cv(c, h):
        a = ACC[c % 2] + 8*h
        for r in range(4): e(f'v_cvt_pk_bf16_f32 v{PK+4*h+r}, v{a+2*r}, v{a+2*r+1}')
    def wr(c, h): e.ds(f'ds_write_b128 v{R.lw}, {vr(PK+4*h)} offset:{c*64+h*32}')
    tk = {}
    def rd(j, half): tk[j] = e.ds(f'ds_read_b128 {vr(ST+4*j)}, v{R.la} offset:{j*8*336+half*128}')
    def st(j, half):
        e.wds(tk[j]); e(f's_add_u32 s33, s35, {j*8*RSP_ROW}')
        e.vm(f'buffer_store_dwordx4 {vr(ST+4*j)}, v{R.ga}, {WS}, s33 offen offset:{half*128}')
    otok = dict(oread.tok)
    for k in range(4, NK, 2): put((k-4)//2, 8, lambda k=k: otok.update({k: oread(k), k+1: oread(k+1)}))
    for c in range(4):
        p = (c+1)*per + 2
        if c == 0 and f0: p = f0
        put(p, 16, lambda c=c: cv(c, 0)); put(p+1, 16, lambda c=c: wr(c, 0)); put(p+2, 16, lambda c=c: cv(c, 1)); put(p+3, 16, lambda c=c: wr(c, 1))
    for half in range(2):
        base = (2*half+2)*per + 5
        if half == 0 and s0: base = s0
        put(base, 8, lambda half=half: (rd(0, half), rd(1, half))); put(base+1, 8, lambda half=half: (rd(2, half), rd(3, half)))
        gap = max(1, (per-9)//4) if half else max(1, (4*per-base-3)//4)
        for j in range(4): put(base+4+gap*j, 28, lambda j=j, half=half: st(j, half))
    put(NK, 4, lambda: e(f's_add_u32 s35, {R.sSTO}, {R.sRS}'))
    if stream:
        last = spread(e, stream, fill, cost, p0, budget)
        if after: after(last)
    i = 0
    for c in range(5):
        for k in range(NK):
            if c == 0: e.wds(otok[k])
            a = vr(ACC[c % 2], 16)
            e(f'{MF32} {a}, {wfr(c,k)}, {vr(OB+4*k)}, {a if k else 0}')
            run(fill, i); i += 1
    drain(fill)
def out_tail1(e, R, ACC, PK):
    for h in range(2):
        for r in range(4): e(f'v_cvt_pk_bf16_f32 v{PK+4*h+r}, v{ACC+8*h+2*r}, v{ACC+8*h+2*r+1}')
        e.ds(f'ds_write_b128 v{R.lw}, {vr(PK+4*h)} offset:{256+h*32}')
    return [e.ds(f'ds_read_b128 {vr(PK+4*j)}, v{R.lb} offset:{j*16*336+256}') for j in range(2)]
def out_tail2(e, R, PK, tk):
    for j in range(2):
        e.wds(tk[j]); e(f's_add_u32 s33, s35, {j*16*RSP_ROW}')
        e.vm(f'buffer_store_dwordx4 {vr(PK+4*j)}, v{R.gb}, {WS}, s33 offen offset:256')
    return e.vmn

def publish(e, R, sCnt):
    slow = e.lab('pb'); done = e.lab('pb')
    e(f'v_mov_b32 v10, {sCnt}\ns_cmp_eq_u32 {sMODE}, 1\ns_cbranch_scc0 {slow}')
    e.vm(f'buffer_store_dword v10, off, {WS}, {R.sFPme}')
    e.label(done)
    e.cold.append(f'{slow}:\nbuffer_wbl2 sc1\ns_waitcnt vmcnt(0)\nbuffer_store_dword v10, off, {WS}, {R.sFPme} sc1\ns_branch {done}')
def flush_cold(e):
    for t in e.cold: e(t)
    e.cold.clear()
def grp_load(R): return f'buffer_load_dword v10, v{tL4}, {WS}, {R.sFP} offen sc1'
def grp_wait(e, cfg, R, sCnt, code, tok=None):
    test = f'v_cmp_gt_u32 vcc, {sCnt}, v10\ns_cmp_eq_u64 vcc, 0'
    ok = e.lab('g')
    if tok is not None:
        e.wvm(tok); e(test + f'\ns_cbranch_scc1 {ok}')
        st = e.vmdone
    ps = cfg.PSLEEP; cfg.PSLEEP = 0
    poll(e, cfg, grp_load(R), test, code)
    cfg.PSLEEP = ps
    e.label(ok)
    if tok is not None: e.vmdone = st
    slow = e.lab('gq'); done = e.lab('gq')
    e(f's_cmp_eq_u32 {sMODE}, 1\ns_cbranch_scc0 {slow}'); e.label(done)
    e.cold.append(f'{slow}:\nbuffer_inv sc1\ns_waitcnt vmcnt(0)\ns_branch {done}')
def ldq(LD, q): return LD[q] if isinstance(LD, list) else LD + 4*q
def rs_steps(e, R, LD, toks, sa='s30', sb='s31'):
    e(f's_add_u32 {sa}, {R.sLDO}, {R.sRS}\ns_add_u32 {sb}, {sa}, {4*1280}')
    def one(jj, j): toks[jj, j] = e.vm(f'buffer_load_dwordx4 {vr(ldq(LD, 5*jj+j))}, v{R.p1 if jj else R.p0}, {WS}, {sb if jj else sa} offen offset:{j*256} sc1')
    return [(lambda jj=jj, j=j: one(jj, j)) for jj in range(2) for j in range(5)]
def rs_loads(e, R, LD):
    e(f's_add_u32 s30, {R.sLDO}, {R.sRS}\ns_add_u32 s31, s30, {4*1280}')
    return {(jj, j): e.vm(f'buffer_load_dwordx4 {vr(ldq(LD, 5*jj+j))}, v{R.p1 if jj else R.p0}, {WS}, {"s31" if jj else "s30"} offen offset:{j*256} sc1') for jj in range(2) for j in range(5)}
def rs_mfma(e, R, toks, LD, Y, q):
    jj, j = divmod(q, 5)
    e.wvm(toks[jj,j]); a = vr(Y+4*(j>>1))
    first = (jj == 0 and j % 2 == 0)
    e(f'{MF} {a}, {vr(R.sel2 if j & 1 else R.sel)}, {vr(ldq(LD, 5*jj+j))}, {0 if first else a}')
def rs_done(e, R, sCnt):
    slow = e.lab('cs'); done = e.lab('cs')
    e(f'v_mov_b32 v10, {sCnt}\ns_cmp_eq_u32 {sMODE}, 1\ns_cbranch_scc0 {slow}')
    e.vm(f'buffer_store_dword v10, off, {WS}, {R.sFPme} offset:2048')
    e.label(done)
    e.cold.append(f'{slow}:\nbuffer_store_dword v10, off, {WS}, {R.sFPme} offset:2048 sc1\ns_branch {done}')
def rs_sum(e, R, toks, LD, Y):
    for q in range(10): rs_mfma(e, R, toks, LD, Y, q)
    rs_done(e, R, R.sCNT)
    ev = e.lab('d')
    e(f's_bitcmp1_b32 {sW}, 0\ns_cbranch_scc0 {ev}')
    for T in range(3): e(f'ds_write_b128 v{R.ly}, {vr(Y+4*T)} offset:{T*1024}')
    e.label(ev)
def slot_free(e, cfg, R, fill, p0, p1, code):
    if not R.single: return
    k = {}
    ld = f'buffer_load_dword v10, v{tL4}, {WS}, {R.sFP} offen offset:2048 sc1'
    test = f'v_add_u32 v10, 1, v10\nv_cmp_gt_u32 vcc, {R.sCNT}, v10'
    def chk():
        lp = e.lab('sf'); ok = e.lab('sf')
        e.wvm(k['t']); e(test + f'\ns_mov_b32 s28, 0\ns_cbranch_vccnz {lp}'); e.label(ok)
        e.cold.append(f'{lp}:\n{ld}\ns_waitcnt vmcnt(0)\n{test}\ns_cbranch_vccz {ok}\ns_add_u32 s28, s28, 1\ns_cmp_lt_u32 s28, {cfg.SPIN}\ns_cbranch_scc1 {lp}\ns_mov_b32 s29, {code}\ns_branch L_abort')
    at(fill, p0, lambda: k.update(t=e.vm(ld))); at(fill, p1, chk)
def decide(e, vD, t, mid):
    e('s_barrier')
    tk = e.ds(f'ds_read_b128 {vr(t)}, v{vD}')
    r = mid()
    e.wds(tk)
    e(f'v_and_b32 v{t}, v{t}, v{t+1}\nv_and_b32 v{t+2}, v{t+2}, v{t+3}\nv_and_b32 v{t}, v{t}, v{t+2}\nv_readfirstlane_b32 s30, v{t}\ns_cmp_eq_u32 s30, 1')
    return r
def gate(flag, vd, sit):
    return f"""
    s_cselect_b32 {flag}, 1, 0
    s_cmp_ge_u32 {sit}, 128
    s_cselect_b32 {flag}, 0, {flag}
    s_cmp_eq_u32 {flag}, 1
    s_cselect_b32 s33, 0, {OOB:#x}
    v_or_b32 v{vd}, s33, v{tL16}"""
def reduce_gather(e, R, LD, Y):
    toks = [e.ds(f'ds_read_b128 {vr(LD+4*q)}, v{R.ly} offset:{q*1024}') for q in range(3)]
    for q in range(3):
        e.wds(toks[q])
        for r in (0, 2): e(f'v_pk_add_f32 {vr(Y+4*q+r,2)}, {vr(Y+4*q+r,2)}, {vr(LD+4*q+r,2)}')
def swap_rs(e, R):
    e(f's_mov_b32 s33, {R.sRS}\ns_mov_b32 {R.sRS}, {R.sRS2}\ns_mov_b32 {R.sRS2}, s33')

def role_P(e, cfg, nm):
    isV = nm == 'V'
    which = {'K':0, 'V':1, 'Q':2}[nm]
    WV = 96; XB = [16+4*i for i in range(6)]; ACC = 48; PK = 64; vXA, vX0, vPO = 72, 76, 80
    sN, sIT, sIT2, sBUF, sPRE, sFA, sFB, sFV, sOB, sG, sL, sPF, sIT3 = ['s%d' % i for i in range(62, 75)]
    e.label(f'L_role{nm}')
    tok_setup(e)
    wl = WL(e, tLANE, 0, 4096*cfg.NSL, 24, 40, cfg.NSL)
    e(f's_lshl_b32 s33, {sH}, 8'); sq = wl.src(16, 8192, 's33', False)
    srd(e, 12, {'K':P_WK, 'V':P_WV, 'Q':P_WQ}[nm])
    wl.cols32('s[12:15]', sq, 10, lambda k: ('v', WV+4*k), 18, isV, first=lambda: arrive(e))
    x_setup(e, vX0); piece_setup(e, vPO, 1024)
    sync_start(e, cfg)
    l128_setup(e); pf_base(e, sPF); order_setup(e, mk_order(cfg.A, cfg.PRAT, True))
    def flag_line(sit, d): e(f's_lshl_b32 {d}, {sit}, 12\ns_add_u32 {d}, {d}, {F_XN}')
    def dma_setup(sit):
        e(f's_mul_i32 {sL}, {sW}, 10240\ns_mul_i32 {sG}, {sit}, {ITEM}\ns_add_u32 {sG}, {sG}, {sL}\ns_add_u32 {sG}, {sG}, {OFF_XN}\ns_add_u32 {sL}, {sL}, {sBUF}')
    def fetch(sit, code):
        flag_line(sit, 's31'); poll(e, cfg, row_flags_load('s31'), ROW_TEST, code)
        dma_setup(sit)
        for f in dma_steps(e, sG, sL, 10, tL16): f()
    e(f"""s_lshl_b32 {sFB}, {sH}, 11
    s_lshl_b32 s33, {sW}, 9
    s_add_u32 {sFB}, {sFB}, s33
    s_lshl_b32 {sOB}, {sFB}, 2
    s_add_u32 {sOB}, {sOB}, {dict(K=OFF_KF, V=OFF_VF, Q=OFF_QF)[nm]}
    s_add_u32 {sFB}, {sFB}, {F_P3 + which*128}
    s_mov_b32 {sFA}, {sFB}
    s_mov_b32 {sFV}, 0
    s_mov_b32 {sN}, 0
    s_mov_b32 {sIT}, 0
    s_mov_b32 {sIT2}, 1
    s_mov_b32 {sBUF}, 0""")
    fetch(sIT, 10)
    flag_line(sIT2, 's31'); e(row_flags_load('s31'))
    e.vm0()
    top = f'L_{nm}top'; e.label(top)
    prof(e, cfg, 0)
    for q in range(4): e(f'v_add_u32 v{vXA+q}, {sBUF}, v{vX0+q}')
    e(f's_waitcnt vmcnt({4 if cfg.PROF else 3})\ns_barrier')
    if nm == 'K': e(ev(5, sIT, sH))
    xs = Stream(e, XB, [xfrag(e, k, vXA) for k in range(40)]); xs.prime()
    e(f"""{ROW_TEST}
    s_cselect_b32 {sPRE}, 1, 0
    s_cmp_ge_u32 {sN}, 127
    s_cselect_b32 {sPRE}, 0, {sPRE}
    s_cmp_eq_u32 {sPRE}, 1
    s_cselect_b32 s33, 0, {OOB:#x}
    v_or_b32 v{tDMA}, s33, v{tL16}
    s_xor_b32 {sBUF}, {sBUF}, {ITEM}""")
    dma_setup(sIT2)
    prof(e, cfg, 1)
    fill = {}
    for j, f in enumerate(dma_steps(e, sG, sL, 10, tDMA)): at(fill, 2*j, f)
    r = Rec(); r.pop0 = e.pop0
    r(f's_add_u32 s32, {sN}, 2'); order_item(r, 's32', sIT3)
    def whole(rec): return rec.chunks(e, 1000)[0]
    at(fill, cfg.PPOLL-2, whole(r))
    at(fill, cfg.PPOLL, lambda: (flag_line(sIT3, 's31'), e(row_flags_load('s31'))))
    def mid():
        prof(e, cfg, 2)
        e(f's_waitcnt vmcnt({12 if cfg.EV and nm == "K" else 11})')
        prof(e, cfg, 3); prof_flush(e, cfg, 4, sPF)
        e(f'v_mov_b32 v10, {sFV}\nbuffer_store_dword v10, off, {WS}, {sFA} sc1')
    at(fill, cfg.PMID, mid); assert cfg.PPOLL < cfg.PMID
    at(fill, 30, lambda: e(f's_lshl_b32 s34, {sIT}, 18\ns_add_u32 s34, s34, {sOB}\ns_lshr_b32 {sFA}, {sIT}, 6\ns_lshl_b32 {sFA}, {sFA}, 2'))
    at(fill, 31, lambda: e(f's_add_u32 {sFA}, {sFA}, {sFB}\ns_and_b32 {sFV}, {sIT}, 63\ns_add_u32 {sFV}, {sFV}, 1\ns_add_u32 {sN}, {sN}, 1'))
    at(fill, 32, lambda: e(f's_mov_b32 {sIT}, {sIT2}\ns_mov_b32 {sIT2}, {sIT3}'))
    a = vr(ACC, 16)
    for k in range(40):
        x = xs.get(k); w = vr(WV+4*k)
        e(f'{MF32} {a}, {x if isV else w}, {w if isV else x}, {a if k else 0}')
        xs.issue(); run(fill, k)
    for f in range(2):
        src = [4*f, 4*f+2, 8+4*f, 10+4*f] if isV else [8*f+2*r for r in range(4)]
        for r_ in range(4): e(f'v_cvt_pk_bf16_f32 v{PK+4*f+r_}, v{ACC+src[r_]}, v{ACC+src[r_]+1}')
        e(f'buffer_store_dwordx4 {vr(PK+4*f)}, v{vPO}, {WS}, s34 offen offset:{f*512} sc1')
    e(f's_cmp_eq_u32 {sPRE}, 1\ns_cbranch_scc1 {top}')
    e(f's_waitcnt vmcnt(0)\nv_mov_b32 v10, {sFV}\nbuffer_store_dword v10, off, {WS}, {sFA} sc1')
    e(f's_cmp_ge_u32 {sN}, 128\ns_cbranch_scc1 L_end')
    fetch(sIT, 11)
    flag_line(sIT2, 's31'); e(row_flags_load('s31'))
    e.vm0()
    e(f's_branch {top}')
    e.unknown()

RING = [4]
def ring_slot(sc, d, t):
    n = RING[0]
    if n & (n-1) == 0: m = f's_and_b32 {d}, {sc}, {n-1}\n'
    else: m = f's_mul_hi_u32 {t}, {sc}, {-(-(1<<32)//n):#x}\ns_mul_i32 {t}, {t}, {n}\ns_sub_u32 {d}, {sc}, {t}\n'
    return m + f's_lshl_b32 {t}, {sGRP}, 3\ns_add_u32 {d}, {d}, {t}\n'
def wname(d): return ar(d[1]) if d[0] == 'a' else vr(d[1])
def w80(i): return ('a', 4*i) if i < 64 else ('v', 192+4*(i-64))

def role_A(e, cfg):
    R = Red(); R.L_T = 65536; L_O = 49152; R.L_Y = L_O; L_M = 65536 + 4*32*336
    sN, sIT, sIT2, sCNT, sPRE, sG, sL, sPF = ['s%d' % i for i in range(62, 70)]
    sC = 98; sMP, sRF, sHD, sML = 's96', 's97', 's12', 's13'
    wo = lambda c, k: w80(16*c+k)
    e.label('L_roleA')
    tok_setup(e)
    wl = WL(e, tLANE, 0, 4096*cfg.NSL, 24, 40, cfg.NSL)
    srd(e, 16, P_WO); srd(e, 20, P_X)
    e(f's_mul_i32 s62, s70, {256*1280}')
    wl.rows32('s[16:19]', 's62', 8, wo, 16, first=lambda: arrive(e))
    sync_start(e, cfg)
    R.row = 3; R.single = cfg.SINGLE; R.sCNT = sCNT
    red_setup(e, R, 16, 16); row_setup(e, R, R.sROW); order_setup(e, mk_order(cfg.D, cfg.RAT))
    pf_base(e, sPF)
    vQ, vKV, vKM, vOW, vVM, vMD = 36, 37, 38, 39, 12, 13
    mreg = [80, 82, 84, 86, 88, 90, 92, 94]
    e(f"""s_lshr_b32 s32, {sW}, 1
    s_lshl_b32 {sHD}, {R.sM}, 1
    s_add_u32 {sHD}, {sHD}, s32
    s_lshl_b32 s33, s32, 13
    v_add_u32 v{vKV}, s33, v{tL16}
    s_and_b32 s34, {sW}, 1
    s_lshl_b32 s35, s34, 10
    v_add_u32 v{vQ}, s35, v{vKV}
    s_lshl_b32 s35, s34, 13
    s_lshr_b32 s33, s33, 1
    s_add_u32 s35, s35, s33
    v_add_u32 v{vOW}, s35, v{tL16}
    s_mul_i32 s33, s32, 6144
    s_add_u32 s33, s33, {L_M}
    v_add_u32 v{vVM}, s33, v{tL16}
    v_lshrrev_b32 v10, 4, v{tLANE}
    v_and_b32 v11, 7, v{tLANE}
    v_lshlrev_b32 v{vKM}, 7, v10
    v_lshl_add_u32 v{vKM}, v11, 4, v{vKM}
    v_add_u32 v{vKM}, s33, v{vKM}
    s_mov_b32 {sML}, s33
    s_lshl_b32 s34, s34, 4
    v_and_b32 v11, 15, v{tLANE}
    v_add_u32 v11, s34, v11
    v_lshlrev_b32 v10, 2, v10
    v_sub_u32 v11, v11, v10
    s_mov_b32 s{sC}, {f2u(CSC):#x}
    s_mov_b32 s{sC+1}, {f2u(CSC):#x}
    s_mov_b32 {sN}, s71
    s_mov_b32 {sCNT}, 0
    s_mov_b32 {sMP}, 0""")
    dummy_addr(e, sRF)
    for kt in range(2):
        for r in range(4): e(f'v_cmp_le_i32 {sp(mreg[4*kt+r])}, {16*kt+r}, v11')
    PLOAD = f's_lshl_b32 s31, {sHD}, 11\ns_add_u32 s31, s31, {F_P3}\nv_bfe_u32 v{tPOLL}, v{tLANE}, 1, 4\nv_lshlrev_b32 v{tPOLL}, 7, v{tPOLL}\nv_and_or_b32 v{tPOLL}, v{tL4}, 4, v{tPOLL}\nbuffer_load_dword v{tPOLL}, v{tPOLL}, {WS}, s31 offen sc1'
    def ptest(sit):
        return (f's_and_b32 s30, {sit}, 63\nv_cmp_ge_u32 vcc, s30, v{tPOLL}\ns_lshr_b32 s30, {sit}, 6\ns_lshl_b32 s30, 0x15151515, s30\n'
                f's_and_b32 s31, vcc_lo, s30\ns_cmp_eq_u32 s31, 0')
    def mload(sit): return f's_lshr_b32 s31, {sit}, 6\ns_lshl_b32 s31, s31, 5\ns_add_u32 s31, s31, {sHD}\ns_lshl_b32 s31, s31, 7\ns_add_u32 s31, s31, {F_R}\nv_and_b32 v14, 12, v{tL4}\nbuffer_load_dword v14, v14, {WS}, s31 offen sc1'
    def mtest(sit): return f's_and_b32 s30, {sit}, 63\nv_cmp_ge_u32 vcc, s30, v14\ns_cmp_eq_u64 vcc, 0'
    def base(sit, off): return f's_lshl_b32 {sG}, {sit}, 18\ns_lshl_b32 {sL}, {sHD}, 13\ns_add_u32 {sG}, {sG}, {sL}\ns_add_u32 {sG}, {sG}, {off}\n'
    def mdma(sit, voff):
        return [lambda: e(base(sit, OFF_MM) + f's_mov_b32 {sL}, {sML}')] + dma_steps(e, sG, sL, 6, voff, cfg.AMF)
    def dma(sit, voff):
        out = [lambda: e(base(sit, OFF_KF) + f's_and_b32 {sL}, {sL}, 8192')]
        for x in range(3):
            if x: out.append(lambda: e(f's_add_u32 {sG}, {sG}, {32*MB-4096}\ns_add_u32 {sL}, {sL}, {16384-4096}'))
            out += dma_steps(e, sG, sL, 8, voff, cfg.ADF if x < 2 else cfg.AMF)
        return out
    def ROWF():
        t = f'buffer_store_dword v11, off, {WS}, {sRF}'
        return 'v_mov_b32 v11, s100\n' + (loc_store(t) if cfg.LOC else t + ' sc1') + ev(2, 's45', R.sROW)
    QF, KM, KB, S, VM, VF = 40, 56, 72, 112, 124, 140
    LD, O = [128, 104, 108, 160, 164, 168, 112, 116, 120, 124], 40
    OB, PK, ST, ACC = 40, 104, 112, [144, 128]
    Y2, Y, RES, TMP = 160, 172, 184, 190
    L_D = L_M + 12288
    e(f'v_add_u32 v{R.ly}, {L_D+64-L_O}, v{R.ly}\ns_lshl_b32 s33, {sW}, 2\ns_add_u32 s33, s33, {L_D}\nv_mov_b32 v{vMD}, s33\nv_mov_b32 v15, {L_D}')
    sITA, sIT3, sPEND = 's14', 's15', 's19'
    piece_setup(e, 0, 8192)
    def att(h):
        def H(n):
            if n in h: h[n]()
        tq = [e.ds(f'ds_read_b128 {vr(QF+4*k)}, v{vQ} offset:{32768+k*2048}') for k in range(4)]
        tk = [e.ds(f'ds_read_b128 {vr(KB+4*j)}, v{vKV} offset:{j*1024}') for j in range(8)]
        rdy = 'ready' in h
        def kmr(k): return e.ds(f'ds_read_b128 {vr(KM+4*k)}, v{vKM} offset:{4096+k*512}')
        def mmf(k): e.wds(tkm[k]); e(f'{MF} {vr(S+8)}, {vr(KM+4*k)}, {vr(QF+4*k)}, {vr(S+8) if k else 0}')
        H('start')
        tkm = []
        for k in range(4):
            for t in range(2):
                e.wds(tk[2*k+t]); a = vr(S+4*t)
                e(f'{MF} {a}, {vr(KB+8*k+4*t)}, {vr(QF+4*k)}, {a if k else 0}')
                if rdy and k < 2: tkm.append(kmr(2*k+t))
                e.ds(f'ds_read_b128 {vr(VF+4*(2*k+t))}, v{vKV} offset:{16384+(2*k+t)*1024}')
        if rdy:
            for k in range(4): mmf(k)
        H('mid')
        MX, TT, SM = 6, 7, TMP
        e(f'v_mov_b32 v7, {NEG:#x}')
        for j in range(8): e(f'v_cndmask_b32 v{S+j}, v7, v{S+j}, {sp(mreg[j])}')
        e(f'v_max3_f32 v{MX}, v{S}, v{S+1}, v{S+2}\nv_max3_f32 v{MX}, v{MX}, v{S+3}, v{S+4}\nv_max3_f32 v{MX}, v{MX}, v{S+5}, v{S+6}\nv_max_f32 v{MX}, v{MX}, v{S+7}')
        H('mm')
        EVREG[0] = 10; e(ev(1, sITA, R.sROW)); EVREG[0] = 7
        if not rdy: tkm = [kmr(k) for k in range(4)]
        tvm = [e.ds(f'ds_read_b128 {vr(VM+4*k)}, v{vVM} offset:{k*1024}') for k in range(4)]
        H('early')
        if not rdy:
            for k in range(4): mmf(k)
        H('p1')
        e(f'v_max3_f32 v{MX}, v{MX}, v{S+8}, v{S+9}\nv_max3_f32 v{MX}, v{MX}, v{S+10}, v{S+11}')
        xlane(e, 'v_max_f32', MX, TT)
        e(f'v_mul_f32 v{MX}, s{sC}, v{MX}')
        for r in range(0, 12, 2): e(f'v_pk_fma_f32 {vr(S+r,2)}, {vr(S+r,2)}, {sp(sC)}, {vr(MX,2)} op_sel_hi:[1,1,0] neg_lo:[0,0,1] neg_hi:[0,0,1]')
        for r in range(12): e(f'v_exp_f32 v{S+r}, v{S+r}')
        e(f'v_pk_add_f32 {vr(SM,2)}, {vr(S+8,2)}, {vr(S+10,2)}\nv_pk_fma_f32 {vr(SM,2)}, {vr(SM,2)}, 0.5, {vr(S,2)} op_sel_hi:[1,0,1]')
        for r in range(2, 8, 2): e(f'v_pk_add_f32 {vr(SM,2)}, {vr(SM,2)}, {vr(S+r,2)}')
        e(f'v_add_f32 v{SM}, v{SM}, v{SM+1}')
        xlane(e, 'v_add_f32', SM, TT)
        e(f'v_rcp_f32 v{SM}, v{SM}')
        H('p2a')
        for r in range(0, 12, 2): e(f'v_pk_mul_f32 {vr(S+r,2)}, {vr(S+r,2)}, {vr(SM,2)} op_sel_hi:[1,0]')
        PX, PM = S, S+4
        for r in range(6): e(f'v_cvt_pk_bf16_f32 v{PX+r}, v{S+2*r}, v{S+2*r+1}')
        H('p2')
        e.wds(tvm[3])
        def oc(f, hh):
            for r in (2*hh, 2*hh+1): e(f'v_cvt_pk_bf16_f32 v{VF+8*f+r}, v{O+8*f+r}, v{O+8*f+4+r}')
        def ow(f): e.ds(f'ds_write_b128 v{vOW}, {vr(VF+8*f)} offset:{L_O+f*1024}')
        q = [x for f in range(4) for x in ((oc, f, 0), (oc, f, 1), (ow, f))]
        for f in range(4):
            for t in (2*f, 2*f+1): e(f'{MF} {vr(O+4*t)}, {vr(VF+4*t)}, {vr(PX)}, 0')
            for t in (2*f, 2*f+1): e(f'{MF16} {vr(O+4*t)}, {vr(VM+2*t,2)}, {vr(PM,2)}, {vr(O+4*t)}')
            if f >= 2:
                for _ in range(3): x = q.pop(0); x[0](*x[1:])
        for x in q: x[0](*x[1:])
    def odd(f, track=True):
        l = e.lab('A_'); n0 = (e.vmn, e.vmdone)
        e(f's_bitcmp1_b32 {sW}, 0\ns_cbranch_scc0 {l}'); f(); e.label(l)
        e.vmn, e.vmdone = n0
    def blocking_att(code):
        def f():
            h1 = e.lab('A_'); h2 = e.lab('A_')
            e(f's_cmp_eq_u32 {sPRE}, 1\ns_cbranch_scc1 {h1}')
            poll(e, cfg, PLOAD, ptest(sITA), code)
            for x in dma(sITA, tL16): x()
            e.vm0(); e.label(h1)
        odd(f)
        e('s_barrier')
        def g():
            h2 = e.lab('A_')
            e(f's_cmp_eq_u32 {sMP}, 1\ns_cbranch_scc1 {h2}')
            poll(e, cfg, mload(sITA), mtest(sITA), code+1)
            for x in mdma(sITA, tL16): x()
            e.vm0(); e.label(h2)
        att({'mm': lambda: (odd(g), e('s_barrier')), 'p1': lambda: odd(lambda: e(PLOAD))})
        e.vm0()
        e.ds0(); e(f's_barrier\ns_mov_b32 {sPEND}, 0')
    def resl():
        l1 = e.lab('A_'); l2 = e.lab('A_')
        e(f's_and_b32 s33, {sIT}, 63\ns_lshl_b32 s33, s33, 5\ns_add_u32 s33, s33, {R.sROW}\ns_mul_i32 s33, s33, 1280\ns_cmp_lt_u32 {sIT}, 64\ns_cbranch_scc1 {l1}\ns_add_u32 s33, s33, {OFF_X2}')
        n0 = e.vmn; res_load(e, R, WS, 's33', RES); e.vmn = n0
        e(f's_branch {l2}'); e.label(l1)
        res_load(e, R, 's[20:23]', 's33', RES); e.label(l2)
    def fin_addr():
        e(ring_slot(sCNT, 's17', 's16') + f's_mov_b32 s100, {sCNT}\ns_mov_b32 s45, {sIT}\ns_lshl_b32 s16, s17, 5\ns_add_u32 s16, s16, {R.sROW}\ns_lshl_b32 {sRF}, s16, 7\ns_add_u32 {sRF}, {sRF}, {F_XN1}\ns_mul_i32 s16, s16, 1280\ns_add_u32 s16, s16, {OFF_X1}\ns_mul_i32 s17, s17, {ITEM}\ns_add_u32 s17, s17, {OFF_XN1}')
    RING_LD = f'buffer_load_dword v11, v{tL4}, {WS}, {R.sFP} offen offset:{2048+3*256} sc1'
    def ring_wait(tok):
        lp = e.lab('rw'); ok = e.lab('rw')
        test = f'v_add_u32 v11, {RING[0]}, v11\nv_cmp_gt_u32 vcc, {sCNT}, v11'
        e.wvm(tok); e(test + f'\ns_mov_b32 s28, 0\ns_cbranch_vccnz {lp}'); e.label(ok)
        e.cold.append(f'{lp}:\n{RING_LD}\ns_waitcnt vmcnt(0)\n{test}\ns_cbranch_vccz {ok}\ns_add_u32 s28, s28, 1\ns_cmp_lt_u32 s28, {cfg.SPIN}\ns_cbranch_scc1 {lp}\ns_mov_b32 s29, 28\ns_branch L_abort')
    def RFL():
        if not cfg.ARL: return
        l = e.lab('A_'); e(f's_bitcmp1_b32 {sW}, 0\ns_cbranch_scc1 {l}\ns_cmp_eq_u32 {sPEND}, 1\ns_cbranch_scc0 {l}\n' + ROWF()); e.label(l)
    def fin(em):
        reduce_gather(em, R, Y2, Y)
        finish_row(em, R, Y, RES, TMP, True, (WS, 's16', 'loc' if cfg.LOC else 'sc1'), 's17', 's18', Y2)
    e(f'v_mov_b32 v11, 1\nds_write_b32 v{vMD}, v11\nds_write_b32 v{vMD}, v11 offset:16\ns_mov_b32 {sPRE}, 0')
    if cfg.DRY:
        order_item(e, sN, sIT3)
        e(f's_sub_u32 {sN}, {sN}, {cfg.NGA}\ns_mov_b32 {sITA}, 128\ns_mov_b32 {sPRE}, 1\ns_mov_b32 {sMP}, 1')
    else:
        order_item(e, sN, sITA)
        e(f's_add_u32 s32, {sN}, {cfg.NGA}'); order_item(e, 's32', sIT3)
    e('s_branch L_Ablock')
    top, join = 'L_Atop', 'L_Ajoin'
    e.label(top); e.unknown()
    prof(e, cfg, 0)
    def oread(k): return e.ds(f'ds_read_b128 {vr(OB+4*k)}, v0 offset:{L_O+k*512}')
    oread.tok = {k: oread(k) for k in range(4)}
    e(f's_mov_b32 {sIT}, {sITA}\ns_mov_b32 {sITA}, {sIT3}\ns_add_u32 {sN}, {sN}, {cfg.NGA}\ns_add_u32 {sCNT}, {sCNT}, 1')
    e(f's_and_b32 s30, {sW}, 1\ns_lshl_b32 s30, s30, 1\ns_add_u32 s30, s30, {sPEND}')
    for k_ in (1, 3, 2): e(f's_cmp_eq_u32 s30, {k_}\ns_cbranch_scc1 L_Ab{k_}')
    st0 = (e.vmn, e.vmdone, e.lgn, e.lgdone)
    def back(kind):
        fill = {}; tm = {}; r = None; aft = None
        isodd, pend = kind >> 1, kind & 1; n0 = len(e.L)
        at(fill, 32, lambda: prof(e, cfg, 1))
        at(fill, 7, lambda: (e(f's_add_u32 s32, {sN}, {cfg.NGA}'), order_item(e, 's32', sIT3)))
        PB = cfg.AR0 + 8
        if pend:
            rtok = {}
            st_ = rs_steps(e, R, LD, rtok, 's42', 's43')
            for f in st_[:cfg.ARP]: f()
            for q, f in enumerate(st_[cfg.ARP:]): at(fill, q//2, f)
            for q in range(10): at(fill, cfg.AR0 + q//2 if q else 15, lambda q=q: rs_mfma(e, R, rtok, LD, Y, q))
            at(fill, cfg.AR0 + 5, lambda: rs_done(e, R, 's100'))
            if isodd:
                for T in range(3): at(fill, cfg.AR0 + 5 + T, lambda T=T: tm.update(y=e.ds(f'ds_write_b128 v{R.ly}, {vr(Y+4*T)} offset:{T*1024}')))
            at(fill, PB, lambda: (isodd and e.wds(tm['y']), e('s_barrier')))
            assert 15 <= cfg.AR0 < 25
        if kind == 1:
            r = Rec(); fin(r)
            def aft(last):
                at(fill, max(last + 1, min(last + cfg.ARD, 79)), lambda: (e.wvm(r.tok['last']), e.vm(ROWF())))
            at(fill, PB + cfg.ARES, resl)
        if kind == 0: at(fill, 8, resl)
        if isodd:
            e(ptest(sITA) + gate(sPRE, tDMA, sITA))
            q = dma(sITA, tDMA)
            b1 = cfg.AB1 if pend else 0
            for j, f in enumerate(q): at(fill, int(b1+cfg.ABS*j), f)
            p = int(b1+cfg.ABS*len(q))
            at(fill, p-cfg.AML, lambda: tm.update(m=e.vm(mload(sITA))))
            at(fill, p, lambda: (e.wvm(tm['m']), e(mtest(sITA) + gate(sMP, 14, sITA))))
            q = mdma(sITA, 14)
            for j, f in enumerate(q): at(fill, int(p+1+cfg.ABS*j), f)
            p = int(p+1+cfg.ABS*len(q))
            at(fill, p, lambda: tm.update(t=e.vm(PLOAD)))
            at(fill, p+1, lambda: (e(f's_and_b32 s30, {sPRE}, {sMP}\nv_mov_b32 v11, s30'), e.ds(f'ds_write_b32 v{vMD}, v11')))
        slot_free(e, cfg, R, fill, cfg.ASF, (cfg.AS0 or 37)+2, 27)
        out_proj(e, R, lambda c,k: wname(wo(c,k)), 16, OB, oread, ACC, PK, ST, fill, cfg.AS0, r, aft, cfg.ABUD, PB+1, 27 if pend else None)
        if isodd: e.wvm(tm['t'])
        if kind == 1:
            L = e.L[n0:]
            use = max(i for i, l in enumerate(L) if l.startswith('v_') and any(f'v{RES+x}' in l.replace(',', ' ').split() for x in range(6)))
            assert use < min(i for i, l in enumerate(L) if l.startswith(f'buffer_load_dwordx2 v[{RES}:'))
            assert max(i for i, l in enumerate(L) if 's18 offen' in l or 's16 offen' in l) < min(i for i, l in enumerate(L) if l.startswith('buffer_store_dword v11'))
    for k_ in range(4):
        if k_: e.label(f'L_Ab{k_}')
        e.vmn, e.vmdone, e.lgn, e.lgdone = st0
        back(k_)
        if k_ < 3: e(f's_branch {join}')
    e.label(join)
    e.vmdone = e.vmn - 1
    prof(e, cfg, 2)
    tt = decide(e, 15, 40, lambda: out_tail1(e, R, ACC[0], PK))
    e(f'v_xor_b32 v15, 16, v15\nv_xor_b32 v{vMD}, 16, v{vMD}')
    seq = e.lab('A_')
    e(f's_cbranch_scc0 {seq}')
    if cfg.CRIT & 1: e(f's_cmp_lt_u32 {sIT}, 64\ns_cbranch_scc1 {seq}')
    st = (e.vmn, e.vmdone, e.lgn, e.lgdone)
    prof(e, cfg, 3)
    k = {}
    att({'ready': None, 'start': lambda: k.update(ts=out_tail2(e, R, PK, tt)),
         cfg.AH[0]: lambda: (e.wvm(k['ts']), publish(e, R, sCNT), RFL(), fin_addr()),
         cfg.AH[1]: lambda: k.update(r=e.vm(RING_LD), g=e.vm(grp_load(R))),
         })
    prof(e, cfg, 4)
    ring_wait(k['r']); grp_wait(e, cfg, R, sCNT, 23, k['g'])
    prof(e, cfg, 5); prof(e, cfg, 6); prof(e, cfg, 7); prof_flush(e, cfg, 8, sPF)
    e.ds0()
    e(f's_barrier\ns_mov_b32 {sPEND}, 1\ns_branch {top}')
    e.label(seq); e.vmn, e.vmdone, e.lgn, e.lgdone = st
    for i in (3, 4): prof(e, cfg, i)
    e.wvm(out_tail2(e, R, PK, tt)); publish(e, R, sCNT); RFL(); fin_addr()
    if cfg.GDLY: e(f's_sleep {cfg.GDLY}')
    tr_ = e.vm(RING_LD)
    grp_wait(e, cfg, R, sCNT, 25); ring_wait(tr_)
    for i in (5, 6): prof(e, cfg, i)
    t_ = rs_loads(e, R, LD)
    rs_sum(e, R, t_, LD, Y)
    e.ds0()
    skip = e.lab('A_')
    e(f's_barrier\ns_bitcmp1_b32 {sW}, 0\ns_cbranch_scc1 {skip}')
    e.vm0(); fin(e); e.vm0(); e(ROWF())
    e.label(skip)
    prof(e, cfg, 7); prof_flush(e, cfg, 8, sPF)
    e(f's_cmp_ge_u32 {sITA}, 128\ns_cbranch_scc1 L_wb')
    e.label('L_Ablock'); e.unknown()
    blocking_att(26)
    e(f's_branch {top}')
    flush_cold(e); e.unknown()

def role_F(e, cfg):
    NGF = 6 - cfg.NGA
    R = Red(); R.L_T = 65536; L_H = 40960; R.L_Y = 49152
    sN, sIT, sIT2, sCNT, sPRE, sG, sL, sPF = ['s%d' % i for i in range(62, 70)]
    sNL = 's80'
    w1 = lambda k: w80(k)
    w2 = lambda c, k: w80(40+8*c+k)
    e.label('L_roleF')
    tok_setup(e)
    srd(e, 12, P_W1); srd(e, 16, P_W2); srd(e, 96, P_OUT)
    now = e.lab('f'); now2 = e.lab('f')
    e(f's_cmp_lt_u32 s70, 14\ns_cbranch_scc1 {now}')
    e.vm0(); arrive(e); e(f's_branch {now2}')
    e.label(now)
    wl = WL(e, tLANE, 0, 4096*cfg.NSL, 24, 40, cfg.NSL)
    e(f's_lshl_b32 s33, s70, 8'); s1 = wl.src(16, 3456, 's33', False)
    wl.cols32('s[12:15]', s1, 10, w1, 18, False, first=lambda: arrive(e))
    e(f's_mul_i32 s62, s70, {128*1280}')
    wl.rows32('s[16:19]', 's62', 4, w2, 16)
    e.label(now2)
    sync_start(e, cfg)
    R.row = 96; R.single = cfg.SINGLE; R.sCNT = sCNT
    red_setup(e, R, 100, 14); row_setup(e, R, R.sROW); order_setup(e, mk_order(cfg.D, cfg.RAT))
    pf_base(e, sPF)
    e(f's_sub_u32 {sN}, {R.sG}, {cfg.NGA}')
    vHW, vD, vDW, vXA = 16, 17, 18, 20
    x_setup(e, vXA); l128_setup(e)
    L_D = 57344
    sRF, sITA, sPEND = 's82', 's14', 's19'
    e(f's_mov_b32 {sNL}, {f2u(-math.log2(math.e)):#x}\ns_mov_b32 s81, {sNL}\ns_mov_b32 {sCNT}, 0\ns_lshl_b32 s33, {sW}, 11\nv_add_u32 v{vHW}, s33, v{tL16}')
    e(f's_lshl_b32 s33, {sW}, 2\ns_add_u32 s33, s33, {L_D}\nv_mov_b32 v{vDW}, s33\nv_mov_b32 v{vD}, {L_D}')
    XB = [40+4*i for i in range(8)]; FA, HF, LD = 72, 88, 120
    OB, PK, ST, ACC = 40, 72, 80, 120
    Y2, Y, RES, TMP = 160, 172, 184, 190
    ROWFLAG = f'v_mov_b32 v11, 1\nbuffer_store_dword v11, off, {WS}, {sRF} sc1' + ev(4, 's45', R.sROW)
    def xpoll(d): return f's_add_u32 s83, {sCNT}, {d}\n' + ring_slot('s83', 's31', 's30') + f's_lshl_b32 s31, s31, 12\ns_add_u32 s31, s31, {F_XN1}\n' + row_flags_load('s31')
    XTEST = f'v_cmp_gt_u32 vcc, s83, v{tPOLL}\ns_cmp_eq_u32 vcc_lo, 0'
    def dma(sit, voff):
        return [lambda: e(f's_add_u32 s30, {sCNT}, 1\n' + ring_slot('s30', sG, sL) + f's_lshr_b32 {sL}, {sW}, 1\ns_mul_i32 {sL}, {sL}, 20480\ns_mul_i32 {sG}, {sG}, {ITEM}\ns_add_u32 {sG}, {sG}, {sL}\ns_add_u32 {sG}, {sG}, {OFF_XN1}')] + dma_steps(e, sG, sL, 20, voff)
    def odd(f):
        l = e.lab('f'); n0 = (e.vmn, e.vmdone)
        e(f's_bitcmp1_b32 {sW}, 0\ns_cbranch_scc0 {l}'); f(); e.label(l)
        e.vmn, e.vmdone = n0
    def resl():
        e(ring_slot(sCNT, 's30', 's31') + f's_lshl_b32 s30, s30, 5\ns_add_u32 s30, s30, {R.sROW}\ns_mul_i32 s30, s30, 1280\ns_add_u32 s30, s30, {OFF_X1}')
        res_load(e, R, WS, 's30', RES)
        e(f"""s_and_b32 s17, {sIT}, 63
        s_cmp_ge_u32 {sIT}, 128
        s_cselect_b32 s17, 64, s17
        s_lshl_b32 s16, s17, 5
        s_add_u32 s16, s16, {R.sROW}
        s_lshl_b32 {sRF}, s16, 7
        s_add_u32 {sRF}, {sRF}, {F_XN+64*4096}
        s_cmp_ge_u32 {sIT}, 128
        s_cselect_b32 {sRF}, s84, {sRF}
        s_mul_i32 s16, s16, 1280
        s_add_u32 s15, s16, {OFF_X2}
        s_mul_i32 s17, s17, {ITEM}
        s_add_u32 s17, s17, {OFF_XN+64*ITEM}
        s_mov_b32 s45, {sIT}
        s_bfe_u32 s13, {sIT}, 0x10006""")
    def fin(em, layer):
        reduce_gather(em, R, Y2, Y)
        if layer == 0: finish_row(em, R, Y, RES, TMP, True, (WS, 's15', 'sc1'), 's17', 's18', Y2)
        else: finish_row(em, R, Y, RES, TMP, True, ('s[96:99]', 's16', ''), None, None, Y2)
    def fin_now():
        skip = e.lab('f'); last = e.lab('f')
        e(f's_bitcmp1_b32 {sW}, 0\ns_cbranch_scc1 {skip}\ns_waitcnt vmcnt(0)\ns_cmp_eq_u32 s13, 1\ns_cbranch_scc1 {last}')
        fin(e, 0); e.vm0(); e(ROWFLAG + f'\ns_branch {skip}')
        e.label(last); fin(e, 1)
        e.label(skip)
    def front(h):
        e(ev(3, sITA, R.sROW))
        xs = Stream(e, XB, [xfrag(e, k, vXA) for k in range(40)]); xs.prime()
        if 'start' in h: h['start']()
        a = vr(FA, 16)
        for k in range(40):
            e(f'{MF32} {a}, {wname(w1(k))}, {xs.get(k)}, {a if k else 0}')
            xs.issue()
            if 'drip' in h: h['drip']()
            if k in h: h[k]()
            if k == 2: e(f's_add_u32 s32, {sN}, {NGF}'); order_item(e, 's32', sIT2)
            if k == 39: tp = e.vm(xpoll(2))
        T = 40
        for r in range(0, 16, 2): e(f'v_pk_mul_f32 {vr(T+r,2)}, {vr(FA+r,2)}, s[80:81]')
        for r in range(16): e(f'v_exp_f32 v{T+r}, v{T+r}')
        for r in range(0, 16, 2): e(f'v_pk_add_f32 {vr(T+r,2)}, {vr(T+r,2)}, 1.0 op_sel_hi:[1,0]')
        for r in range(16): e(f'v_rcp_f32 v{T+r}, v{T+r}')
        for r in range(0, 16, 2): e(f'v_pk_mul_f32 {vr(FA+r,2)}, {vr(FA+r,2)}, {vr(T+r,2)}')
        for u in range(2):
            for r in range(4): e(f'v_cvt_pk_bf16_f32 v{HF+4*u+r}, v{FA+8*u+2*r}, v{FA+8*u+2*r+1}')
            e.ds(f'ds_write_b128 v{vHW}, {vr(HF+4*u)} offset:{L_H+u*1024}')
        if 'end' in h: h['end']()
        odd(lambda: (e.wvm(tp), e(XTEST + gate(sPRE, tDMA, sIT2) + f'\nv_mov_b32 v11, {sPRE}\nds_write_b32 v{vDW}, v11')))
        e.ds0(); e('s_barrier')
    order_item(e, sN, sITA); dummy_addr(e, 's84')
    e(f'v_mov_b32 v11, 1\nds_write_b32 v{vDW}, v11\nds_write_b32 v{vDW}, v11 offset:16\ns_mov_b32 {sPRE}, 0')
    if cfg.DRY: e(f's_sub_u32 {sN}, {sN}, {NGF}\ns_mov_b32 {sITA}, 128\ns_mov_b32 {sPRE}, 1')
    top, join, rtop = 'L_Ftop', 'L_Fjoin', 'L_Frtop'
    e(f's_cmp_lt_u32 {R.sM}, 14\ns_cbranch_scc1 L_Fblock')
    e.label(rtop)
    e(f's_mov_b32 {sIT}, {sITA}\ns_add_u32 {sCNT}, {sCNT}, 1')
    publish(e, R, sCNT)
    grp_wait(e, cfg, R, sCNT, 33)
    resl(); t_ = rs_loads(e, R, LD)
    rs_sum(e, R, t_, LD, Y)
    e.ds0(); e('s_barrier'); fin_now()
    e(f's_barrier\ns_add_u32 {sN}, {sN}, {NGF}'); order_item(e, sN, sITA)
    e(f's_cmp_lt_u32 {sN}, 128\ns_cbranch_scc1 {rtop}\ns_endpgm')
    e.label(top); e.unknown()
    prof(e, cfg, 0)
    def oread(k): return e.ds(f'ds_read_b128 {vr(OB+4*k)}, v{tL16} offset:{L_H+k*1024}')
    oread.tok = {k: oread(k) for k in range(4)}
    e(f's_mov_b32 {sIT}, {sITA}\ns_mov_b32 {sITA}, {sIT2}\ns_add_u32 {sN}, {sN}, {NGF}\ns_add_u32 {sCNT}, {sCNT}, 1')
    def RFL():
        l = e.lab('f'); e(f's_cmp_eq_u32 {sPEND}, 1\ns_cbranch_scc0 {l}\n' + ROWFLAG); e.label(l)
    e(f's_cmp_eq_u32 {sPEND}, 1\ns_cbranch_scc1 L_Fb1\ns_cmp_eq_u32 {sPEND}, 2\ns_cbranch_scc1 L_Fb2\ns_bitcmp1_b32 {sW}, 0\ns_cbranch_scc1 L_Fb3')
    st0 = (e.vmn, e.vmdone, e.lgn, e.lgdone)
    def back(kind):
        fill = {}; tm = {}; r = None
        if kind == 3:
            q = dma(sITA, tDMA)
            for j, f in enumerate(q): at(fill, int(cfg.FD0+cfg.FDS*j), f)
            at(fill, int(cfg.FD0+cfg.FDS*len(q)), lambda: tm.update(t=e.vmn))
        elif kind:
            at(fill, 0, lambda: e('s_waitcnt vmcnt(0)'))
            r = Rec(cfg.FSC); fin(r, kind-1)
        slot_free(e, cfg, R, fill, cfg.FSF, 23, 35)
        out_proj(e, R, lambda c,k: wname(w2(c,k)), 8, OB, oread, [ACC, ACC+16], PK, ST, fill, None, r, None, cfg.FBUD)
        if kind == 3: e.wvm(tm['t'])
    for k_ in range(4):
        if k_: e.label(f'L_Fb{k_}'); e.vmn, e.vmdone, e.lgn, e.lgdone = st0
        back(k_)
        if k_ < 3: e(f's_branch {join}')
    e.label(join)
    e.vmdone = e.vmn - 1
    prof(e, cfg, 1)
    PKT = 24
    tt = decide(e, vD, 40, lambda: out_tail1(e, R, ACC, PKT))
    e(f'v_xor_b32 v{vD}, 16, v{vD}\nv_xor_b32 v{vDW}, 16, v{vDW}')
    seq = e.lab('f')
    e(f's_cbranch_scc0 {seq}')
    if cfg.CRIT & 2: e(f's_cmp_lt_u32 {sIT}, 64\ns_cbranch_scc1 {seq}')
    st = (e.vmn, e.vmdone, e.lgn, e.lgdone)
    prof(e, cfg, 2)
    k = {}
    front({'start': lambda: k.update(ts=out_tail2(e, R, PKT, tt)),
           cfg.FH[0]: lambda: (e.wvm(k['ts']), publish(e, R, sCNT), RFL(), resl()), cfg.FH[1]: lambda: k.update(g=e.vm(grp_load(R))),
           cfg.FH[2]: lambda: (prof(e, cfg, 3), grp_wait(e, cfg, R, sCNT, 31, k['g']), prof(e, cfg, 4), k.update(t={}), k.update(q=rs_steps(e, R, LD, k['t'], 's34', 's35'))),
           'drip': lambda: k.get('q') and k['q'].pop(0)(),
           'end': lambda: ([f() for f in k['q']], prof(e, cfg, 5), rs_sum(e, R, k['t'], LD, Y))})
    e(f's_add_u32 {sPEND}, s13, 1\ns_bitcmp1_b32 {sW}, 0\ns_cselect_b32 {sPEND}, 0, {sPEND}')
    prof(e, cfg, 6); prof_flush(e, cfg, 7, sPF)
    e(f's_branch {top}')
    e.label(seq); e.vmn, e.vmdone, e.lgn, e.lgdone = st
    prof(e, cfg, 2)
    e.wvm(out_tail2(e, R, PKT, tt)); publish(e, R, sCNT); RFL()
    if cfg.GDLY: e(f's_sleep {cfg.GDLY}')
    prof(e, cfg, 3)
    grp_wait(e, cfg, R, sCNT, 34)
    prof(e, cfg, 4)
    resl(); t_ = rs_loads(e, R, LD)
    rs_sum(e, R, t_, LD, Y)
    e.ds0(); e('s_barrier')
    prof(e, cfg, 5)
    fin_now()
    prof(e, cfg, 6); prof_flush(e, cfg, 7, sPF)
    e(f's_cmp_ge_u32 {sITA}, 128\ns_cbranch_scc1 L_end')
    e.label('L_Fblock'); e.unknown()
    def fetch():
        got = e.lab('f')
        e(f's_cmp_eq_u32 {sPRE}, 1\ns_cbranch_scc1 {got}')
        poll(e, cfg, xpoll(1), XTEST, 32)
        for f in dma(sITA, tL16): f()
        e.vm0(); e.label(got)
    odd(fetch)
    e('s_barrier')
    front({}); e(f's_mov_b32 {sPEND}, 0\ns_branch {top}')
    flush_cold(e); e.unknown()

def role_LN(e, cfg):
    R = Red(); R.L_T = 0; R.L_Y = 0; R.row = 96
    e.label('L_roleLN')
    tok_setup(e)
    e.vm0(); arrive(e)
    e('s_mov_b32 s70, 0\ns_mov_b32 s71, 0')
    red_setup(e, R, 100, 14)
    srd(e, 20, P_X)
    e(f's_lshl_b32 s62, {sH}, 2\ns_add_u32 s62, s62, {sW}\ns_and_b32 s34, s62, 31\ns_mul_i32 s30, s62, 1280')
    row_setup(e, R, 's34')
    for k in range(16):
        res_load(e, R, 's[20:23]', 's30', 128+6*k); e(f's_add_u32 s30, s30, {128*1280}')
    sync_start(e, cfg)
    e(f's_lshr_b32 s31, s62, 5\ns_mul_i32 s31, s31, {ITEM}\ns_add_u32 s31, s31, {OFF_XN}\ns_lshl_b32 s32, s62, 7\ns_add_u32 s32, s32, {F_XN}\nv_mov_b32 v11, 1')
    prev = None
    for k in range(16):
        finish_row(e, R, 40+16*(k & 1), 128+6*k, 52+16*(k & 1), False, None, 's31')
        e(f's_add_u32 s31, s31, {4*ITEM}')
        if k:
            e.wvm(prev); e.vm(f'buffer_store_dword v11, off, {WS}, s32 sc1'); e(f's_add_u32 s32, s32, {4*4096}')
            prev = e.vmn - 1
        else: prev = e.vmn
    e.vm0(); e(f'buffer_store_dword v11, off, {WS}, s32 sc1\ns_branch L_roleR')
    e.unknown()

def build(**kw):
    cfg = C()
    cfg.D = 14; cfg.A = 21; cfg.NGA = 3; cfg.KVF = 'sc1'
    cfg.CH = ['S0 S20 S41','S2 S27 S48','S4 S34 S55','L9 L13 L17 L21 L25 L29 L33 L37 L42 L46 L50 L54 L58 L60 L64 L68 L72 L75 L78']
    cfg.PP = ['top','ag','qkv','sm','wo0','wo1','rs0','rs1']; cfg.SPAD = 256; cfg.SHARE = 0; cfg.SPEC = 2; cfg.RING = 4; cfg.SFR = 1; cfg.SFL = 0; cfg.NOPROC = 0; cfg.WLF = ''; cfg.FRP = -1; cfg.EV = 0; cfg.WARM = 1; cfg.REP = 1; cfg.MS = 1; cfg.VE = 0; cfg.BA = 7; cfg.EARLY = 0; cfg.WB = 0; cfg.WSF = ''; cfg.LPROF = 0; cfg.DRIP = 0; cfg.VDEF = 0; cfg.CRIT = 0; cfg.LOC = 1; cfg.STF = 'sc1'; cfg.NOMM = 0; cfg.NOFL = 0; cfg.PFL = 0; cfg.MMF = 'sc1'; cfg.PMID = 23; cfg.PPOLL = 19; cfg.RAT = 1.0; cfg.PRAT = 1.0; cfg.DRY = 1; cfg.KLATE = 0; cfg.VDB = 0; cfg.FRL = 2; cfg.WPK = 1; cfg.FLAG = 6; cfg.RACK = 1; cfg.RDLY = 0; cfg.AACK = 0; cfg.ADLY = 0
    cfg.SPIN = 1 << 19; cfg.PROF = 0; cfg.FORCE = 0; cfg.PSLEEP = 1
    cfg.RFREE = 0; cfg.NOSTREAM = 0; cfg.NOKV = 0; cfg.ONLYR = 0; cfg.CPF = 0; cfg.NSL = 3; cfg.RNSL = 4; cfg.PAIR = 1; cfg.ADF = 'sc1'; cfg.AMF = 'sc1 nt'; cfg.FH = [6, 24, 30]; cfg.FD0 = 0; cfg.FDS = 1; cfg.FSC = True; cfg.FCH = 6; cfg.AP0 = 40; cfg.AP1 = 84; cfg.ARF = 62; cfg.ONEP = 1; cfg.ARD = 12; cfg.ABUD = 28; cfg.FBUD = 32; cfg.GDLY = 3; cfg.SINGLE = 1; cfg.ASF = 34; cfg.FSF = 8; cfg.AH = ['mm', 'p2']; cfg.AR0 = 16; cfg.ARP = 4; cfg.AB1 = 5; cfg.AML = 22; cfg.ARES = 22; cfg.ARL = 0; cfg.ABS = 1.4; cfg.AD1 = 8; cfg.AS0 = 50; cfg.AM0 = 80; cfg.AM1 = 118; cfg.NOPRE = 0; cfg.ADMA0 = 10; cfg.ADMAS = 2
    for k, v in kw.items(): setattr(cfg, k, v)
    assert cfg.PAIR and cfg.NGA == 3 and cfg.SINGLE
    e = E(); e.cold = COLD; COLD.clear(); Red.onepass = cfg.ONEP; EVON[0] = cfg.EV; RING[0] = cfg.RING; WL.PROF = cfg.PROF; WL.WSF = cfg.WSF; WL.NOPROC = cfg.NOPROC; WL.LF = cfg.WLF
    e(f"""s_cmp_ge_u32 s2, 256
    s_cbranch_scc1 L_end
    s_load_dwordx16 s[36:51], s[0:1], 0
    s_load_dwordx8 s[52:59], s[0:1], 64
    s_load_dwordx2 s[60:61], s[0:1], 96
    s_getreg_b32 s3, hwreg(HW_REG_XCC_ID, 0, 4)
    {'s_memrealtime s[100:101]' if cfg.PROF or cfg.LPROF else ''}
    v_lshrrev_b32 v1, 6, v0""")
    if cfg.CPF:
        e('s_getpc_b64 s[30:31]'); e.label('L_pc')
        e('v_lshlrev_b32 v2, 7, v0\ns_mov_b32 s32, L_codeend-L_pc-4')
        for j in range(4):
            e(f'v_min_u32 v3, s32, v2\nglobal_load_dword v{252+j}, v3, s[30:31]\nv_add_u32 v2, 32768, v2')
    e(f's_waitcnt lgkmcnt(0)\nv_readfirstlane_b32 {sW}, v1')
    srd(e, 4, P_WS); srd(e, 8, P_DBG)
    e(f"""s_cmp_ge_u32 s2, {OFF_AG >> 12}
    s_cselect_b32 s30, -1, 0
    v_mov_b32 v4, s30
    v_mov_b32 v5, s30
    v_mov_b32 v6, s30
    v_mov_b32 v7, s30
    v_lshlrev_b32 v2, 4, v0
    s_lshl_b32 s31, s2, 12
    s_and_b32 s3, s3, 7
    buffer_store_dwordx4 v[4:7], v2, {WS}, s31 offen sc1
    v_mov_b64 v[8:9], 0
    v_mov_b64 v[10:11], 0
    s_add_u32 s31, s31, {MB}
    buffer_store_dwordx4 v[8:11], v2, {WS}, s31 offen sc1
    s_mov_b32 {sGRP}, s3
    s_lshr_b32 {sH}, s2, 3
    s_mov_b32 {sMODE}, 0
L_dispatch:
    s_cmp_eq_u32 {sGRP}, 0
    s_cbranch_scc1 L_roleR
    s_cmp_eq_u32 {sGRP}, 1
    s_cbranch_scc1 L_roleLN""")
    if cfg.ONLYR: e.vm0(); arrive(e); e('s_endpgm')
    e(f"""s_cmp_eq_u32 {sGRP}, 2
    s_cbranch_scc1 L_roleK
    s_cmp_eq_u32 {sGRP}, 3
    s_cbranch_scc1 L_roleV
    s_cmp_eq_u32 {sGRP}, 4
    s_cbranch_scc1 L_roleQ""")
    group_ids(e, cfg.PAIR)
    e(f"""s_cmp_lt_u32 s71, {cfg.NGA}
    s_cbranch_scc1 L_roleA
    s_branch L_roleF
L_rank:
    v_and_b32 v1, 63, v0
    v_lshlrev_b32 v1, 2, v1
    buffer_load_dword v2, v1, {DBG}, 0 offen sc1
    s_mov_b32 {sH}, 0
    s_mov_b32 s31, 0
    s_waitcnt vmcnt(0)""")
    for b in range(4):
        e(f'v_bfe_u32 v{4+b}, v2, {8*b}, 3\nv_add_u32 v3, {b}, v1\nv_cmp_gt_u32 s[32:33], s2, v3\nv_cmp_eq_u32 vcc, s3, v{4+b}\ns_and_b64 vcc, vcc, s[32:33]\ns_bcnt1_i32_b64 s30, vcc\ns_add_u32 {sH}, {sH}, s30')
    for x in range(8):
        e('s_mov_b32 s34, 0')
        for b in range(4): e(f'v_cmp_eq_u32 vcc, {x}, v{4+b}\ns_bcnt1_i32_b64 s30, vcc\ns_add_u32 s34, s34, s30')
        e('s_xor_b32 s34, s34, 32\ns_or_b32 s31, s31, s34')
    if cfg.FORCE == 2: e('s_mov_b32 s31, 1')
    e(f"""s_mov_b32 {sMODE}, 1
    s_cmp_eq_u32 s31, 0
    s_cbranch_scc1 L_dispatch
    s_mov_b32 {sMODE}, 2
    s_lshr_b32 {sGRP}, s2, 5
    s_and_b32 {sH}, s2, 31
    s_branch L_dispatch
L_abort:
    s_lshl_b32 s30, {sGRP}, 16
    s_lshl_b32 s31, {sH}, 8
    s_or_b32 s29, s29, s30
    s_or_b32 s29, s29, s31
    v_mov_b32 v1, s29
    s_lshl_b32 s30, {sGRP}, 2
    s_add_u32 s30, s30, {F_ABORT}
    buffer_store_dword v1, off, {WS}, s30
L_end:
    s_endpgm
L_wb:""")
    if cfg.WB: e(f's_and_b32 s30, {sH}, 15\ns_or_b32 s30, s30, {sW}\ns_cmp_lg_u32 s30, 0\ns_cbranch_scc1 L_end\ns_waitcnt vmcnt(0)\nbuffer_wbl2 sc1\ns_waitcnt vmcnt(0)')
    e('s_endpgm')
    role_R(e, cfg); role_LN(e, cfg); role_F(e, cfg)
    for nm in 'KVQ': role_P(e, cfg, nm)
    role_A(e, cfg)
    e.label('L_codeend'); e('s_endpgm')
    head = open('cdna_kernels/'+NAME[:-7]+'.s.ref').read().split('; Override')[0] if cfg.__dict__.get('HEAD', 1) else ''
    return head + f"""; @launch grid=(256,1,1) block=(256,1,1) lds=163840
.amdgcn_target "amdgcn-amd-amdhsa--gfx950"
.text
.globl {NAME}
.p2align 8
.type {NAME},@function
{NAME}:
""" + e.text() + f""".section .rodata,"a"
.p2align 6
.amdhsa_kernel {NAME}
  .amdhsa_next_free_vgpr 512
  .amdhsa_next_free_sgpr 102
  .amdhsa_accum_offset 256
  .amdhsa_group_segment_fixed_size 0
  .amdhsa_kernarg_size 104
  .amdhsa_user_sgpr_count 2
  .amdhsa_user_sgpr_kernarg_segment_ptr 1
  .amdhsa_system_sgpr_workgroup_id_x 1
.end_amdhsa_kernel
"""

if __name__ == '__main__':
    kw = {}
    out = 'cdna_kernels/'+NAME[:-7]+'.s'
    for a in sys.argv[1:]:
        k, v = a.split('=', 1)
        if k == 'out': out = v
        else:
            try: kw[k] = eval(v)
            except Exception: kw[k] = v
    t = build(**kw)
    open(out, 'w').write(t)
    print(out, len(t), 'bytes', t.count('\n'), 'lines')
```
